```python
import torch

def _softmax(x, axis=-1):
    return torch.softmax(x, dim=axis)
def _gelu(x):
    return torch.nn.functional.gelu(x, approximate="tanh")
def _silu(x):
    return torch.nn.functional.silu(x)
def _sigmoid(x):
    return torch.sigmoid(x)
def _layernorm(x, axis=-1, eps=1e-5):
    m = x.mean(dim=axis, keepdim=True)
    v = x.var(dim=axis, keepdim=True, unbiased=False)
    return (x - m) / torch.sqrt(v + eps)
def _scatter_add(tgt, idx, src, axis=0):
    return tgt.clone().index_add_(axis, idx, src)
def _segment_sum(src, seg, n):
    out = torch.zeros((n,) + src.shape[1:], dtype=src.dtype)
    return out.index_add_(0, seg, src)
def _pad(x, pw):
    flat = tuple(v for pair in reversed(pw) for v in pair)
    return torch.nn.functional.pad(x, flat)

kernel_name = 'sequential_preLN__mha_block_cached__mixer_token_mlp__decode'

def setup_inputs():

    _w = (lambda a: (lambda t: t.to(torch.bfloat16) if t.is_floating_point() else t)(torch.as_tensor(a)))
    def _A_setup():
        B, Sq, D = 4, 1, 448
        H, Sk, Dh = 16, 4096, 256
        return {
            "x": _w((lambda *s: torch.randn(*s, dtype=torch.bfloat16) * 0.05)(B, Sq, D)),
            "k_cache": _w((lambda *s: torch.randn(*s, dtype=torch.bfloat16) * 1.6)(B, H, Sk, Dh)),
            "v_cache": _w((lambda *s: torch.randn(*s, dtype=torch.bfloat16) * 0.4)(B, H, Sk, Dh)),
            "wq": _w((lambda *s: torch.randn(*s, dtype=torch.bfloat16) * 1.6)(D, H * Dh) * (D ** -0.5)),
            "wo": _w((lambda *s: torch.randn(*s, dtype=torch.bfloat16) * 0.4)(H * Dh, D) * ((H * Dh) ** -0.5)),
        }
    _A_in = _A_setup()

    def _B_setup():
        B, S, D, F = 4, 1, 448, 1792
        return {
            "x": _w((lambda *s: torch.randn(*s, dtype=torch.bfloat16) * 0.05)(B, S, D)),
            "w1": _w((lambda *s: torch.randn(*s, dtype=torch.bfloat16) * 1.6)(S, F) * (S ** -0.5)),
            "b1": _w((lambda *s: torch.randn(*s, dtype=torch.bfloat16) * 0.1)(F) * 0.02),
            "w2": _w((lambda *s: torch.randn(*s, dtype=torch.bfloat16) * 0.1)(F, S) * (F ** -0.5)),
            "b2": _w((lambda *s: torch.randn(*s, dtype=torch.bfloat16) * 0.1)(S) * 0.02),
        }
    _B_in = _B_setup()

    return {
        "A_x": _A_in["x"],
        "A_k_cache": _A_in["k_cache"],
        "A_v_cache": _A_in["v_cache"],
        "A_wq": _A_in["wq"],
        "A_wo": _A_in["wo"],
        "B_x": _B_in["x"],
        "B_w1": _B_in["w1"],
        "B_b1": _B_in["b1"],
        "B_w2": _B_in["w2"],
        "B_b2": _B_in["b2"],
    }

def reference(A_x, A_k_cache, A_v_cache, A_wq, A_wo, B_x, B_w1, B_b1, B_w2, B_b2):
    def _A_ref(x, k_cache, v_cache, wq, wo):
        B, Sq, D = x.shape
        H, Dh = 16, 256
        q = (lambda x, *d: x.permute(*d))((x @ wq).reshape(B, Sq, H, Dh), 0, 2, 1, 3)
        scores = torch.einsum("bhqd,bhkd->bhqk", q, k_cache) * (Dh ** -0.5)
        p = _softmax(scores, axis=-1)
        o = torch.einsum("bhqk,bhkd->bhqd", p, v_cache)
        return (lambda x, *d: x.permute(*d))(o, 0, 2, 1, 3).reshape(B, Sq, H * Dh) @ wo

    def _B_ref(x, w1, b1, w2, b2):
        B, S, D = x.shape
        h = _layernorm(x, axis=-1)
        u = torch.einsum("bsd,sf->bdf", h, w1) + b1
        u = _gelu(u)
        y = torch.einsum("bdf,fs->bds", u, w2) + b2
        return (lambda x, *d: x.permute(*d))(y, 0, 2, 1)

    x = A_x
    h = x + _A_ref(_layernorm(x, axis=-1), A_k_cache, A_v_cache, A_wq, A_wo)
    h2 = h + _B_ref(_layernorm(h, axis=-1), B_w1, B_b1, B_w2, B_b2)
    return h2
```

```python
import sys, struct, math

KN = 'sequential_preLN__mha_block_cached__mixer_token_mlp__decode_kernel'
HEADER = open('sequential_preLN__mha_block_cached__mixer_token_mlp__decode.s.ref').read().split('; Override launch')[0]


def f2u(x):
    return struct.unpack('<I', struct.pack('<f', x))[0]


QG, OG, TG, ACC, RDY = 0x0, 0x10000, 0x50000, 0x54000, 0x56000
STAMP = 256 << 20
L_FL2 = 576
L_FLG, L_CNT, L_NON, L_HDR, L_QL, L_QP, L_XN, L_OW, L_WOS, L_TBL, L_END = 0, 16, 20, 32, 64, 1024, 2048, 6144, 10752, 26112, 38400
E0 = 108
NTH = 3072
LOG2E = 1.4426950408889634
SPIN = 1 << 16


class G:
    def __init__(self, **opt):
        self.o = []
        self.opt = dict(stamps=False, wqf='nt', wof='nt', kvf='nt', dbg=False, pre=0, bar0=True, pace=8, exp='', LA=16, setC=False)
        self.opt.update(opt)
        self.uid = 0

    def a(self, s):
        self.o.append('  ' + s)

    def lab(self, s):
        self.o.append(s + ':')

    def u(self):
        self.uid += 1
        return self.uid

    def nop(self, n):
        if n > 0:
            self.a(f's_nop {n-1}')

    def stamp(self, sreg):
        if self.opt['stamps']:
            self.a(f's_memrealtime s[{sreg}:{sreg+1}]')

    def vstamp(self, v):
        if self.opt['stamps']:
            self.a('s_memrealtime s[18:19]')
            self.a('s_waitcnt lgkmcnt(0)')
            self.a(f'v_mov_b32 v{v}, s18')
            self.a(f'v_mov_b32 v{v+1}, s19')

    def unvstamp(self, v, sreg):
        if self.opt['stamps']:
            self.a(f'v_readfirstlane_b32 s{sreg}, v{v}')
            self.a(f'v_readfirstlane_b32 s{sreg+1}, v{v+1}')
            self.a('s_nop 1')

    def flush_stamps(self, pairs, vt=250):
        if not self.opt['stamps']:
            return
        a = self.a
        a('s_waitcnt lgkmcnt(0)')
        a('s_mov_b64 exec, 1')
        a('s_lshl_b32 s7, s2, 8')
        a(f's_add_u32 s7, s7, {STAMP}')
        a(f'v_mov_b32 v{vt+2}, s7')
        for slot, sreg in pairs:
            a(f'v_mov_b32 v{vt}, s{sreg}')
            a(f'v_mov_b32 v{vt+1}, s{sreg+1}')
            a(f'global_store_dwordx2 v{vt+2}, v[{vt}:{vt+1}], s[32:33] offset:{8*slot}')
            a('s_nop 1')

    def bf16r(self, dst, src, tmp=None):
        t = dst if tmp is None else tmp
        self.a(f'v_cvt_pk_bf16_f32 v{t}, v{src}, v{src}')
        self.a(f'v_and_b32 v{dst}, 0xffff0000, v{t}')

    def unpack(self, lo, hi, p):
        self.a(f'v_lshlrev_b32 v{lo}, 16, v{p}')
        self.a(f'v_and_b32 v{hi}, 0xffff0000, v{p}')

    def ladder64(self, regs, tmps, op='v_add_f32'):
        a = self.a
        n = len(regs)
        for ror in (8, 4, 2, 1):
            self.nop(max(0, 2 - (n - 1)) if True else 0)
            for r in regs:
                a(f'{op}_dpp v{r}, v{r}, v{r} row_ror:{ror} row_mask:0xf bank_mask:0xf')
        for sw in ('v_permlane16_swap_b32', 'v_permlane32_swap_b32'):
            for r, t in zip(regs, tmps):
                a(f'v_mov_b32 v{t}, v{r}')
            self.nop(max(0, 2 - (n - 1)))
            for r, t in zip(regs, tmps):
                a(f'{sw} v{r}, v{t}')
            for r, t in zip(regs, tmps):
                a(f'{op} v{r}, v{r}, v{t}')

    def ln_stats(self, s1, s2, piv, t0, t1, sinv, seps, mout, rout):
        a = self.a
        a(f'v_mul_f32 v{s1}, s{sinv}, v{s1}')
        a(f'v_mul_f32 v{t0}, v{s1}, v{s1}')
        a(f'v_fma_f32 v{s2}, v{s2}, s{sinv}, -v{t0}')
        if piv is not None:
            a(f'v_add_f32 v{s1}, v{s1}, v{piv}')
        a(f'v_max_f32 v{s2}, 0, v{s2}')
        a(f'v_cvt_pk_bf16_f32 v{t0}, v{s1}, v{s2}')
        a(f'v_and_b32 v{t1}, 0xffff0000, v{t0}')
        a(f'v_lshlrev_b32 v{mout}, 16, v{t0}')
        a(f'v_add_f32 v{t1}, s{seps}, v{t1}')
        self.bf16r(t1, t1)
        a(f'v_sqrt_f32 v{t1}, v{t1}')
        a('s_nop 0')
        self.bf16r(t1, t1)
        a(f'v_rcp_f32 v{rout}, v{t1}')
        a('s_nop 0')

    def ld(self, R, n, sreg):
        j = n & 7
        srd = 's[36:39]' if n < 8 else 's[40:43]'
        self.a(f'buffer_load_dwordx4 v[{R+4*n}:{R+4*n+3}], v{2+j}, {srd}, s{sreg} offen {self.opt["kvf"]}')

    def chunk(self, R, issue, wait):
        a = self.a
        LA = self.opt['LA']

        def iss(n):
            if issue:
                t = n + LA
                if t < 16:
                    self.ld(R, t, 47)
                else:
                    self.ld(R, t - 16, 44)
        if 'nocompute' in self.opt['exp']:
            for n in range(16):
                if wait: a(f's_waitcnt vmcnt({LA-1})')
                iss(n)
            return
        kvf = self.opt['kvf']
        Q, AC, S = 10, 14, 22
        X, C, C2, MN, AL, E, E1, PA0, PB0, PA1, PB1 = 30, 31, 32, 33, 34, 35, 36, 37, 38, 39, 42
        M, L = 40, 41
        SU, SU2 = 43, 44
        KR = lambda j: R + 4 * j
        VR = lambda j: R + 32 + 4 * j
        for j in range(8):
            if wait:
                a(f's_waitcnt vmcnt({LA-1})')
            k = KR(j)
            a(f'v_dot2_f32_bf16 v{S+j}, v{k}, v{Q}, 0')
            for i in range(1, 4):
                a(f'v_dot2_f32_bf16 v{S+j}, v{k+i}, v{Q+i}, v{S+j}')
            iss(j)
        for p in range(4):
            a(f'v_add_f32_dpp v{S+2*p}, v{S+2*p}, v{S+2*p} row_ror:8 row_mask:0xf bank_mask:0x3')
            a(f'v_add_f32_dpp v{S+2*p}, v{S+2*p+1}, v{S+2*p+1} row_ror:8 row_mask:0xf bank_mask:0xc')
        for p in (0, 4):
            a(f'v_add_f32_dpp v{S+p}, v{S+p}, v{S+p} row_half_mirror row_mask:0xf bank_mask:0x5')
            a(f'v_add_f32_dpp v{S+p}, v{S+p+2}, v{S+p+2} row_half_mirror row_mask:0xf bank_mask:0xa')
        self.nop(2)
        a(f'v_permlane16_swap_b32 v{S}, v{S+4}')
        a(f'v_add_f32 v{S}, v{S}, v{S+4}')
        self.nop(2)
        a(f'v_add_f32_dpp v{S}, v{S}, v{S} quad_perm:[1,0,3,2] row_mask:0xf bank_mask:0xf')
        self.nop(2)
        a(f'v_add_f32_dpp v{S}, v{S}, v{S} quad_perm:[2,3,0,1] row_mask:0xf bank_mask:0xf')
        self.bf16r(X, S)
        self.nop(2)
        a(f'v_max_f32_dpp v{C}, v{X}, v{X} row_ror:8 row_mask:0xf bank_mask:0xf')
        self.nop(2)
        a(f'v_max_f32_dpp v{C}, v{C}, v{C} row_half_mirror row_mask:0xf bank_mask:0xf')
        for sw in ('v_permlane16_swap_b32', 'v_permlane32_swap_b32'):
            a(f'v_mov_b32 v{C2}, v{C}')
            self.nop(2)
            a(f'{sw} v{C}, v{C2}')
            a(f'v_max_f32 v{C}, v{C}, v{C2}')
        a(f'v_mul_f32 v{C}, s46, v{C}')
        a(f'v_max_f32 v{MN}, v{M}, v{C}')
        a(f'v_fma_f32 v{E}, v{X}, s46, -v{MN}')
        a(f'v_sub_f32 v{AL}, v{M}, v{MN}')
        a(f'v_exp_f32 v{E}, v{E}')
        a(f'v_exp_f32 v{AL}, v{AL}')
        a(f'v_mov_b32 v{M}, v{MN}')
        a(f'v_mov_b32 v{E1}, v{E}')
        for i in range(2):
            a(f'v_mul_f32 v{AC+i}, v{AC+i}, v{AL}')
        a(f'v_permlane16_swap_b32 v{E}, v{E1}')
        for i in range(2, 8):
            a(f'v_mul_f32 v{AC+i}, v{AC+i}, v{AL}')
        a(f'v_cvt_pk_bf16_f32 v{PA0}, v{E}, 0')
        a(f'v_cvt_pk_bf16_f32 v{PB0}, 0, v{E}')
        a(f'v_cvt_pk_bf16_f32 v{PA1}, v{E1}, 0')
        a(f'v_cvt_pk_bf16_f32 v{PB1}, 0, v{E1}')
        a(f'v_add_f32 v{SU}, v{E}, v{E1}')
        a(f'v_mul_f32 v{L}, v{L}, v{AL}')
        extra = [
            [f'v_add_f32_dpp v{SU}, v{SU}, v{SU} row_ror:8 row_mask:0xf bank_mask:0xf'],
            [f'v_add_f32_dpp v{SU}, v{SU}, v{SU} row_half_mirror row_mask:0xf bank_mask:0xf'],
            [f'v_mov_b32 v{SU2}, v{SU}'],
            [f'v_permlane32_swap_b32 v{SU}, v{SU2}', f'v_add_f32 v{L}, v{L}, v{SU}', f'v_add_f32 v{L}, v{L}, v{SU2}'],
        ]
        for j in range(8):
            if wait:
                a(f's_waitcnt vmcnt({LA-1})')
            v = VR(j)
            pa, pb = (PA0, PB0) if j < 4 else (PA1, PB1)
            n = 8 * (j & 1) + 4 * ((j >> 1) & 1)
            for i in range(4):
                a(f'v_dot2c_f32_bf16_dpp v{AC+2*i}, v{pa}, v{v+i} row_newbcast:{n} row_mask:0xf bank_mask:0xf')
                a(f'v_dot2c_f32_bf16_dpp v{AC+2*i+1}, v{pb}, v{v+i} row_newbcast:{n} row_mask:0xf bank_mask:0xf')
            iss(8 + j)
            if j < len(extra):
                for s in extra[j]:
                    a(s)

    def issue_set(self, R, bar=-1, done=0, cnt=16):
        for n in range(cnt):
            if n == bar:
                self.a('s_barrier')
            if self.opt['pace'] and done + n >= self.opt['pace']:
                self.a(f's_waitcnt vmcnt({self.opt["pace"]-1})')
            self.ld(R, n, 44)

    def streamer(self):
        a, lab = self.a, self.lab
        RA, RB = 48, 112
        a('v_lshlrev_b32 v2, 4, v0')
        for j in range(1, 8):
            a(f'v_add_u32 v{2+j}, {4096*j}, v2')
        a('s_lshl_b32 s7, s2, 19')
        a('s_mov_b32 s38, 0x80000')
        a('s_mov_b32 s39, 0x20000')
        a('s_mov_b32 s42, 0x80000')
        a('s_mov_b32 s43, 0x20000')
        a('s_mov_b32 s44, 0')
        a('s_memrealtime s[48:49]')
        a('s_or_b32 s47, s2, s3')
        a('v_lshlrev_b32 v11, 6, v0')
        a('s_waitcnt lgkmcnt(0)')
        a('s_cmp_lg_u32 s47, 0')
        a('s_cbranch_scc1 L_sn0')
        a('s_and_b32 s49, s48, 0x3fff')
        a('s_lshl_b32 s48, s48, 2')
        a('s_and_b32 s48, s48, 0xbfff0000')
        a('s_or_b32 s48, s48, s49')
        a('s_or_b32 s48, s48, 0x8000')
        a('v_mov_b32 v10, s48')
        a('s_mov_b64 exec, 15')
        a('global_store_dword v11, v10, s[30:31] sc1')
        a('s_mov_b64 exec, -1')
        lab('L_sn0')
        a('s_add_u32 s36, s10, s7')
        a('s_addc_u32 s37, s11, 0')
        a('s_add_u32 s40, s12, s7')
        a('s_addc_u32 s41, s13, 0')
        RC = 176
        setC = self.opt['setC']
        self.issue_set(RB, self.opt['pre'] if self.opt['bar0'] else -1)
        off = 0x8000
        done = 16
        if setC:
            a(f's_mov_b32 s44, {off}')
            self.issue_set(RC, -1, done)
            off += 0x8000
            done += 16
        a(f's_mov_b32 s44, {off}')
        a('s_load_dword s6, s[30:31], 192')
        self.issue_set(RA, -1, done, self.opt['LA'])
        a('s_mov_b32 s47, s44')
        a(f's_mov_b32 s44, {off + 0x8000}')
        a('s_setprio 2')
        for i in range(8):
            a(f'v_mov_b32 v{14+i}, 0')
        a('v_mov_b32 v40, 0xff800000')
        a('v_mov_b32 v41, 0')
        a(f's_mov_b32 s46, {f2u(LOG2E/16.0):#x}')
        niter = 14 if setC else 15
        a(f's_mov_b32 s45, {niter}')
        a('v_and_b32 v45, 31, v0')
        a('v_lshlrev_b32 v46, 4, v45')
        a('v_mov_b32 v30, 0')
        self.stamp(80)
        a(f's_mov_b32 s48, {SPIN}')
        a('s_waitcnt lgkmcnt(0)')
        lab('L_snw')
        a('s_cmp_lg_u32 s6, 0')
        a('s_cbranch_scc1 L_sqw')
        a('s_sub_u32 s48, s48, 1')
        a('s_cbranch_scc1 L_exit')
        a('global_load_dword v31, v30, s[30:31] sc1')
        a('s_waitcnt vmcnt(0)')
        a('v_readfirstlane_b32 s6, v31')
        a('s_nop 0')
        a('s_branch L_snw')
        lab('L_sqs')
        a('s_sleep 1')
        lab('L_sqw')
        a(f'ds_read_b128 v[32:35], v30 offset:{L_FL2}')
        a(f'ds_read_b128 v[10:13], v46 offset:{L_QL}')
        a('s_sub_u32 s48, s48, 1')
        a('s_cbranch_scc1 L_exit')
        a('s_waitcnt lgkmcnt(0)')
        a('v_xor_b32 v32, s6, v32')
        a('v_bitop3_b32 v32, v33, s6, v32 bitop3:0xbe')
        a('v_bitop3_b32 v32, v34, s6, v32 bitop3:0xbe')
        a('v_bitop3_b32 v32, v35, s6, v32 bitop3:0xbe')
        a('v_cmp_eq_u32 vcc, 0, v32')
        a('v_mov_b32 v47, s6')
        a('s_cbranch_vccz L_sqs')
        self.stamp(82)
        lab('L_sloop')
        self.chunk(RA, True, True)
        a('s_mov_b32 s47, s44')
        a('s_add_u32 s44, s44, 0x8000')
        a(f's_cmp_eq_u32 s45, {niter}')
        a('s_cbranch_scc1 L_sB')
        if setC:
            a(f's_cmp_eq_u32 s45, {niter-1}')
            a('s_cbranch_scc1 L_sC')
        lab('L_sback')
        a('s_sub_u32 s45, s45, 1')
        a('s_cmp_lg_u32 s45, 0')
        a('s_cbranch_scc1 L_sloop')
        self.stamp(84)
        AC = 14
        a('v_lshlrev_b32 v46, 5, v45')
        a('v_bfe_u32 v30, v0, 5, 1')
        a('v_lshl_add_u32 v46, v30, 4, v46')
        a('s_lshl_b32 s7, s3, 10')
        a('v_add_u32 v46, s7, v46')
        for i in range(4):
            a(f'v_permlane32_swap_b32 v{AC+i}, v{AC+4+i}')
        for i in range(4):
            a(f'v_add_f32 v{AC+i}, v{AC+i}, v{AC+4+i}')
        a('s_lshl_b32 s7, s3, 3')
        a('v_mov_b32 v30, s7')
        a(f'ds_write_b128 v46, v[{AC}:{AC+3}] offset:{L_OW}')
        a(f'ds_write_b64 v30, v[40:41] offset:{L_HDR}')
        a('v_mov_b32 v31, 0')
        a('v_mov_b32 v32, 1')
        a('s_mov_b64 exec, 1')
        a('s_waitcnt lgkmcnt(0)')
        a(f'ds_add_rtn_u32 v33, v31, v32 offset:{L_CNT}')
        a('s_mov_b64 exec, -1')
        a('v_and_b32 v34, 63, v0')
        a('v_mul_u32_u24 v35, 24, v34')
        a('s_waitcnt lgkmcnt(0)')
        a('v_readfirstlane_b32 s7, v33')
        a('s_nop 0')
        a('s_cmp_lg_u32 s7, 3')
        if self.opt['stamps']:
            a('s_cbranch_scc1 L_sexit')
        else:
            a('s_cbranch_scc1 L_exit')
        H = 180
        a(f'ds_read_b128 v[{H}:{H+3}], v31 offset:{L_HDR}')
        a(f'ds_read_b128 v[{H+4}:{H+7}], v31 offset:{L_HDR+16}')
        D = 188
        for w in range(4):
            for e in range(3):
                a(f'ds_read_b64 v[{D+6*w+2*e}:{D+6*w+2*e+1}], v35 offset:{L_OW+1024*w+8*e}')
        a('s_and_b32 s48, s4, 15')
        a('s_lshl_b32 s48, s48, 4')
        a('s_lshr_b32 s49, s4, 4')
        a('s_lshl2_add_u32 s48, s49, s48')
        a('s_and_b32 s49, s2, 3')
        a('s_add_u32 s48, s48, s49')
        a('s_lshl_b32 s48, s48, 10')
        a(f's_add_u32 s48, s48, {OG}')
        a('v_lshl_add_u32 v36, v34, 4, s48')
        a('s_waitcnt lgkmcnt(12)')
        a(f'v_max3_f32 v30, v{H}, v{H+2}, v{H+4}')
        a(f'v_max_f32 v30, v30, v{H+6}')
        for w in range(4):
            a(f'v_sub_f32 v{H+2*w}, v{H+2*w}, v30')
        for w in range(4):
            a(f'v_exp_f32 v{H+2*w}, v{H+2*w}')
        a('s_nop 0')
        a(f'v_mul_f32 v31, v{H}, v{H+1}')
        for w in range(1, 4):
            a(f'v_fmac_f32 v31, v{H+2*w}, v{H+2*w+1}')
        a('v_rcp_f32 v32, v31')
        a('v_log_f32 v33, v31')
        a('v_cmp_eq_u32 s[50:51], 42, v34')
        a('v_cmp_gt_u32 vcc, 43, v34')
        for w in range(4):
            a(f'v_mul_f32 v{H+2*w}, v{H+2*w}, v32')
        a('v_add_f32 v33, v33, v30')
        a('s_waitcnt lgkmcnt(0)')
        for e in range(6):
            a(f'v_mul_f32 v{22+e}, v{H}, v{D+e}')
        for w in range(1, 4):
            for e in range(6):
                a(f'v_fmac_f32 v{22+e}, v{H+2*w}, v{D+6*w+e}')
        a('v_cvt_pk_bf16_f32 v44, v22, v23')
        a('v_cvt_pk_bf16_f32 v45, v24, v25')
        a('v_cvt_pk_bf16_f32 v46, v26, v27')
        a('v_cndmask_b32 v44, 0, v44, vcc')
        a('v_cndmask_b32 v45, 0, v45, vcc')
        a('v_cndmask_b32 v46, 0, v46, vcc')
        a('v_cndmask_b32 v46, v46, v33, s[50:51]')
        a('s_mov_b32 exec_lo, -1')
        a('s_mov_b32 exec_hi, 0xfff')
        a('global_store_dwordx4 v36, v[44:47], s[32:33] sc1')
        self.stamp(86)
        if self.opt['stamps']:
            self.flush_stamps([(3, 86)])
            lab('L_sexit')
            a('s_cmp_lg_u32 s3, 0')
            a('s_cbranch_scc1 L_exit')
            a('s_getreg_b32 s88, hwreg(HW_REG_XCC_ID)')
            a('s_and_b32 s88, s88, 15')
            a('s_mov_b32 s89, 0')
            self.flush_stamps([(0, 78), (1, 80), (2, 82), (8, 84), (6, 88)])
        a('s_endpgm')
        lab('L_sB')
        self.chunk(RB, False, False)
        a('s_branch L_sback')
        if setC:
            lab('L_sC')
            self.chunk(RC, False, False)
            a('s_branch L_sback')

    W1, B1, W2P, C1P, ET, EA = 64, 92, 120, 134, 136, 152

    def eval_sub(self):
        a = self.a
        W1, B1, W2P, C1P, ET, EA = self.W1, self.B1, self.W2P, self.C1P, self.ET, self.EA
        self.lab('L_eval')
        a(f'v_mov_b32 v{EA}, 0')
        for base in range(0, 14, 2):
            prs = [(base, ET), (base + 1, ET + 6)]
            for p, t in prs:
                a(f'v_pk_mul_f32 v[{t}:{t+1}], v[{W1+2*p}:{W1+2*p+1}], s[70:71]')
            for p, t in prs:
                a(f'v_cvt_pk_bf16_f32 v{t+4}, v{t}, v{t+1}')
            for p, t in prs:
                self.unpack(t, t + 1, t + 4)
            for p, t in prs:
                a(f'v_pk_add_f32 v[{t}:{t+1}], v[{t}:{t+1}], v[{B1+2*p}:{B1+2*p+1}]')
            for p, t in prs:
                a(f'v_cvt_pk_bf16_f32 v{t+4}, v{t}, v{t+1}')
            for p, t in prs:
                self.unpack(t, t + 1, t + 4)
            for p, t in prs:
                a(f'v_pk_mul_f32 v[{t+2}:{t+3}], v[{t}:{t+1}], v[{t}:{t+1}]')
            for p, t in prs:
                a(f'v_pk_fma_f32 v[{t+2}:{t+3}], v[{t+2}:{t+3}], s[72:73], v[{C1P}:{C1P+1}]')
            for p, t in prs:
                a(f'v_pk_mul_f32 v[{t+2}:{t+3}], v[{t+2}:{t+3}], v[{t}:{t+1}]')
            for p, t in prs:
                a(f'v_exp_f32 v{t+2}, v{t+2}')
                a(f'v_exp_f32 v{t+3}, v{t+3}')
            a('s_nop 0')
            for p, t in prs:
                a(f'v_add_f32 v{t+2}, 1.0, v{t+2}')
                a(f'v_add_f32 v{t+3}, 1.0, v{t+3}')
            for p, t in prs:
                a(f'v_rcp_f32 v{t+2}, v{t+2}')
                a(f'v_rcp_f32 v{t+3}, v{t+3}')
            a('s_nop 0')
            for p, t in prs:
                a(f'v_pk_mul_f32 v[{t}:{t+1}], v[{t}:{t+1}], v[{t+2}:{t+3}]')
            for p, t in prs:
                a(f'v_cvt_pk_bf16_f32 v{t+4}, v{t}, v{t+1}')
            for p, t in prs:
                a(f'v_dot2c_f32_bf16 v{EA}, v{t+4}, v{W2P+p}')
        self.nop(2)
        self.ladder64([EA], [ET])
        self.bf16r(EA, EA)
        a(f'v_add_f32 v{EA}, s74, v{EA}')
        a(f'v_cvt_pk_bf16_f32 v153, v{EA}, 0')
        a('s_setpc_b64 s[76:77]')

    def helper(self):
        a, lab = self.a, self.lab
        opt = self.opt
        self.stamp(90)
        a('s_setprio 3')
        a('s_sub_u32 s34, s3, 4')
        a('v_and_b32 v1, 63, v0')
        a('v_lshrrev_b32 v2, 4, v1')
        a('v_and_b32 v3, 15, v1')
        a('v_mul_u32_u24 v4, 896, v2')
        a('v_lshl_add_u32 v4, v3, 4, v4')
        a('v_cmp_gt_u32 s[60:61], 14, v3')
        a('v_bfrev_b32 v7, 1')
        a('v_lshrrev_b32 v5, 2, v1')
        a('v_and_b32 v6, 3, v1')
        a('v_cndmask_b32 v4, v7, v4, s[60:61]')
        a('v_cmp_gt_u32 vcc, 56, v1')
        a('v_lshlrev_b32 v56, 16, v5')
        a('v_lshl_add_u32 v56, v6, 3, v56')
        a('v_cndmask_b32 v56, v7, v56, vcc')
        for r in range(4):
            a(f's_add_u32 s{40+r}, s34, {r}')
            a(f's_and_b32 s{40+r}, s{40+r}, 3')
            a(f's_mul_i32 s{40+r}, s{40+r}, 224')
        a(f's_mul_i32 s48, s34, {112*8192}')
        a('s_lshl_b32 s49, s5, 5')
        a('s_add_u32 s48, s48, s49')
        for it in range(1, 8):
            a(f's_add_u32 s{48+it}, s48, {8192*it}')
        a('s_mov_b32 s38, 3584')
        a('s_mov_b32 s39, 0x20000')
        a('s_mov_b32 s46, 3670016')
        a('s_mov_b32 s47, 0x20000')
        a('s_waitcnt lgkmcnt(0)')
        self.stamp(92)
        a('s_mov_b32 s36, s8')
        a('s_mov_b32 s37, s9')
        a('s_mov_b32 s44, s14')
        a('s_mov_b32 s45, s15')
        for r in range(4):
            a(f'buffer_load_dwordx4 v[{8+4*r}:{11+4*r}], v4, s[36:39], s{40+r} offen')
        WR = 60
        for it in range(8):
            if 'nowq' in opt['exp']:
                a(f'buffer_load_dwordx2 v[{WR+2*it}:{WR+2*it+1}], v7, s[44:47], s{48+it} offen')
                continue
            a(f'buffer_load_dwordx2 v[{WR+2*it}:{WR+2*it+1}], v56, s[44:47], s{48+it} offen {opt["wqf"]}')
        self.stamp(94)
        if opt['bar0']:
            a('s_barrier')
        a(f's_mov_b32 s62, {f2u(1.0/448):#x}')
        a(f's_mov_b32 s63, {f2u(1e-5):#x}')
        a('s_mov_b32 s64, 0x05040100')
        a('s_mov_b32 s65, 0x07060302')
        a('s_lshl_b32 s18, s34, 10')
        a('v_lshl_add_u32 v57, v1, 4, s18')
        a('v_lshl_add_u32 v58, v5, 4, s18')
        self.vstamp(226)
        if self.opt['stamps']:
            for i in range(6):
                a(f'v_mov_b32 v{220+i}, s{90+i}')
        a('s_waitcnt vmcnt(8)')
        self.vstamp(228)
        XF = 24
        for i in range(16):
            self.unpack(XF + 2 * i, XF + 2 * i + 1, 8 + i)
        PV, S1, S2, DT = 76, 78, 80, 82
        a('s_nop 0')
        a(f'v_mov_b32_dpp v{PV}, v{XF} row_newbcast:0 row_mask:0xf bank_mask:0xf')
        for i in range(16):
            d = DT + 2 * (i & 1)
            a(f'v_pk_add_f32 v[{d}:{d+1}], v[{XF+2*i}:{XF+2*i+1}], v[{PV}:{PV+1}] op_sel_hi:[1,0] neg_lo:[0,1] neg_hi:[0,1]')
            if i == 0:
                a(f'v_pk_mul_f32 v[{S2}:{S2+1}], v[{d}:{d+1}], v[{d}:{d+1}]')
                a(f'v_mov_b32 v{S1}, v{d}')
                a(f'v_mov_b32 v{S1+1}, v{d+1}')
            else:
                a(f'v_pk_fma_f32 v[{S2}:{S2+1}], v[{d}:{d+1}], v[{d}:{d+1}], v[{S2}:{S2+1}]')
                a(f'v_pk_add_f32 v[{S1}:{S1+1}], v[{S1}:{S1+1}], v[{d}:{d+1}]')
        a(f'v_add_f32 v{S1}, v{S1}, v{S1+1}')
        a(f'v_add_f32 v{S2}, v{S2}, v{S2+1}')
        a(f'v_cndmask_b32 v{S1}, 0, v{S1}, s[60:61]')
        a(f'v_cndmask_b32 v{S2}, 0, v{S2}, s[60:61]')
        for ror in (8, 4, 2, 1):
            a('s_nop 0')
            a(f'v_add_f32_dpp v{S1}, v{S1}, v{S1} row_ror:{ror} row_mask:0xf bank_mask:0xf')
            a(f'v_add_f32_dpp v{S2}, v{S2}, v{S2} row_ror:{ror} row_mask:0xf bank_mask:0xf')
        MO, RO = 86, 88
        self.ln_stats(S1, S2, PV, 84, 85, 62, 63, MO, RO)
        for i in range(4):
            a(f'v_pk_add_f32 v[{XF+2*i}:{XF+2*i+1}], v[{XF+2*i}:{XF+2*i+1}], v[{MO}:{MO+1}] op_sel_hi:[1,0] neg_lo:[0,1] neg_hi:[0,1]')
        for i in range(4):
            a(f'v_cvt_pk_bf16_f32 v{8+i}, v{XF+2*i}, v{XF+2*i+1}')
        for i in range(4):
            self.unpack(XF + 2 * i, XF + 2 * i + 1, 8 + i)
        for i in range(4):
            a(f'v_pk_mul_f32 v[{XF+2*i}:{XF+2*i+1}], v[{XF+2*i}:{XF+2*i+1}], v[{RO}:{RO+1}] op_sel_hi:[1,0]')
        for i in range(4):
            a(f'v_cvt_pk_bf16_f32 v{8+i}, v{XF+2*i}, v{XF+2*i+1}')
        a(f'ds_write_b128 v57, v[8:11] offset:{L_XN}')
        a('s_waitcnt lgkmcnt(0)')
        a('s_load_dword s6, s[30:31], 0')
        XN = 8
        for b in range(4):
            a(f'ds_read_b128 v[{XN+4*b}:{XN+4*b+3}], v58 offset:{L_XN+256*b}')
        self.vstamp(230)
        a('s_waitcnt vmcnt(0)')
        self.vstamp(232)
        PP = 24
        for p in range(4):
            for dw in range(2):
                a(f'v_perm_b32 v{PP+4*p+2*dw}, v{WR+4*p+2+dw}, v{WR+4*p+dw}, s64')
                a(f'v_perm_b32 v{PP+4*p+2*dw+1}, v{WR+4*p+2+dw}, v{WR+4*p+dw}, s65')
        a('s_waitcnt lgkmcnt(0)')
        QA = 40
        for p in range(4):
            for b in range(4):
                for e in range(4):
                    src2 = '0' if p == 0 else f'v{QA+4*b+e}'
                    a(f'v_dot2_f32_bf16 v{QA+4*b+e}, v{PP+4*p+e}, v{XN+4*b+p}, {src2}')
        for v in range(0, 16, 2):
            a(f'v_add_f32_dpp v{QA+v}, v{QA+v}, v{QA+v} row_shl:4 row_mask:0xf bank_mask:0x5')
            a(f'v_add_f32_dpp v{QA+v}, v{QA+v+1}, v{QA+v+1} row_shr:4 row_mask:0xf bank_mask:0xa')
        for v in range(0, 16, 4):
            a(f'v_add_f32_dpp v{QA+v}, v{QA+v}, v{QA+v} row_ror:8 row_mask:0xf bank_mask:0x3')
            a(f'v_add_f32_dpp v{QA+v}, v{QA+v+2}, v{QA+v+2} row_ror:8 row_mask:0xf bank_mask:0xc')
        a('s_lshl_b32 s18, s34, 8')
        a('v_lshl_add_u32 v57, v1, 2, s18')
        a(f'v_permlane16_swap_b32 v{QA}, v{QA+4}')
        a(f'v_permlane16_swap_b32 v{QA+8}, v{QA+12}')
        a(f'v_add_f32 v{QA}, v{QA}, v{QA+4}')
        a(f'v_add_f32 v{QA+8}, v{QA+8}, v{QA+12}')
        self.nop(2)
        a(f'v_permlane32_swap_b32 v{QA}, v{QA+8}')
        a(f'v_add_f32 v{QA}, v{QA}, v{QA+8}')
        a(f'ds_write_b32 v57, v{QA} offset:{L_QP}')
        self.vstamp(234)
        for sec in (1, 2, 3):
            a('s_waitcnt lgkmcnt(0)')
            a('s_cmp_lg_u32 s6, 0')
            a('s_cbranch_scc1 L_hnok')
            a('s_sleep 4')
            a(f's_load_dword s6, s[30:31], {64*sec}')
        a(f's_mov_b32 s19, {SPIN}')
        a('v_mov_b32 v58, 0')
        a('s_waitcnt lgkmcnt(0)')
        lab('L_hnw')
        a('s_cmp_lg_u32 s6, 0')
        a('s_cbranch_scc1 L_hnok')
        a('s_sub_u32 s19, s19, 1')
        a('s_cbranch_scc1 L_exit')
        a('global_load_dword v59, v58, s[30:31] sc1')
        a('s_waitcnt vmcnt(0)')
        a('v_readfirstlane_b32 s6, v59')
        a('s_nop 0')
        a('s_branch L_hnw')
        lab('L_hnok')
        self.vstamp(236)
        a('s_lshl_b32 s18, s34, 2')
        a('v_mov_b32 v58, s18')
        a('v_mov_b32 v59, s6')
        a(f'ds_write_b32 v58, v59 offset:{L_FLG}')
        a('s_and_b32 s35, s4, 15')
        a('s_lshl_b32 s35, s35, 2')
        a('s_lshr_b32 s7, s4, 4')
        a('s_add_u32 s35, s35, s7')
        a('s_lshl_b32 s35, s35, 10')
        a('s_lshl_b32 s7, s34, 8')
        a('s_add_u32 s35, s35, s7')
        a('s_add_u32 s100, s32, s35')
        a('s_addc_u32 s101, s33, 0')
        a('s_cmp_lg_u32 s34, 0')
        a('s_cbranch_scc1 L_hq')
        a('v_mov_b32 v58, 0')
        a(f'ds_write_b32 v58, v58 offset:{L_CNT}')
        a('v_lshlrev_b32 v57, 2, v1')
        a('s_lshr_b32 s18, s5, 4')
        a('s_lshl_b32 s18, s18, 12')
        a('s_and_b32 s19, s5, 15')
        a('s_lshl_b32 s19, s19, 6')
        a('s_add_u32 s18, s18, s19')
        a('v_lshrrev_b32 v8, 4, v1')
        a('v_lshlrev_b32 v8, 10, v8')
        a('v_bfe_u32 v9, v1, 1, 1')
        a('v_lshl_add_u32 v8, v9, 4, v8')
        a('v_bfe_u32 v9, v1, 3, 1')
        a('v_lshl_add_u32 v8, v9, 5, v8')
        a('v_add_u32 v8, s18, v8')
        a(f's_mov_b32 s19, {SPIN}')
        lab('L_hfw')
        a(f'ds_read_b128 v[12:15], v58 offset:{L_FLG}')
        a('s_sub_u32 s19, s19, 1')
        a('s_cbranch_scc1 L_exit')
        a('s_waitcnt lgkmcnt(0)')
        a('v_xor_b32 v12, s6, v12')
        a('v_bitop3_b32 v12, v13, s6, v12 bitop3:0xbe')
        a('v_bitop3_b32 v12, v14, s6, v12 bitop3:0xbe')
        a('v_bitop3_b32 v12, v15, s6, v12 bitop3:0xbe')
        a('v_cmp_eq_u32 vcc, 0, v12')
        a('s_cbranch_vccz L_hfw')
        self.vstamp(238)
        a(f'ds_read2st64_b32 v[12:13], v57 offset0:{L_QP//256} offset1:{L_QP//256+1}')
        a(f'ds_read2st64_b32 v[14:15], v57 offset0:{L_QP//256+2} offset1:{L_QP//256+3}')
        a('v_mov_b32 v18, s6')
        a('v_mov_b32 v19, s6')
        a('s_waitcnt lgkmcnt(0)')
        a('v_add_f32 v12, v12, v13')
        a('v_add_f32 v14, v14, v15')
        a('v_add_f32 v12, v12, v14')
        self.nop(2)
        a('v_mov_b32_dpp v13, v12 row_shl:4 row_mask:0xf bank_mask:0xf')
        a('v_cvt_pk_bf16_f32 v16, v12, v13')
        self.nop(2)
        a('v_mov_b32_dpp v17, v16 quad_perm:[1,0,3,2] row_mask:0xf bank_mask:0xf')
        a('s_mov_b32 exec_lo, 0x05050505')
        a('s_mov_b32 exec_hi, 0x05050505')
        a('v_and_b32 v9, 4, v1')
        a('global_store_dwordx4 v8, v[16:19], s[32:33] sc1')
        a('s_mov_b64 exec, -1')
        self.vstamp(240)
        lab('L_hq')
        a(f's_mov_b32 s19, {SPIN}')
        if 'nopoll' in opt['exp']:
            a('s_sleep 60')
            a('s_branch L_hqok')
        lab('L_hqw')
        for p in range(4):
            a(f's_load_dwordx16 s[{36+16*p}:{51+16*p}], s[100:101], {64*p} glc')
        a('s_sub_u32 s19, s19, 1')
        a('s_cbranch_scc1 L_exit')
        a('s_waitcnt lgkmcnt(0)')
        tags = [36 + 16 * p + 4 * g + 2 for p in range(4) for g in range(4)]
        a(f's_xor_b32 s7, s{tags[0]}, s6')
        for t in tags[1:]:
            a(f's_xor_b32 s18, s{t}, s6')
            a('s_or_b32 s7, s7, s18')
        a('s_cbranch_scc0 L_hqok')
        a('s_sleep 2')
        a('s_branch L_hqw')
        lab('L_hqok')
        order = {0: 0, 1: 2, 4: 4, 5: 6, 8: 1, 9: 3, 12: 5, 13: 7}
        for p in range(4):
            for k, pr in order.items():
                a(f'v_writelane_b32 v8, s{36+16*p+k}, {8*p+pr}')
        a('s_lshl_b32 s18, s34, 7')
        a('v_lshl_add_u32 v9, v1, 2, s18')
        a('s_mov_b32 exec_hi, 0')
        a(f'ds_write_b32 v9, v8 offset:{L_QL}')
        a('s_mov_b64 exec, -1')
        a('s_load_dword s74, s[26:27], 0')
        a('s_lshl_b32 s18, s34, 2')
        a('v_mov_b32 v9, s18')
        a('v_mov_b32 v8, s6')
        a('s_waitcnt lgkmcnt(0)')
        a(f'ds_write_b32 v9, v8 offset:{L_FL2}')
        self.vstamp(242)
        a('s_setprio 0')
        a('s_cmp_eq_u32 s34, 0')
        a('s_cbranch_scc1 L_work')
        a('s_cmp_ge_u32 s34, 2')
        a('s_cbranch_scc1 L_hw')
        a('s_cmp_ge_u32 s2, 4')
        a('s_cbranch_scc1 L_exit')
        a('s_lshl_b32 s18, s2, 11')
        a(f's_add_u32 s18, s18, {ACC}')
        a('v_lshl_add_u32 v4, v1, 4, s18')
        for i in range(4):
            a(f'v_mov_b32 v{8+i}, 0')
        a('global_store_dwordx4 v4, v[8:11], s[32:33] sc1')
        a('global_store_dwordx4 v4, v[8:11], s[32:33] offset:1024 sc1')
        a('s_lshl_b32 s18, s2, 2')
        a(f's_add_u32 s18, s18, {RDY}')
        a('v_mov_b32 v12, s18')
        a('v_mov_b32 v13, s6')
        a('s_waitcnt vmcnt(0)')
        a('s_mov_b64 exec, 1')
        a('global_store_dword v12, v13, s[32:33] sc1')
        a('s_mov_b64 exec, -1')
        lab('L_hw')
        a('v_lshlrev_b32 v2, 4, v1')
        a('v_lshlrev_b32 v3, 3, v1')
        W1, B1, C1P, W2P = self.W1, self.B1, self.C1P, self.W2P
        for base, sp in ((160, 20), (176, 22), (W2P, 24)):
            for r in range(3):
                a(f'global_load_dwordx4 v[{base+4*r}:{base+4*r+3}], v2, s[{sp}:{sp+1}] offset:{1024*r}')
            a(f'global_load_dwordx2 v[{base+12}:{base+13}], v3, s[{sp}:{sp+1}] offset:3072')
        k2 = -2.0 * math.sqrt(2.0 / math.pi) * LOG2E
        a(f'v_mov_b32 v{C1P}, {f2u(k2):#x}')
        a(f'v_mov_b32 v{C1P+1}, {f2u(k2):#x}')
        a(f's_mov_b32 s72, {f2u(k2*0.044715):#x}')
        a('s_mov_b32 s73, s72')
        a('s_lshl_b32 s74, s74, 16')
        a('s_waitcnt vmcnt(0)')
        for i in range(14):
            self.unpack(W1 + 2 * i, W1 + 2 * i + 1, 160 + i)
            self.unpack(B1 + 2 * i, B1 + 2 * i + 1, 176 + i)
        a('s_cmp_eq_u32 s34, 1')
        a('s_cbranch_scc1 L_cons')
        a('s_lshl_b32 s40, s2, 2')
        a('s_lshl1_add_u32 s40, s34, s40')
        a('s_sub_u32 s40, s40, 4')
        a('s_add_u32 s50, s40, 2')
        lab('L_tb')
        a('s_mul_i32 s41, s40, 6')
        a(f's_cmp_ge_u32 s41, {NTH}')
        a(f's_mov_b32 s43, {E0 << 7}')
        a(f's_cselect_b32 s42, {0x8000 - NTH + (E0 << 7)}, s43')
        a('s_add_u32 s41, s41, s42')
        for n in range(6):
            a(f's_add_u32 s70, s41, {n}')
            a('s_lshl_b32 s70, s70, 16')
            a('s_mov_b32 s71, s70')
            if 'noeval' not in self.opt['exp']:
                a('s_call_b64 s[76:77], L_eval')
            a('s_nop 0')
            a(f'v_readfirstlane_b32 s{44+n}, v153')
        a('s_nop 0')
        for n in range(3):
            a(f's_pack_ll_b32_b16 s{44+n}, s{44+2*n}, s{45+2*n}')
        a('s_lshl_b32 s41, s40, 4')
        a(f's_add_u32 s41, s41, {TG}')
        a('v_mov_b32 v8, s44')
        a('v_mov_b32 v9, s45')
        a('v_mov_b32 v10, s46')
        a('v_mov_b32 v11, s6')
        a('v_mov_b32 v12, s41')
        a('s_mov_b64 exec, 1')
        a('global_store_dwordx4 v12, v[8:11], s[32:33] sc1')
        a('s_mov_b64 exec, -1')
        a('s_add_u32 s40, s40, 1')
        a('s_cmp_lt_u32 s40, s50')
        a('s_cbranch_scc1 L_tb')
        if self.opt['stamps']:
            a('s_cmp_lg_u32 s34, 2')
            a('s_cbranch_scc1 L_exit')
            self.stamp(24)
            self.flush_stamps([(15, 24)])
        a('s_endpgm')
        lab('L_work')
        self.worker()
        self.consumer()
        self.eval_sub()

    def wait_done(self, name):
        a, lab = self.a, self.lab
        a('v_mov_b32 v6, 0')
        a(f's_mov_b32 s19, {SPIN}')
        lab(name)
        a('s_sleep 2')
        a(f'ds_read_b32 v7, v6 offset:{L_CNT}')
        a('s_sub_u32 s19, s19, 1')
        a('s_cbranch_scc1 L_exit')
        a('s_waitcnt lgkmcnt(0)')
        a('v_cmp_eq_u32 vcc, 0, v7')
        a(f's_cbranch_vccnz {name}')

    def worker(self):
        a, lab = self.a, self.lab
        opt = self.opt
        a('s_lshr_b32 s40, s5, 4')
        a('s_and_b32 s41, s5, 15')
        a('s_mul_i32 s42, s40, 229376')
        a('s_mul_i32 s43, s41, 56')
        a('s_add_u32 s42, s42, s43')
        a('s_add_u32 s36, s16, s42')
        a('s_addc_u32 s37, s17, 0')
        a('s_sub_u32 s38, 229376, s43')
        a('s_mov_b32 s39, 0x20000')
        a('v_mul_u32_u24 v2, 37, v1')
        a('v_lshrrev_b32 v2, 8, v2')
        a('v_mul_u32_u24 v3, 7, v2')
        a('v_sub_u32 v3, v1, v3')
        a('v_mul_u32_u24 v2, 896, v2')
        a('v_lshl_add_u32 v2, v3, 3, v2')
        a('v_lshlrev_b32 v3, 3, v1')
        a('s_mov_b32 exec_hi, 0x7fffffff')
        a('s_mov_b32 s44, 0')
        for it in range(30 if 'nowo' not in opt['exp'] else 0):
            a(f'buffer_load_dwordx2 v[{160+2*it}:{161+2*it}], v2, s[36:39], s44 offen {opt["wof"]}')
            a('s_add_u32 s44, s44, 8064')
        for it in range(30 if 'nowo' not in opt['exp'] else 0):
            a(f's_waitcnt vmcnt({29-it})')
            a(f'ds_write_b64 v3, v[{160+2*it}:{161+2*it}] offset:{L_WOS+504*it}')
        a('s_mov_b64 exec, -1')
        BF = 64
        for i in range(88):
            a(f'v_mov_b32 v{BF+i}, 0')
        a('v_lshrrev_b32 v5, 4, v1')
        a('v_and_b32 v6, 15, v1')
        a('v_mul_u32_u24 v2, 336, v5')
        a('v_lshl_add_u32 v2, v6, 1, v2')
        a('s_mov_b32 exec_lo, 0x3fff3fff')
        a('s_mov_b32 exec_hi, 0x3fff3fff')
        a('s_waitcnt lgkmcnt(0)')
        for kk in range(11 if 'nowo' not in opt['exp'] else 0):
            for t in range(2):
                for e in range(6):
                    a(f'ds_read_u16 v{8+6*t+e}, v2 offset:{L_WOS+1344*kk+56*e+28*t}')
            a('s_waitcnt lgkmcnt(0)')
            for t in range(2):
                for uu in range(3):
                    a(f'v_lshl_or_b32 v{BF+8*kk+4*t+uu}, v{8+6*t+2*uu+1}, 16, v{8+6*t+2*uu}')
        a('s_mov_b64 exec, -1')
        a('s_lshl_b32 s42, s40, 14')
        a(f's_add_u32 s42, s42, {OG}')
        a('v_lshlrev_b32 v2, 10, v6')
        a('v_lshl_add_u32 v2, v5, 4, v2')
        a('v_add_u32 v2, s42, v2')
        a('s_lshl_b32 s42, s41, 7')
        a(f's_add_u32 s42, s42, {ACC}')
        a('v_lshlrev_b32 v3, 11, v5')
        a('v_lshl_add_u32 v3, v6, 2, v3')
        a('v_add_u32 v3, s42, v3')
        a('v_cmp_eq_u32 vcc, 15, v6')
        a('v_lshlrev_b32 v8, 4, v5')
        a('v_add_u32 v8, 128, v8')
        a('v_cndmask_b32 v4, 0, 1.0, vcc')
        a(f'v_mov_b32 v9, {RDY}')
        a('v_lshl_add_u32 v9, v5, 2, v9')
        a(f's_mov_b32 s19, {SPIN}')
        lab('L_wr')
        a('global_load_dword v10, v9, s[32:33] sc1')
        a('s_sub_u32 s19, s19, 1')
        a('s_cbranch_scc1 L_exit')
        a('s_waitcnt vmcnt(0)')
        a('v_cmp_ne_u32 vcc, s6, v10')
        a('s_cbranch_vccnz L_wr')
        self.stamp(24)
        self.wait_done('L_wd')
        a('s_setprio 3')
        AF = 160
        a(f's_mov_b32 s19, {SPIN}')
        lab('L_wp')
        for kk in range(11):
            a(f'global_load_dwordx4 v[{AF+4*kk}:{AF+4*kk+3}], v2, s[32:33] offset:{64*kk} sc1')
        a('s_sub_u32 s19, s19, 1')
        a('s_cbranch_scc1 L_exit')
        for kk in range(11):
            a(f's_waitcnt vmcnt({10-kk})')
            if kk == 0:
                a(f'v_xor_b32 v9, s6, v{AF+3}')
            else:
                a(f'v_bitop3_b32 v9, v{AF+4*kk+3}, s6, v9 bitop3:0xbe')
        a('v_cmp_ne_u32 vcc, 0, v9')
        a('s_and_b64 exec, exec, vcc')
        a('s_cbranch_execnz L_wp')
        a('s_mov_b64 exec, -1')
        self.stamp(26)
        D0, D1 = 204, 208
        LS = AF + 42
        def mf(kk):
            for t, d in ((0, D0), (1, D1)):
                c = '0' if kk == 0 else f'v[{d}:{d+3}]'
                a(f'v_mfma_f32_16x16x32_bf16 v[{d}:{d+3}], v[{AF+4*kk}:{AF+4*kk+3}], v[{BF+8*kk+4*t}:{BF+8*kk+4*t+3}], {c}')
        a(f'v_mov_b32 v10, v{LS}')
        a('v_cmp_eq_u32 vcc, 2, v5')
        mf(0)
        a(f'v_cndmask_b32 v{LS}, v{LS}, 0, vcc')
        a('v_max_f32_dpp v11, v10, v10 quad_perm:[1,0,3,2] row_mask:0xf bank_mask:0xf')
        mf(1)
        a('v_max_f32_dpp v11, v11, v11 quad_perm:[2,3,0,1] row_mask:0xf bank_mask:0xf')
        a('v_sub_f32 v10, v10, v11')
        mf(2)
        a('v_exp_f32 v10, v10')
        mf(3)
        a('v_add_f32_dpp v11, v10, v10 quad_perm:[1,0,3,2] row_mask:0xf bank_mask:0xf')
        mf(4)
        a('v_add_f32_dpp v11, v11, v11 quad_perm:[2,3,0,1] row_mask:0xf bank_mask:0xf')
        a('v_rcp_f32 v11, v11')
        mf(5)
        a('v_mul_f32 v10, v10, v11')
        for r in range(4):
            a(f'ds_bpermute_b32 v{12+r}, v8, v10 offset:{4*r}')
        for kk in range(6, 11):
            mf(kk)
        a('s_waitcnt lgkmcnt(0)')
        self.nop(7)
        a(f'v_fma_f32 v16, v12, v{D0}, v4')
        a(f'v_fma_f32 v17, v12, v{D1}, v4')
        for r in range(1, 4):
            a(f'v_fmac_f32 v16, v{12+r}, v{D0+r}')
            a(f'v_fmac_f32 v17, v{12+r}, v{D1+r}')
        a('global_atomic_add_f32 v3, v16, s[32:33]')
        a('global_atomic_add_f32 v3, v17, s[32:33] offset:64')
        self.stamp(28)
        self.unvstamp(240, 20)
        self.unvstamp(242, 22)
        self.flush_stamps([(9, 20), (10, 22), (11, 24), (4, 26), (5, 28)])
        for i, v in enumerate((226, 228, 230, 232, 234, 236, 220, 222, 224, 238)):
            self.unvstamp(v, 20)
            self.flush_stamps([(16 + i, 20)])
        a('s_endpgm')

    def consumer(self):
        a, lab = self.a, self.lab
        lab('L_cons')
        a('s_mov_b32 s36, s8')
        a('s_mov_b32 s37, s9')
        a('s_mov_b32 s38, 3584')
        a('s_mov_b32 s39, 0x20000')
        a('s_mov_b32 s40, s28')
        a('s_mov_b32 s41, s29')
        a('s_mov_b32 s42, 3584')
        a('s_mov_b32 s43, 0x20000')
        a('s_mul_i32 s44, s2, 896')
        a('v_lshrrev_b32 v2, 2, v1')
        a('v_and_b32 v3, 3, v1')
        a('v_mul_u32_u24 v2, 28, v2')
        a('v_lshl_add_u32 v2, v3, 3, v2')
        for r in range(2):
            for ep in range(2):
                a(f'buffer_load_dword v{8+2*r+ep}, v2, s[36:39], s44 offen offset:{448*r+4*ep}')
        a('s_mov_b32 s46, 0x88888888')
        a('s_mov_b32 s47, 0x88888888')
        a(f's_mov_b32 s62, {f2u(1.0/448):#x}')
        a(f's_mov_b32 s63, {f2u(1e-5):#x}')
        a('s_waitcnt vmcnt(0)')
        XF = 12
        for i in range(4):
            self.unpack(XF + 2 * i, XF + 2 * i + 1, 8 + i)
        a(f'v_lshlrev_b32 v5, 4, v1')
        a(f'v_add_u32 v5, {TG}, v5')
        a('v_mul_u32_u24 v3, 12, v1')
        a(f'v_add_u32 v3, {L_TBL}, v3')
        TF = 160
        a(f's_mov_b32 s19, {SPIN}')
        lab('L_ct')
        for it in range(16):
            if it % 4 == 0 and it:
                a('v_add_u32 v5, 4096, v5')
            a(f'global_load_dwordx4 v[{TF+4*it}:{TF+4*it+3}], v5, s[32:33] offset:{1024*(it%4)} sc1')
        a('v_subrev_u32 v5, 12288, v5')
        a('s_sub_u32 s19, s19, 1')
        a('s_cbranch_scc1 L_exit')
        a('s_waitcnt vmcnt(0)')
        a(f'v_xor_b32 v9, s6, v{TF+3}')
        for it in range(1, 16):
            a(f'v_bitop3_b32 v9, v{TF+4*it+3}, s6, v9 bitop3:0xbe')
        a('v_cmp_ne_u32 vcc, 0, v9')
        a('s_cbranch_vccz L_ct2')
        a('s_sleep 32')
        a('s_branch L_ct')
        lab('L_ct2')
        for it in range(16):
            a(f'ds_write2_b32 v3, v{TF+4*it}, v{TF+4*it+1} offset0:0 offset1:1')
            a(f'ds_write_b32 v3, v{TF+4*it+2} offset:8')
            a('v_add_u32 v3, 768, v3')
        self.stamp(24)
        self.wait_done('L_cd')
        a('s_setprio 3')
        A = 20
        a(f's_mov_b32 s19, {SPIN}')
        a(f's_mov_b32 s45, {f2u(16.0):#x}')
        lab('L_cp')
        a(f'global_load_dwordx4 v[{A}:{A+3}], v4, s[32:33] sc1')
        a(f'global_load_dwordx4 v[{A+4}:{A+7}], v4, s[32:33] offset:1024 sc1')
        a('s_sub_u32 s19, s19, 1')
        a('s_cbranch_scc1 L_exit')
        a('s_waitcnt vmcnt(0)')
        a(f'v_cmp_eq_f32 vcc, s45, v{A+3}')
        a(f'v_cmp_eq_f32 s[48:49], s45, v{A+7}')
        a('s_and_b64 s[48:49], s[48:49], vcc')
        a('s_and_b64 s[48:49], s[48:49], s[46:47]')
        a('s_cmp_eq_u64 s[48:49], s[46:47]')
        a('s_cbranch_scc0 L_cp')
        self.stamp(26)
        P = 28
        Hh = 32
        Dd = 40
        S1, S2, PV, MO, RO = 48, 50, 52, 54, 56
        for i in range(4):
            a(f'v_cvt_pk_bf16_f32 v{P+i}, v{A+2*i}, v{A+2*i+1}')
        for i in range(4):
            self.unpack(A + 2 * i, A + 2 * i + 1, P + i)
        for i in range(4):
            a(f'v_pk_add_f32 v[{A+2*i}:{A+2*i+1}], v[{A+2*i}:{A+2*i+1}], v[{XF+2*i}:{XF+2*i+1}]')
        for i in range(4):
            a(f'v_cvt_pk_bf16_f32 v{P+i}, v{A+2*i}, v{A+2*i+1}')
        for i in range(4):
            self.unpack(Hh + 2 * i, Hh + 2 * i + 1, P + i)

        def sums(src, piv):
            if piv:
                a(f'v_readfirstlane_b32 s50, v{src}')
                a('s_nop 1')
                a(f'v_mov_b32 v{PV}, s50')
                for i in range(4):
                    a(f'v_pk_add_f32 v[{Dd+2*i}:{Dd+2*i+1}], v[{src+2*i}:{src+2*i+1}], v[{PV}:{PV+1}] op_sel_hi:[1,0] neg_lo:[0,1] neg_hi:[0,1]')
                s = Dd
            else:
                s = src
            for i in (2, 3, 6, 7):
                a(f'v_cndmask_b32 v{Dd+i}, v{s+i}, 0, s[46:47]')
            idx = [s, Dd + 2, s + 4, Dd + 6]
            a(f'v_pk_add_f32 v[{S1}:{S1+1}], v[{idx[0]}:{idx[0]+1}], v[{idx[1]}:{idx[1]+1}]')
            a(f'v_pk_mul_f32 v[{S2}:{S2+1}], v[{idx[0]}:{idx[0]+1}], v[{idx[0]}:{idx[0]+1}]')
            a(f'v_pk_add_f32 v[{S1}:{S1+1}], v[{S1}:{S1+1}], v[{idx[2]}:{idx[2]+1}]')
            a(f'v_pk_fma_f32 v[{S2}:{S2+1}], v[{idx[1]}:{idx[1]+1}], v[{idx[1]}:{idx[1]+1}], v[{S2}:{S2+1}]')
            a(f'v_pk_add_f32 v[{S1}:{S1+1}], v[{S1}:{S1+1}], v[{idx[3]}:{idx[3]+1}]')
            a(f'v_pk_fma_f32 v[{S2}:{S2+1}], v[{idx[2]}:{idx[2]+1}], v[{idx[2]}:{idx[2]+1}], v[{S2}:{S2+1}]')
            a(f'v_add_f32 v{S1}, v{S1}, v{S1+1}')
            a(f'v_pk_fma_f32 v[{S2}:{S2+1}], v[{idx[3]}:{idx[3]+1}], v[{idx[3]}:{idx[3]+1}], v[{S2}:{S2+1}]')
            a(f'v_add_f32 v{S2}, v{S2}, v{S2+1}')
            self.ladder64([S1, S2], [S1 + 1, S2 + 1])
            self.ln_stats(S1, S2, PV if piv else None, 58, 59, 62, 63, MO, RO)

        def norm(src, dst, keep_packed):
            for i in range(4):
                a(f'v_pk_add_f32 v[{dst+2*i}:{dst+2*i+1}], v[{src+2*i}:{src+2*i+1}], v[{MO}:{MO+1}] op_sel_hi:[1,0] neg_lo:[0,1] neg_hi:[0,1]')
            for i in range(4):
                a(f'v_cvt_pk_bf16_f32 v{P+i}, v{dst+2*i}, v{dst+2*i+1}')
            for i in range(4):
                self.unpack(dst + 2 * i, dst + 2 * i + 1, P + i)
            for i in range(4):
                a(f'v_pk_mul_f32 v[{dst+2*i}:{dst+2*i+1}], v[{dst+2*i}:{dst+2*i+1}], v[{RO}:{RO+1}] op_sel_hi:[1,0]')
            for i in range(4):
                a(f'v_cvt_pk_bf16_f32 v{P+i}, v{dst+2*i}, v{dst+2*i+1}')
            if not keep_packed:
                for i in range(4):
                    self.unpack(dst + 2 * i, dst + 2 * i + 1, P + i)

        sums(Hh, True)
        norm(Hh, A, False)
        sums(A, False)
        norm(A, A, True)
        I = 40
        a(f's_mov_b32 s50, {2*NTH}')
        a(f's_mov_b32 s51, {NTH}')
        for i in range(4):
            a(f'v_bfe_u32 v{A+2*i}, v{P+i}, 0, 15')
            a(f'v_bfe_u32 v{A+2*i+1}, v{P+i}, 16, 15')
            a(f'v_bfe_u32 v{I+2*i}, v{P+i}, 15, 1')
            a(f'v_lshrrev_b32 v{I+2*i+1}, 31, v{P+i}')
        for i in range(8):
            a(f'v_subrev_u32 v{A+i}, {E0 << 7}, v{A+i}')
        for i in range(8):
            a(f'v_min_u32 v{160+i}, {NTH-1}, v{A+i}')
            a(f'v_mul_u32_u24 v{I+i}, s50, v{I+i}')
        for i in range(8):
            a(f'v_lshl_add_u32 v{I+i}, v{160+i}, 1, v{I+i}')
        Y = 168
        for i in range(8):
            a(f'ds_read_u16 v{Y+i}, v{I+i} offset:{L_TBL}')
        for i in (2, 3, 6, 7):
            a(f'v_cndmask_b32 v{A+i}, v{A+i}, 0, s[46:47]')
        a(f'v_max3_u32 v48, v{A}, v{A+1}, v{A+2}')
        a(f'v_max3_u32 v48, v48, v{A+3}, v{A+4}')
        a(f'v_max3_u32 v48, v48, v{A+5}, v{A+6}')
        a(f'v_max_u32 v48, v48, v{A+7}')
        a('v_cmp_le_u32 vcc, s51, v48')
        a('s_waitcnt lgkmcnt(0)')
        a('s_cbranch_vccnz L_cslow')
        lab('L_cfin')
        for i in range(8):
            a(f'v_lshlrev_b32 v{Y+i}, 16, v{Y+i}')
        for i in range(4):
            a(f'v_pk_add_f32 v[{Y+2*i}:{Y+2*i+1}], v[{Y+2*i}:{Y+2*i+1}], v[{Hh+2*i}:{Hh+2*i+1}]')
        for i in range(4):
            a(f'v_cvt_pk_bf16_f32 v{P+i}, v{Y+2*i}, v{Y+2*i+1}')
        a(f'buffer_store_dword v{P}, v2, s[40:43], s44 offen')
        a(f'buffer_store_dword v{P+2}, v2, s[40:43], s44 offen offset:448')
        a('s_andn2_b64 exec, exec, s[46:47]')
        a(f'buffer_store_dword v{P+1}, v2, s[40:43], s44 offen offset:4')
        a(f'buffer_store_dword v{P+3}, v2, s[40:43], s44 offen offset:452')
        self.stamp(28)
        self.flush_stamps([(12, 24), (13, 26), (14, 28)])
        a('s_endpgm')
        lab('L_cslow')
        for i in range(8):
            u = self.u()
            a(f'v_cmp_le_u32 s[52:53], s51, v{A+i}')
            lab(f'L_cs{u}')
            a('s_cmp_eq_u64 s[52:53], 0')
            a(f's_cbranch_scc1 L_ce{u}')
            a('s_ff1_i32_b64 s54, s[52:53]')
            a('s_bitset0_b64 s[52:53], s54')
            a(f'v_readlane_b32 s70, v{P+i//2}, s54')
            a('s_nop 0')
            if i & 1:
                a('s_and_b32 s70, s70, 0xffff0000')
            else:
                a('s_lshl_b32 s70, s70, 16')
            a('s_mov_b32 s71, s70')
            a('s_call_b64 s[76:77], L_eval')
            a('s_nop 0')
            a('v_readfirstlane_b32 s55, v153')
            a('s_mov_b32 m0, s54')
            a('s_nop 3')
            a(f'v_writelane_b32 v{Y+i}, s55, m0')
            a(f's_branch L_cs{u}')
            lab(f'L_ce{u}')
        a('s_branch L_cfin')

    def build(self):
        a, lab = self.a, self.lab
        o = self.o
        o.append(HEADER.rstrip('\n'))
        o.append(f'; @launch grid=(256,1,1) block=(512,1,1) lds={L_END}')
        o.append('.amdgcn_target "amdgcn-amd-amdhsa--gfx950"')
        o.append('.text')
        o.append(f'.globl {KN}')
        o.append('.p2align 8')
        o.append(f'.type {KN},@function')
        lab(KN)
        a('s_cmp_ge_u32 s2, 256')
        a('s_cbranch_scc1 L_exit')
        self.stamp(78)
        a('s_load_dwordx16 s[8:23], s[0:1], 0')
        a('s_load_dwordx8 s[24:31], s[0:1], 64')
        a('s_load_dwordx2 s[32:33], s[0:1], 96')
        a('v_lshrrev_b32 v1, 6, v0')
        a('s_lshr_b32 s4, s2, 2')
        a('v_readfirstlane_b32 s3, v1')
        a('s_and_b32 s5, s2, 7')
        a('s_lshl_b32 s5, s5, 5')
        a('s_lshr_b32 s7, s2, 3')
        a('s_add_u32 s5, s5, s7')
        a('s_cmp_ge_u32 s3, 4')
        a('s_cbranch_scc1 L_helper')
        self.streamer()
        lab('L_helper')
        self.helper()
        lab('L_exit')
        a('s_endpgm')
        o.append('.section .rodata,"a"')
        o.append('.p2align 6')
        o.append(f'.amdhsa_kernel {KN}')
        o.append('  .amdhsa_next_free_vgpr 256')
        o.append('  .amdhsa_next_free_sgpr 102')
        o.append('  .amdhsa_accum_offset 256')
        o.append('  .amdhsa_group_segment_fixed_size 0')
        o.append('  .amdhsa_kernarg_size 104')
        o.append('  .amdhsa_user_sgpr_count 2')
        o.append('  .amdhsa_user_sgpr_kernarg_segment_ptr 1')
        o.append('  .amdhsa_system_sgpr_workgroup_id_x 1')
        o.append('.end_amdhsa_kernel')
        return '\n'.join(o) + '\n'


if __name__ == '__main__':
    out = sys.argv[1]
    opt = eval(sys.argv[2]) if len(sys.argv) > 2 else {}
    open(out, 'w').write(G(**opt).build())
```

```python
import sys, struct, math

KN = 'sequential_preLN__mha_block_cached__mixer_token_mlp__decode_kernel'
HEADER = open('sequential_preLN__mha_block_cached__mixer_token_mlp__decode.s.ref').read().split('; Override launch')[0]


def f2u(x):
    return struct.unpack('<I', struct.pack('<f', x))[0]


QG, OG, TG, ACC, RDY, TK = 0x0, 0x10000, 0x50000, 0x54000, 0x56000, 0x58000
STAMP = 256 << 20
L_FL2 = 576
L_FLG, L_CNT, L_NON, L_HDR, L_QL, L_QP, L_XN, L_OW, L_WOS, L_TBL, L_END = 0, 16, 20, 32, 64, 1024, 2048, 6144, 10752, 26112, 38400
E0 = 108
NTH = 3072
LOG2E = 1.4426950408889634
SPIN = 1 << 16


class G:
    def __init__(self, **opt):
        self.o = []
        self.opt = dict(stamps=False, wqf='nt', wof='nt', kvf='nt', dbg=False, pre=0, bar0=True, pace=8, exp='', LA=16, setC=False, NST=16, TP=8, psleep=0)
        self.opt.update(opt)
        self.uid = 0

    def a(self, s):
        self.o.append('  ' + s)

    def lab(self, s):
        self.o.append(s + ':')

    def u(self):
        self.uid += 1
        return self.uid

    def nop(self, n):
        if n > 0:
            self.a(f's_nop {n-1}')

    def stamp(self, sreg):
        if self.opt['stamps']:
            self.a(f's_memrealtime s[{sreg}:{sreg+1}]')

    def vstamp(self, v):
        if self.opt['stamps']:
            self.a('s_memrealtime s[18:19]')
            self.a('s_waitcnt lgkmcnt(0)')
            self.a(f'v_mov_b32 v{v}, s18')
            self.a(f'v_mov_b32 v{v+1}, s19')

    def unvstamp(self, v, sreg):
        if self.opt['stamps']:
            self.a(f'v_readfirstlane_b32 s{sreg}, v{v}')
            self.a(f'v_readfirstlane_b32 s{sreg+1}, v{v+1}')
            self.a('s_nop 1')

    def flush_stamps(self, pairs, vt=250):
        if not self.opt['stamps']:
            return
        a = self.a
        a('s_waitcnt lgkmcnt(0)')
        a('s_mov_b64 exec, 1')
        a('s_lshl_b32 s7, s2, 8')
        a(f's_add_u32 s7, s7, {STAMP}')
        a(f'v_mov_b32 v{vt+2}, s7')
        for slot, sreg in pairs:
            a(f'v_mov_b32 v{vt}, s{sreg}')
            a(f'v_mov_b32 v{vt+1}, s{sreg+1}')
            a(f'global_store_dwordx2 v{vt+2}, v[{vt}:{vt+1}], s[32:33] offset:{8*slot}')
            a('s_nop 1')

    def bf16r(self, dst, src, tmp=None):
        t = dst if tmp is None else tmp
        self.a(f'v_cvt_pk_bf16_f32 v{t}, v{src}, v{src}')
        self.a(f'v_and_b32 v{dst}, 0xffff0000, v{t}')

    def unpack(self, lo, hi, p):
        self.a(f'v_lshlrev_b32 v{lo}, 16, v{p}')
        self.a(f'v_and_b32 v{hi}, 0xffff0000, v{p}')

    def ladder64(self, regs, tmps, op='v_add_f32'):
        a = self.a
        n = len(regs)
        for ror in (8, 4, 2, 1):
            self.nop(max(0, 2 - (n - 1)) if True else 0)
            for r in regs:
                a(f'{op}_dpp v{r}, v{r}, v{r} row_ror:{ror} row_mask:0xf bank_mask:0xf')
        for sw in ('v_permlane16_swap_b32', 'v_permlane32_swap_b32'):
            for r, t in zip(regs, tmps):
                a(f'v_mov_b32 v{t}, v{r}')
            self.nop(max(0, 2 - (n - 1)))
            for r, t in zip(regs, tmps):
                a(f'{sw} v{r}, v{t}')
            for r, t in zip(regs, tmps):
                a(f'{op} v{r}, v{r}, v{t}')

    def ln_stats(self, s1, s2, piv, t0, t1, sinv, seps, mout, rout):
        a = self.a
        a(f'v_mul_f32 v{s1}, s{sinv}, v{s1}')
        a(f'v_mul_f32 v{t0}, v{s1}, v{s1}')
        a(f'v_fma_f32 v{s2}, v{s2}, s{sinv}, -v{t0}')
        if piv is not None:
            a(f'v_add_f32 v{s1}, v{s1}, v{piv}')
        a(f'v_max_f32 v{s2}, 0, v{s2}')
        a(f'v_cvt_pk_bf16_f32 v{t0}, v{s1}, v{s2}')
        a(f'v_and_b32 v{t1}, 0xffff0000, v{t0}')
        a(f'v_lshlrev_b32 v{mout}, 16, v{t0}')
        a(f'v_add_f32 v{t1}, s{seps}, v{t1}')
        self.bf16r(t1, t1)
        a(f'v_sqrt_f32 v{t1}, v{t1}')
        a('s_nop 0')
        self.bf16r(t1, t1)
        a(f'v_rcp_f32 v{rout}, v{t1}')
        a('s_nop 0')

    def ld(self, R, n, sreg):
        j = n & 7
        srd = 's[36:39]' if n < 8 else 's[40:43]'
        self.a(f'buffer_load_dwordx4 v[{R+4*n}:{R+4*n+3}], v{2+j}, {srd}, s{sreg} offen {self.opt["kvf"]}')

    def chunk(self, R, issue, wait):
        a = self.a
        LA = self.opt['LA']

        NST, TP = self.opt['NST'], self.opt['TP']
        pool0 = 4 * NST * 0x8000
        npool = (16 - NST) * 16

        def hooks(n):
            if not issue:
                return
            if NST < 16 and n == (16 - LA - TP) % 16:
                u = self.u()
                lim = 1 if 16 - LA - TP >= 0 else 2
                a(f's_cmp_gt_u32 s45, {lim}')
                a(f's_cbranch_scc1 L_nt{u}')
                a('s_mov_b32 s50, 1')
                a('s_mov_b32 s51, 0')
                a('s_atomic_add_x2 s[50:51], s[52:53], 0x0 glc')
                self.lab(f'L_nt{u}')
            if n == 16 - LA:
                u = self.u()
                a('s_add_u32 s44, s47, 0x8000')
                a('s_cmp_gt_u32 s45, 1')
                a(f's_cbranch_scc1 L_st{u}')
                if NST < 16:
                    a('s_waitcnt lgkmcnt(0)')
                    a('s_cmp_lg_u32 s51, s6')
                    a('s_cbranch_scc1 L_tkretry')
                    self.lab('L_tkok')
                    a('s_lshr_b32 s48, s50, 2')
                    a('s_lshl_b32 s48, s48, 15')
                    a('s_and_b32 s49, s50, 3')
                    a('s_lshl_b32 s49, s49, 10')
                    a('s_add_u32 s48, s48, s49')
                    a('s_add_u32 s48, s48, s54')
                    a(f's_cmp_lt_u32 s50, {npool}')
                    a('s_cselect_b32 s44, s48, 0x200000')
                else:
                    a('s_mov_b32 s44, 0x200000')
                self.lab(f'L_st{u}')

        def iss(n):
            hooks(n)
            if issue:
                t = n + LA
                if t < 16:
                    self.ld(R, t, 47)
                else:
                    self.ld(R, t - 16, 44)
        if 'nocompute' in self.opt['exp']:
            for n in range(16):
                if wait: a(f's_waitcnt vmcnt({LA-1})')
                iss(n)
            return
        kvf = self.opt['kvf']
        Q, AC, S = 10, 14, 22
        X, C, C2, MN, AL, E, E1, PA0, PB0, PA1, PB1 = 30, 31, 32, 33, 34, 35, 36, 37, 38, 39, 42
        M, L = 40, 41
        SU, SU2 = 43, 44
        KR = lambda j: R + 4 * j
        VR = lambda j: R + 32 + 4 * j
        for j in range(8):
            if wait:
                a(f's_waitcnt vmcnt({LA-1})')
            k = KR(j)
            a(f'v_dot2_f32_bf16 v{S+j}, v{k}, v{Q}, 0')
            for i in range(1, 4):
                a(f'v_dot2_f32_bf16 v{S+j}, v{k+i}, v{Q+i}, v{S+j}')
            iss(j)
        for p in range(4):
            a(f'v_add_f32_dpp v{S+2*p}, v{S+2*p}, v{S+2*p} row_ror:8 row_mask:0xf bank_mask:0x3')
            a(f'v_add_f32_dpp v{S+2*p}, v{S+2*p+1}, v{S+2*p+1} row_ror:8 row_mask:0xf bank_mask:0xc')
        for p in (0, 4):
            a(f'v_add_f32_dpp v{S+p}, v{S+p}, v{S+p} row_half_mirror row_mask:0xf bank_mask:0x5')
            a(f'v_add_f32_dpp v{S+p}, v{S+p+2}, v{S+p+2} row_half_mirror row_mask:0xf bank_mask:0xa')
        self.nop(2)
        a(f'v_permlane16_swap_b32 v{S}, v{S+4}')
        a(f'v_add_f32 v{S}, v{S}, v{S+4}')
        self.nop(2)
        a(f'v_add_f32_dpp v{S}, v{S}, v{S} quad_perm:[1,0,3,2] row_mask:0xf bank_mask:0xf')
        self.nop(2)
        a(f'v_add_f32_dpp v{S}, v{S}, v{S} quad_perm:[2,3,0,1] row_mask:0xf bank_mask:0xf')
        self.bf16r(X, S)
        self.nop(2)
        a(f'v_max_f32_dpp v{C}, v{X}, v{X} row_ror:8 row_mask:0xf bank_mask:0xf')
        self.nop(2)
        a(f'v_max_f32_dpp v{C}, v{C}, v{C} row_half_mirror row_mask:0xf bank_mask:0xf')
        for sw in ('v_permlane16_swap_b32', 'v_permlane32_swap_b32'):
            a(f'v_mov_b32 v{C2}, v{C}')
            self.nop(2)
            a(f'{sw} v{C}, v{C2}')
            a(f'v_max_f32 v{C}, v{C}, v{C2}')
        a(f'v_mul_f32 v{C}, s46, v{C}')
        a(f'v_max_f32 v{MN}, v{M}, v{C}')
        a(f'v_fma_f32 v{E}, v{X}, s46, -v{MN}')
        a(f'v_sub_f32 v{AL}, v{M}, v{MN}')
        a(f'v_exp_f32 v{E}, v{E}')
        a(f'v_exp_f32 v{AL}, v{AL}')
        a(f'v_mov_b32 v{M}, v{MN}')
        a(f'v_mov_b32 v{E1}, v{E}')
        for i in range(2):
            a(f'v_mul_f32 v{AC+i}, v{AC+i}, v{AL}')
        a(f'v_permlane16_swap_b32 v{E}, v{E1}')
        for i in range(2, 8):
            a(f'v_mul_f32 v{AC+i}, v{AC+i}, v{AL}')
        a(f'v_cvt_pk_bf16_f32 v{PA0}, v{E}, 0')
        a(f'v_cvt_pk_bf16_f32 v{PB0}, 0, v{E}')
        a(f'v_cvt_pk_bf16_f32 v{PA1}, v{E1}, 0')
        a(f'v_cvt_pk_bf16_f32 v{PB1}, 0, v{E1}')
        a(f'v_add_f32 v{SU}, v{E}, v{E1}')
        a(f'v_mul_f32 v{L}, v{L}, v{AL}')
        extra = [
            [f'v_add_f32_dpp v{SU}, v{SU}, v{SU} row_ror:8 row_mask:0xf bank_mask:0xf'],
            [f'v_add_f32_dpp v{SU}, v{SU}, v{SU} row_half_mirror row_mask:0xf bank_mask:0xf'],
            [f'v_mov_b32 v{SU2}, v{SU}'],
            [f'v_permlane32_swap_b32 v{SU}, v{SU2}', f'v_add_f32 v{L}, v{L}, v{SU}', f'v_add_f32 v{L}, v{L}, v{SU2}'],
        ]
        for j in range(8):
            if wait:
                a(f's_waitcnt vmcnt({LA-1})')
            v = VR(j)
            pa, pb = (PA0, PB0) if j < 4 else (PA1, PB1)
            n = 8 * (j & 1) + 4 * ((j >> 1) & 1)
            for i in range(4):
                a(f'v_dot2c_f32_bf16_dpp v{AC+2*i}, v{pa}, v{v+i} row_newbcast:{n} row_mask:0xf bank_mask:0xf')
                a(f'v_dot2c_f32_bf16_dpp v{AC+2*i+1}, v{pb}, v{v+i} row_newbcast:{n} row_mask:0xf bank_mask:0xf')
            iss(8 + j)
            if j < len(extra):
                for s in extra[j]:
                    a(s)

    def issue_set(self, R, bar=-1, done=0, cnt=16):
        for n in range(cnt):
            if n == bar:
                self.a('s_barrier')
            if self.opt['pace'] and done + n >= self.opt['pace']:
                self.a(f's_waitcnt vmcnt({self.opt["pace"]-1})')
            self.ld(R, n, 44)

    def streamer(self):
        a, lab = self.a, self.lab
        RA, RB = 48, 112
        a('v_lshlrev_b32 v2, 4, v0')
        for j in range(1, 8):
            a(f'v_add_u32 v{2+j}, {4096*j}, v2')
        NST = self.opt['NST']
        a('s_lshl_b32 s7, s4, 21')
        a('s_mov_b32 s38, 0x200000')
        a('s_mov_b32 s39, 0x20000')
        a('s_mov_b32 s42, 0x200000')
        a('s_mov_b32 s43, 0x20000')
        a('s_and_b32 s44, s2, 3')
        a(f's_mul_i32 s44, s44, {NST*0x8000}')
        a('s_memrealtime s[48:49]')
        a('s_or_b32 s47, s2, s3')
        a('v_lshlrev_b32 v11, 6, v0')
        a('s_waitcnt lgkmcnt(0)')
        a('s_cmp_lg_u32 s47, 0')
        a('s_cbranch_scc1 L_sn0')
        a('s_and_b32 s49, s48, 0x3fff')
        a('s_lshl_b32 s48, s48, 2')
        a('s_and_b32 s48, s48, 0xbfff0000')
        a('s_or_b32 s48, s48, s49')
        a('s_or_b32 s48, s48, 0x8000')
        a('v_mov_b32 v10, s48')
        a('s_mov_b64 exec, 15')
        a('global_store_dword v11, v10, s[30:31] sc1')
        a('s_mov_b64 exec, -1')
        lab('L_sn0')
        if 'nohelp' in self.opt['exp']:
            a('v_mov_b32 v10, 0')
            a(f'ds_write_b32 v10, v10 offset:{L_CNT}')
        a('s_add_u32 s36, s10, s7')
        a('s_addc_u32 s37, s11, 0')
        a('s_add_u32 s40, s12, s7')
        a('s_addc_u32 s41, s13, 0')
        RC = 176
        setC = self.opt['setC']
        self.issue_set(RB, self.opt['pre'] if self.opt['bar0'] else -1)
        off = 0x8000
        done = 16
        if setC:
            a('s_add_u32 s44, s44, 0x8000')
            self.issue_set(RC, -1, done)
            off += 0x8000
            done += 16
        a('s_add_u32 s44, s44, 0x8000')
        a('s_load_dword s6, s[30:31], 192')
        self.issue_set(RA, -1, done, self.opt['LA'])
        a('s_mov_b32 s47, s44')
        a('s_lshl_b32 s48, s4, 8')
        a(f's_add_u32 s48, s48, {TK}')
        a('s_add_u32 s52, s32, s48')
        a('s_addc_u32 s53, s33, 0')
        a('s_lshl_b32 s54, s3, 10')
        a(f's_sub_u32 s54, {4*NST*0x8000}, s54')
        a('s_setprio 2')
        for i in range(8):
            a(f'v_mov_b32 v{14+i}, 0')
        a('v_mov_b32 v40, 0xff800000')
        a('v_mov_b32 v41, 0')
        a(f's_mov_b32 s46, {f2u(LOG2E/16.0):#x}')
        niter = NST - (2 if setC else 1)
        a(f's_mov_b32 s45, {niter}')
        a('v_and_b32 v45, 31, v0')
        a('v_lshlrev_b32 v46, 4, v45')
        a('v_mov_b32 v30, 0')
        self.stamp(80)
        a(f's_mov_b32 s48, {SPIN}')
        a('s_waitcnt lgkmcnt(0)')
        lab('L_snw')
        a('s_cmp_lg_u32 s6, 0')
        a('s_cbranch_scc1 L_sqw')
        a('s_sub_u32 s48, s48, 1')
        a('s_cbranch_scc1 L_exit')
        a('global_load_dword v31, v30, s[30:31] sc1')
        a('s_waitcnt vmcnt(0)')
        a('v_readfirstlane_b32 s6, v31')
        a('s_nop 0')
        a('s_branch L_snw')
        lab('L_sqs')
        a('s_sleep 1')
        lab('L_sqw')
        a(f'ds_read_b128 v[32:35], v30 offset:{L_FL2}')
        a(f'ds_read_b128 v[10:13], v46 offset:{L_QL}')
        a('s_sub_u32 s48, s48, 1')
        a('s_cbranch_scc1 L_exit')
        a('s_waitcnt lgkmcnt(0)')
        a('v_xor_b32 v32, s6, v32')
        a('v_bitop3_b32 v32, v33, s6, v32 bitop3:0xbe')
        a('v_bitop3_b32 v32, v34, s6, v32 bitop3:0xbe')
        a('v_bitop3_b32 v32, v35, s6, v32 bitop3:0xbe')
        a('v_cmp_eq_u32 vcc, 0, v32')
        a('v_mov_b32 v47, s6')
        if 'nohelp' not in self.opt['exp']:
            a('s_cbranch_vccz L_sqs')
        self.stamp(82)
        if self.opt['stamps']:
            a('s_memtime s[90:91]')
        lab('L_sloop')
        self.chunk(RA, True, True)
        a('s_mov_b32 s47, s44')
        a(f's_cmp_eq_u32 s45, {niter}')
        a('s_cbranch_scc1 L_sB')
        if setC:
            a(f's_cmp_eq_u32 s45, {niter-1}')
            a('s_cbranch_scc1 L_sC')
        lab('L_sback')
        a('s_sub_u32 s45, s45, 1')
        a('s_max_i32 s45, s45, 1')
        a('s_cmp_lt_u32 s47, 0x200000')
        a('s_cbranch_scc1 L_sloop')
        self.stamp(84)
        if self.opt['stamps']:
            a('s_memtime s[92:93]')
        AC = 14
        a('v_lshlrev_b32 v46, 5, v45')
        a('v_bfe_u32 v30, v0, 5, 1')
        a('v_lshl_add_u32 v46, v30, 4, v46')
        a('s_lshl_b32 s7, s3, 10')
        a('v_add_u32 v46, s7, v46')
        for i in range(4):
            a(f'v_permlane32_swap_b32 v{AC+i}, v{AC+4+i}')
        for i in range(4):
            a(f'v_add_f32 v{AC+i}, v{AC+i}, v{AC+4+i}')
        a('s_lshl_b32 s7, s3, 3')
        a('v_mov_b32 v30, s7')
        a(f'ds_write_b128 v46, v[{AC}:{AC+3}] offset:{L_OW}')
        a(f'ds_write_b64 v30, v[40:41] offset:{L_HDR}')
        a('v_mov_b32 v31, 0')
        a('v_mov_b32 v32, 1')
        a('s_mov_b64 exec, 1')
        a('s_waitcnt lgkmcnt(0)')
        a(f'ds_add_rtn_u32 v33, v31, v32 offset:{L_CNT}')
        a('s_mov_b64 exec, -1')
        a('v_and_b32 v34, 63, v0')
        a('v_mul_u32_u24 v35, 24, v34')
        a('s_waitcnt lgkmcnt(0)')
        a('v_readfirstlane_b32 s7, v33')
        a('s_nop 0')
        a('s_cmp_lg_u32 s7, 3')
        if self.opt['stamps']:
            a('s_cbranch_scc1 L_sexit')
        else:
            a('s_cbranch_scc1 L_exit')
        H = 180
        a(f'ds_read_b128 v[{H}:{H+3}], v31 offset:{L_HDR}')
        a(f'ds_read_b128 v[{H+4}:{H+7}], v31 offset:{L_HDR+16}')
        D = 188
        for w in range(4):
            for e in range(3):
                a(f'ds_read_b64 v[{D+6*w+2*e}:{D+6*w+2*e+1}], v35 offset:{L_OW+1024*w+8*e}')
        a('s_and_b32 s48, s4, 15')
        a('s_lshl_b32 s48, s48, 4')
        a('s_lshr_b32 s49, s4, 4')
        a('s_lshl2_add_u32 s48, s49, s48')
        a('s_and_b32 s49, s2, 3')
        a('s_add_u32 s48, s48, s49')
        a('s_lshl_b32 s48, s48, 10')
        a(f's_add_u32 s48, s48, {OG}')
        a('v_lshl_add_u32 v36, v34, 4, s48')
        a('s_waitcnt lgkmcnt(12)')
        a(f'v_max3_f32 v30, v{H}, v{H+2}, v{H+4}')
        a(f'v_max_f32 v30, v30, v{H+6}')
        for w in range(4):
            a(f'v_sub_f32 v{H+2*w}, v{H+2*w}, v30')
        for w in range(4):
            a(f'v_exp_f32 v{H+2*w}, v{H+2*w}')
        a('s_nop 0')
        a(f'v_mul_f32 v31, v{H}, v{H+1}')
        for w in range(1, 4):
            a(f'v_fmac_f32 v31, v{H+2*w}, v{H+2*w+1}')
        a('v_rcp_f32 v32, v31')
        a('v_log_f32 v33, v31')
        a('v_cmp_eq_u32 s[50:51], 42, v34')
        a('v_cmp_gt_u32 vcc, 43, v34')
        for w in range(4):
            a(f'v_mul_f32 v{H+2*w}, v{H+2*w}, v32')
        a('v_add_f32 v33, v33, v30')
        a('s_waitcnt lgkmcnt(0)')
        for e in range(6):
            a(f'v_mul_f32 v{22+e}, v{H}, v{D+e}')
        for w in range(1, 4):
            for e in range(6):
                a(f'v_fmac_f32 v{22+e}, v{H+2*w}, v{D+6*w+e}')
        a('v_cvt_pk_bf16_f32 v44, v22, v23')
        a('v_cvt_pk_bf16_f32 v45, v24, v25')
        a('v_cvt_pk_bf16_f32 v46, v26, v27')
        a('v_cndmask_b32 v44, 0, v44, vcc')
        a('v_cndmask_b32 v45, 0, v45, vcc')
        a('v_cndmask_b32 v46, 0, v46, vcc')
        a('v_cndmask_b32 v46, v46, v33, s[50:51]')
        a('s_mov_b32 exec_lo, -1')
        a('s_mov_b32 exec_hi, 0xfff')
        a('global_store_dwordx4 v36, v[44:47], s[32:33] sc1')
        self.stamp(86)
        if self.opt['stamps']:
            self.flush_stamps([(3, 86)])
            lab('L_sexit')
            a('s_cmp_lg_u32 s3, 0')
            a('s_cbranch_scc1 L_exit')
            a('s_getreg_b32 s88, hwreg(HW_REG_XCC_ID)')
            a('s_and_b32 s88, s88, 15')
            a('s_mov_b32 s89, 0')
            a('s_sub_u32 s90, s92, s90')
            a('s_mov_b32 s91, 0')
            self.flush_stamps([(0, 78), (1, 80), (2, 82), (8, 84), (6, 88), (7, 90)])
        a('s_endpgm')
        if NST < 16:
            lab('L_tkretry')
            a(f's_mov_b32 s48, {SPIN}')
            lab('L_tkr2')
            a('s_sleep 8')
            a('s_mov_b32 s50, 1')
            a('s_mov_b32 s51, 0')
            a('s_atomic_add_x2 s[50:51], s[52:53], 0x0 glc')
            a('s_sub_u32 s48, s48, 1')
            a('s_cbranch_scc1 L_exit')
            a('s_waitcnt lgkmcnt(0)')
            a('s_cmp_lg_u32 s51, s6')
            a('s_cbranch_scc1 L_tkr2')
            a('s_branch L_tkok')
        lab('L_sB')
        if 'noBC' in self.opt['exp']:
            a('s_branch L_sback')
        self.chunk(RB, False, False)
        a('s_branch L_sback')
        if setC:
            lab('L_sC')
            if 'noBC' in self.opt['exp']:
                a('s_branch L_sback')
            self.chunk(RC, False, False)
            a('s_branch L_sback')

    W1, B1, W2P, C1P, ET, EA = 64, 92, 120, 134, 136, 152

    def eval_sub(self):
        a = self.a
        W1, B1, W2P, C1P, ET, EA = self.W1, self.B1, self.W2P, self.C1P, self.ET, self.EA
        self.lab('L_eval')
        a(f'v_mov_b32 v{EA}, 0')
        for base in range(0, 14, 2):
            prs = [(base, ET), (base + 1, ET + 6)]
            for p, t in prs:
                a(f'v_pk_mul_f32 v[{t}:{t+1}], v[{W1+2*p}:{W1+2*p+1}], s[70:71]')
            for p, t in prs:
                a(f'v_cvt_pk_bf16_f32 v{t+4}, v{t}, v{t+1}')
            for p, t in prs:
                self.unpack(t, t + 1, t + 4)
            for p, t in prs:
                a(f'v_pk_add_f32 v[{t}:{t+1}], v[{t}:{t+1}], v[{B1+2*p}:{B1+2*p+1}]')
            for p, t in prs:
                a(f'v_cvt_pk_bf16_f32 v{t+4}, v{t}, v{t+1}')
            for p, t in prs:
                self.unpack(t, t + 1, t + 4)
            for p, t in prs:
                a(f'v_pk_mul_f32 v[{t+2}:{t+3}], v[{t}:{t+1}], v[{t}:{t+1}]')
            for p, t in prs:
                a(f'v_pk_fma_f32 v[{t+2}:{t+3}], v[{t+2}:{t+3}], s[72:73], v[{C1P}:{C1P+1}]')
            for p, t in prs:
                a(f'v_pk_mul_f32 v[{t+2}:{t+3}], v[{t+2}:{t+3}], v[{t}:{t+1}]')
            for p, t in prs:
                a(f'v_exp_f32 v{t+2}, v{t+2}')
                a(f'v_exp_f32 v{t+3}, v{t+3}')
            a('s_nop 0')
            for p, t in prs:
                a(f'v_add_f32 v{t+2}, 1.0, v{t+2}')
                a(f'v_add_f32 v{t+3}, 1.0, v{t+3}')
            for p, t in prs:
                a(f'v_rcp_f32 v{t+2}, v{t+2}')
                a(f'v_rcp_f32 v{t+3}, v{t+3}')
            a('s_nop 0')
            for p, t in prs:
                a(f'v_pk_mul_f32 v[{t}:{t+1}], v[{t}:{t+1}], v[{t+2}:{t+3}]')
            for p, t in prs:
                a(f'v_cvt_pk_bf16_f32 v{t+4}, v{t}, v{t+1}')
            for p, t in prs:
                a(f'v_dot2c_f32_bf16 v{EA}, v{t+4}, v{W2P+p}')
        self.nop(2)
        self.ladder64([EA], [ET])
        self.bf16r(EA, EA)
        a(f'v_add_f32 v{EA}, s74, v{EA}')
        a(f'v_cvt_pk_bf16_f32 v153, v{EA}, 0')
        a('s_setpc_b64 s[76:77]')

    def helper(self):
        a, lab = self.a, self.lab
        opt = self.opt
        if 'nohelp' in opt['exp']:
            a('s_endpgm')
        self.stamp(90)
        a('s_setprio 3')
        a('s_sub_u32 s34, s3, 4')
        a('v_and_b32 v1, 63, v0')
        a('v_lshrrev_b32 v2, 4, v1')
        a('v_and_b32 v3, 15, v1')
        a('v_mul_u32_u24 v4, 896, v2')
        a('v_lshl_add_u32 v4, v3, 4, v4')
        a('v_cmp_gt_u32 s[60:61], 14, v3')
        a('v_bfrev_b32 v7, 1')
        a('v_lshrrev_b32 v5, 2, v1')
        a('v_and_b32 v6, 3, v1')
        a('v_cndmask_b32 v4, v7, v4, s[60:61]')
        a('v_cmp_gt_u32 vcc, 56, v1')
        a('v_lshlrev_b32 v56, 16, v5')
        a('v_lshl_add_u32 v56, v6, 3, v56')
        a('v_cndmask_b32 v56, v7, v56, vcc')
        for r in range(4):
            a(f's_add_u32 s{40+r}, s34, {r}')
            a(f's_and_b32 s{40+r}, s{40+r}, 3')
            a(f's_mul_i32 s{40+r}, s{40+r}, 224')
        a(f's_mul_i32 s48, s34, {112*8192}')
        a('s_lshl_b32 s49, s5, 5')
        a('s_add_u32 s48, s48, s49')
        for it in range(1, 8):
            a(f's_add_u32 s{48+it}, s48, {8192*it}')
        a('s_mov_b32 s38, 3584')
        a('s_mov_b32 s39, 0x20000')
        a('s_mov_b32 s46, 3670016')
        a('s_mov_b32 s47, 0x20000')
        a('s_waitcnt lgkmcnt(0)')
        self.stamp(92)
        a('s_mov_b32 s36, s8')
        a('s_mov_b32 s37, s9')
        a('s_mov_b32 s44, s14')
        a('s_mov_b32 s45, s15')
        for r in range(4):
            a(f'buffer_load_dwordx4 v[{8+4*r}:{11+4*r}], v4, s[36:39], s{40+r} offen')
        WR = 60
        for it in range(8):
            if 'nowq' in opt['exp']:
                a(f'buffer_load_dwordx2 v[{WR+2*it}:{WR+2*it+1}], v7, s[44:47], s{48+it} offen')
                continue
            a(f'buffer_load_dwordx2 v[{WR+2*it}:{WR+2*it+1}], v56, s[44:47], s{48+it} offen {opt["wqf"]}')
        self.stamp(94)
        if opt['bar0']:
            a('s_barrier')
        a(f's_mov_b32 s62, {f2u(1.0/448):#x}')
        a(f's_mov_b32 s63, {f2u(1e-5):#x}')
        a('s_mov_b32 s64, 0x05040100')
        a('s_mov_b32 s65, 0x07060302')
        a('s_lshl_b32 s18, s34, 10')
        a('v_lshl_add_u32 v57, v1, 4, s18')
        a('v_lshl_add_u32 v58, v5, 4, s18')
        self.vstamp(226)
        if self.opt['stamps']:
            for i in range(6):
                a(f'v_mov_b32 v{220+i}, s{90+i}')
        a('s_waitcnt vmcnt(8)')
        self.vstamp(228)
        XF = 24
        for i in range(16):
            self.unpack(XF + 2 * i, XF + 2 * i + 1, 8 + i)
        PV, S1, S2, DT = 76, 78, 80, 82
        a('s_nop 0')
        a(f'v_mov_b32_dpp v{PV}, v{XF} row_newbcast:0 row_mask:0xf bank_mask:0xf')
        for i in range(16):
            d = DT + 2 * (i & 1)
            a(f'v_pk_add_f32 v[{d}:{d+1}], v[{XF+2*i}:{XF+2*i+1}], v[{PV}:{PV+1}] op_sel_hi:[1,0] neg_lo:[0,1] neg_hi:[0,1]')
            if i == 0:
                a(f'v_pk_mul_f32 v[{S2}:{S2+1}], v[{d}:{d+1}], v[{d}:{d+1}]')
                a(f'v_mov_b32 v{S1}, v{d}')
                a(f'v_mov_b32 v{S1+1}, v{d+1}')
            else:
                a(f'v_pk_fma_f32 v[{S2}:{S2+1}], v[{d}:{d+1}], v[{d}:{d+1}], v[{S2}:{S2+1}]')
                a(f'v_pk_add_f32 v[{S1}:{S1+1}], v[{S1}:{S1+1}], v[{d}:{d+1}]')
        a(f'v_add_f32 v{S1}, v{S1}, v{S1+1}')
        a(f'v_add_f32 v{S2}, v{S2}, v{S2+1}')
        a(f'v_cndmask_b32 v{S1}, 0, v{S1}, s[60:61]')
        a(f'v_cndmask_b32 v{S2}, 0, v{S2}, s[60:61]')
        for ror in (8, 4, 2, 1):
            a('s_nop 0')
            a(f'v_add_f32_dpp v{S1}, v{S1}, v{S1} row_ror:{ror} row_mask:0xf bank_mask:0xf')
            a(f'v_add_f32_dpp v{S2}, v{S2}, v{S2} row_ror:{ror} row_mask:0xf bank_mask:0xf')
        MO, RO = 86, 88
        self.ln_stats(S1, S2, PV, 84, 85, 62, 63, MO, RO)
        for i in range(4):
            a(f'v_pk_add_f32 v[{XF+2*i}:{XF+2*i+1}], v[{XF+2*i}:{XF+2*i+1}], v[{MO}:{MO+1}] op_sel_hi:[1,0] neg_lo:[0,1] neg_hi:[0,1]')
        for i in range(4):
            a(f'v_cvt_pk_bf16_f32 v{8+i}, v{XF+2*i}, v{XF+2*i+1}')
        for i in range(4):
            self.unpack(XF + 2 * i, XF + 2 * i + 1, 8 + i)
        for i in range(4):
            a(f'v_pk_mul_f32 v[{XF+2*i}:{XF+2*i+1}], v[{XF+2*i}:{XF+2*i+1}], v[{RO}:{RO+1}] op_sel_hi:[1,0]')
        for i in range(4):
            a(f'v_cvt_pk_bf16_f32 v{8+i}, v{XF+2*i}, v{XF+2*i+1}')
        a(f'ds_write_b128 v57, v[8:11] offset:{L_XN}')
        a('s_waitcnt lgkmcnt(0)')
        a('s_load_dword s6, s[30:31], 0')
        XN = 8
        for b in range(4):
            a(f'ds_read_b128 v[{XN+4*b}:{XN+4*b+3}], v58 offset:{L_XN+256*b}')
        self.vstamp(230)
        a('s_waitcnt vmcnt(0)')
        self.vstamp(232)
        PP = 24
        for p in range(4):
            for dw in range(2):
                a(f'v_perm_b32 v{PP+4*p+2*dw}, v{WR+4*p+2+dw}, v{WR+4*p+dw}, s64')
                a(f'v_perm_b32 v{PP+4*p+2*dw+1}, v{WR+4*p+2+dw}, v{WR+4*p+dw}, s65')
        a('s_waitcnt lgkmcnt(0)')
        QA = 40
        for p in range(4):
            for b in range(4):
                for e in range(4):
                    src2 = '0' if p == 0 else f'v{QA+4*b+e}'
                    a(f'v_dot2_f32_bf16 v{QA+4*b+e}, v{PP+4*p+e}, v{XN+4*b+p}, {src2}')
        for v in range(0, 16, 2):
            a(f'v_add_f32_dpp v{QA+v}, v{QA+v}, v{QA+v} row_shl:4 row_mask:0xf bank_mask:0x5')
            a(f'v_add_f32_dpp v{QA+v}, v{QA+v+1}, v{QA+v+1} row_shr:4 row_mask:0xf bank_mask:0xa')
        for v in range(0, 16, 4):
            a(f'v_add_f32_dpp v{QA+v}, v{QA+v}, v{QA+v} row_ror:8 row_mask:0xf bank_mask:0x3')
            a(f'v_add_f32_dpp v{QA+v}, v{QA+v+2}, v{QA+v+2} row_ror:8 row_mask:0xf bank_mask:0xc')
        a('s_lshl_b32 s18, s34, 8')
        a('v_lshl_add_u32 v57, v1, 2, s18')
        a(f'v_permlane16_swap_b32 v{QA}, v{QA+4}')
        a(f'v_permlane16_swap_b32 v{QA+8}, v{QA+12}')
        a(f'v_add_f32 v{QA}, v{QA}, v{QA+4}')
        a(f'v_add_f32 v{QA+8}, v{QA+8}, v{QA+12}')
        self.nop(2)
        a(f'v_permlane32_swap_b32 v{QA}, v{QA+8}')
        a(f'v_add_f32 v{QA}, v{QA}, v{QA+8}')
        a(f'ds_write_b32 v57, v{QA} offset:{L_QP}')
        self.vstamp(234)
        for sec in (1, 2, 3):
            a('s_waitcnt lgkmcnt(0)')
            a('s_cmp_lg_u32 s6, 0')
            a('s_cbranch_scc1 L_hnok')
            a('s_sleep 4')
            a(f's_load_dword s6, s[30:31], {64*sec}')
        a(f's_mov_b32 s19, {SPIN}')
        a('v_mov_b32 v58, 0')
        a('s_waitcnt lgkmcnt(0)')
        lab('L_hnw')
        a('s_cmp_lg_u32 s6, 0')
        a('s_cbranch_scc1 L_hnok')
        a('s_sub_u32 s19, s19, 1')
        a('s_cbranch_scc1 L_exit')
        a('global_load_dword v59, v58, s[30:31] sc1')
        a('s_waitcnt vmcnt(0)')
        a('v_readfirstlane_b32 s6, v59')
        a('s_nop 0')
        a('s_branch L_hnw')
        lab('L_hnok')
        self.vstamp(236)
        a('s_lshl_b32 s18, s34, 2')
        a('v_mov_b32 v58, s18')
        a('v_mov_b32 v59, s6')
        a(f'ds_write_b32 v58, v59 offset:{L_FLG}')
        a('s_and_b32 s35, s4, 15')
        a('s_lshl_b32 s35, s35, 2')
        a('s_lshr_b32 s7, s4, 4')
        a('s_add_u32 s35, s35, s7')
        a('s_lshl_b32 s35, s35, 10')
        a('s_lshl_b32 s7, s34, 8')
        a('s_add_u32 s35, s35, s7')
        a('s_add_u32 s100, s32, s35')
        a('s_addc_u32 s101, s33, 0')
        a('s_cmp_lg_u32 s34, 0')
        a('s_cbranch_scc1 L_hq')
        a('v_mov_b32 v58, 0')
        a(f'ds_write_b32 v58, v58 offset:{L_CNT}')
        a('v_lshlrev_b32 v57, 2, v1')
        a('s_lshr_b32 s18, s5, 4')
        a('s_lshl_b32 s18, s18, 12')
        a('s_and_b32 s19, s5, 15')
        a('s_lshl_b32 s19, s19, 6')
        a('s_add_u32 s18, s18, s19')
        a('v_lshrrev_b32 v8, 4, v1')
        a('v_lshlrev_b32 v8, 10, v8')
        a('v_bfe_u32 v9, v1, 1, 1')
        a('v_lshl_add_u32 v8, v9, 4, v8')
        a('v_bfe_u32 v9, v1, 3, 1')
        a('v_lshl_add_u32 v8, v9, 5, v8')
        a('v_add_u32 v8, s18, v8')
        a(f's_mov_b32 s19, {SPIN}')
        lab('L_hfw')
        a(f'ds_read_b128 v[12:15], v58 offset:{L_FLG}')
        a('s_sub_u32 s19, s19, 1')
        a('s_cbranch_scc1 L_exit')
        a('s_waitcnt lgkmcnt(0)')
        a('v_xor_b32 v12, s6, v12')
        a('v_bitop3_b32 v12, v13, s6, v12 bitop3:0xbe')
        a('v_bitop3_b32 v12, v14, s6, v12 bitop3:0xbe')
        a('v_bitop3_b32 v12, v15, s6, v12 bitop3:0xbe')
        a('v_cmp_eq_u32 vcc, 0, v12')
        a('s_cbranch_vccz L_hfw')
        self.vstamp(238)
        a(f'ds_read2st64_b32 v[12:13], v57 offset0:{L_QP//256} offset1:{L_QP//256+1}')
        a(f'ds_read2st64_b32 v[14:15], v57 offset0:{L_QP//256+2} offset1:{L_QP//256+3}')
        a('v_mov_b32 v18, s6')
        a('v_mov_b32 v19, s6')
        a('s_waitcnt lgkmcnt(0)')
        a('v_add_f32 v12, v12, v13')
        a('v_add_f32 v14, v14, v15')
        a('v_add_f32 v12, v12, v14')
        self.nop(2)
        a('v_mov_b32_dpp v13, v12 row_shl:4 row_mask:0xf bank_mask:0xf')
        a('v_cvt_pk_bf16_f32 v16, v12, v13')
        self.nop(2)
        a('v_mov_b32_dpp v17, v16 quad_perm:[1,0,3,2] row_mask:0xf bank_mask:0xf')
        a('s_mov_b32 exec_lo, 0x05050505')
        a('s_mov_b32 exec_hi, 0x05050505')
        a('v_and_b32 v9, 4, v1')
        if 'noqst' not in opt['exp']:
            a('global_store_dwordx4 v8, v[16:19], s[32:33] sc1')
        a('s_mov_b64 exec, -1')
        self.vstamp(240)
        lab('L_hq')
        a(f's_mov_b32 s19, {SPIN}')
        if 'nopoll' in opt['exp']:
            a('s_sleep 60')
            a('s_branch L_hqok')
        lab('L_hqw')
        for p in range(4):
            a(f's_load_dwordx16 s[{36+16*p}:{51+16*p}], s[100:101], {64*p} glc')
        a('s_sub_u32 s19, s19, 1')
        a('s_cbranch_scc1 L_exit')
        a('s_waitcnt lgkmcnt(0)')
        tags = [36 + 16 * p + 4 * g + 2 for p in range(4) for g in range(4)]
        a(f's_xor_b32 s7, s{tags[0]}, s6')
        for t in tags[1:]:
            a(f's_xor_b32 s18, s{t}, s6')
            a('s_or_b32 s7, s7, s18')
        a('s_cbranch_scc0 L_hqok')
        a('s_sleep 2')
        a('s_branch L_hqw')
        lab('L_hqok')
        order = {0: 0, 1: 2, 4: 4, 5: 6, 8: 1, 9: 3, 12: 5, 13: 7}
        for p in range(4):
            for k, pr in order.items():
                a(f'v_writelane_b32 v8, s{36+16*p+k}, {8*p+pr}')
        a('s_lshl_b32 s18, s34, 7')
        a('v_lshl_add_u32 v9, v1, 2, s18')
        a('s_mov_b32 exec_hi, 0')
        a(f'ds_write_b32 v9, v8 offset:{L_QL}')
        a('s_mov_b64 exec, -1')
        a('s_load_dword s74, s[26:27], 0')
        a('s_lshl_b32 s18, s34, 2')
        a('v_mov_b32 v9, s18')
        a('v_mov_b32 v8, s6')
        a('s_waitcnt lgkmcnt(0)')
        a(f'ds_write_b32 v9, v8 offset:{L_FL2}')
        self.vstamp(242)
        a('s_setprio 0')
        if 'qonly' in opt['exp']:
            a('s_endpgm')
        if opt['NST'] < 16:
            a('s_and_b32 s18, s2, 3')
            a('s_lshl2_add_u32 s18, s18, s34')
            a('s_cmp_lg_u32 s18, 1')
            a('s_cbranch_scc1 L_htk')
            a('s_lshl_b32 s18, s4, 8')
            a(f's_add_u32 s18, s18, {TK}')
            a('v_mov_b32 v10, s18')
            a('v_mov_b32 v8, 0')
            a('v_mov_b32 v9, s6')
            a('s_mov_b64 exec, 1')
            a('global_store_dwordx2 v10, v[8:9], s[32:33] sc1')
            a('s_mov_b64 exec, -1')
            lab('L_htk')
        a('s_cmp_eq_u32 s34, 0')
        a('s_cbranch_scc1 L_work')
        a('s_cmp_ge_u32 s34, 2')
        a('s_cbranch_scc1 L_hw')
        a('s_cmp_ge_u32 s2, 4')
        a('s_cbranch_scc1 L_exit')
        a('s_lshl_b32 s18, s2, 11')
        a(f's_add_u32 s18, s18, {ACC}')
        a('v_lshl_add_u32 v4, v1, 4, s18')
        for i in range(4):
            a(f'v_mov_b32 v{8+i}, 0')
        a('global_store_dwordx4 v4, v[8:11], s[32:33] sc1')
        a('global_store_dwordx4 v4, v[8:11], s[32:33] offset:1024 sc1')
        a('s_lshl_b32 s18, s2, 2')
        a(f's_add_u32 s18, s18, {RDY}')
        a('v_mov_b32 v12, s18')
        a('v_mov_b32 v13, s6')
        a('s_waitcnt vmcnt(0)')
        a('s_mov_b64 exec, 1')
        a('global_store_dword v12, v13, s[32:33] sc1')
        a('s_mov_b64 exec, -1')
        lab('L_hw')
        a('v_lshlrev_b32 v2, 4, v1')
        a('v_lshlrev_b32 v3, 3, v1')
        W1, B1, C1P, W2P = self.W1, self.B1, self.C1P, self.W2P
        for base, sp in ((160, 20), (176, 22), (W2P, 24)):
            for r in range(3):
                a(f'global_load_dwordx4 v[{base+4*r}:{base+4*r+3}], v2, s[{sp}:{sp+1}] offset:{1024*r}')
            a(f'global_load_dwordx2 v[{base+12}:{base+13}], v3, s[{sp}:{sp+1}] offset:3072')
        k2 = -2.0 * math.sqrt(2.0 / math.pi) * LOG2E
        a(f'v_mov_b32 v{C1P}, {f2u(k2):#x}')
        a(f'v_mov_b32 v{C1P+1}, {f2u(k2):#x}')
        a(f's_mov_b32 s72, {f2u(k2*0.044715):#x}')
        a('s_mov_b32 s73, s72')
        a('s_lshl_b32 s74, s74, 16')
        a('s_waitcnt vmcnt(0)')
        for i in range(14):
            self.unpack(W1 + 2 * i, W1 + 2 * i + 1, 160 + i)
            self.unpack(B1 + 2 * i, B1 + 2 * i + 1, 176 + i)
        a('s_cmp_eq_u32 s34, 1')
        a('s_cbranch_scc1 L_cons')
        a('s_lshl_b32 s40, s2, 2')
        a('s_lshl1_add_u32 s40, s34, s40')
        a('s_sub_u32 s40, s40, 4')
        a('s_add_u32 s50, s40, 2')
        lab('L_tb')
        a('s_mul_i32 s41, s40, 6')
        a(f's_cmp_ge_u32 s41, {NTH}')
        a(f's_mov_b32 s43, {E0 << 7}')
        a(f's_cselect_b32 s42, {0x8000 - NTH + (E0 << 7)}, s43')
        a('s_add_u32 s41, s41, s42')
        for n in range(6):
            a(f's_add_u32 s70, s41, {n}')
            a('s_lshl_b32 s70, s70, 16')
            a('s_mov_b32 s71, s70')
            if 'noeval' not in self.opt['exp']:
                a('s_call_b64 s[76:77], L_eval')
            a('s_nop 0')
            a(f'v_readfirstlane_b32 s{44+n}, v153')
        a('s_nop 0')
        for n in range(3):
            a(f's_pack_ll_b32_b16 s{44+n}, s{44+2*n}, s{45+2*n}')
        a('s_lshl_b32 s41, s40, 4')
        a(f's_add_u32 s41, s41, {TG}')
        a('v_mov_b32 v8, s44')
        a('v_mov_b32 v9, s45')
        a('v_mov_b32 v10, s46')
        a('v_mov_b32 v11, s6')
        a('v_mov_b32 v12, s41')
        a('s_mov_b64 exec, 1')
        a('global_store_dwordx4 v12, v[8:11], s[32:33] sc1')
        a('s_mov_b64 exec, -1')
        a('s_add_u32 s40, s40, 1')
        a('s_cmp_lt_u32 s40, s50')
        a('s_cbranch_scc1 L_tb')
        if self.opt['stamps']:
            a('s_cmp_lg_u32 s34, 2')
            a('s_cbranch_scc1 L_exit')
            self.stamp(24)
            self.flush_stamps([(15, 24)])
        a('s_endpgm')
        lab('L_work')
        self.worker()
        self.consumer()
        self.eval_sub()

    def wait_done(self, name):
        a, lab = self.a, self.lab
        a('v_mov_b32 v6, 0')
        a(f's_mov_b32 s19, {SPIN}')
        lab(name)
        a('s_sleep 2')
        a(f'ds_read_b32 v7, v6 offset:{L_CNT}')
        a('s_sub_u32 s19, s19, 1')
        a('s_cbranch_scc1 L_exit')
        a('s_waitcnt lgkmcnt(0)')
        a('v_cmp_eq_u32 vcc, 0, v7')
        a(f's_cbranch_vccnz {name}')

    def worker(self):
        a, lab = self.a, self.lab
        opt = self.opt
        a('s_lshr_b32 s40, s5, 4')
        a('s_and_b32 s41, s5, 15')
        a('s_mul_i32 s42, s40, 229376')
        a('s_mul_i32 s43, s41, 56')
        a('s_add_u32 s42, s42, s43')
        a('s_add_u32 s36, s16, s42')
        a('s_addc_u32 s37, s17, 0')
        a('s_sub_u32 s38, 229376, s43')
        a('s_mov_b32 s39, 0x20000')
        a('v_mul_u32_u24 v2, 37, v1')
        a('v_lshrrev_b32 v2, 8, v2')
        a('v_mul_u32_u24 v3, 7, v2')
        a('v_sub_u32 v3, v1, v3')
        a('v_mul_u32_u24 v2, 896, v2')
        a('v_lshl_add_u32 v2, v3, 3, v2')
        a('v_lshlrev_b32 v3, 3, v1')
        a('s_mov_b32 exec_hi, 0x7fffffff')
        a('s_mov_b32 s44, 0')
        for it in range(30 if 'nowo' not in opt['exp'] else 0):
            a(f'buffer_load_dwordx2 v[{160+2*it}:{161+2*it}], v2, s[36:39], s44 offen {opt["wof"]}')
            a('s_add_u32 s44, s44, 8064')
        for it in range(30 if 'nowo' not in opt['exp'] else 0):
            a(f's_waitcnt vmcnt({29-it})')
            a(f'ds_write_b64 v3, v[{160+2*it}:{161+2*it}] offset:{L_WOS+504*it}')
        a('s_mov_b64 exec, -1')
        BF = 64
        for i in range(88):
            a(f'v_mov_b32 v{BF+i}, 0')
        a('v_lshrrev_b32 v5, 4, v1')
        a('v_and_b32 v6, 15, v1')
        a('v_mul_u32_u24 v2, 336, v5')
        a('v_lshl_add_u32 v2, v6, 1, v2')
        a('s_mov_b32 exec_lo, 0x3fff3fff')
        a('s_mov_b32 exec_hi, 0x3fff3fff')
        a('s_waitcnt lgkmcnt(0)')
        for kk in range(11 if 'nowo' not in opt['exp'] else 0):
            for t in range(2):
                for e in range(6):
                    a(f'ds_read_u16 v{8+6*t+e}, v2 offset:{L_WOS+1344*kk+56*e+28*t}')
            a('s_waitcnt lgkmcnt(0)')
            for t in range(2):
                for uu in range(3):
                    a(f'v_lshl_or_b32 v{BF+8*kk+4*t+uu}, v{8+6*t+2*uu+1}, 16, v{8+6*t+2*uu}')
        a('s_mov_b64 exec, -1')
        a('s_lshl_b32 s42, s40, 14')
        a(f's_add_u32 s42, s42, {OG}')
        a('v_lshlrev_b32 v2, 10, v6')
        a('v_lshl_add_u32 v2, v5, 4, v2')
        a('v_add_u32 v2, s42, v2')
        a('s_lshl_b32 s42, s41, 7')
        a(f's_add_u32 s42, s42, {ACC}')
        a('v_lshlrev_b32 v3, 11, v5')
        a('v_lshl_add_u32 v3, v6, 2, v3')
        a('v_add_u32 v3, s42, v3')
        a('v_cmp_eq_u32 vcc, 15, v6')
        a('v_lshlrev_b32 v8, 4, v5')
        a('v_add_u32 v8, 128, v8')
        a('v_cndmask_b32 v4, 0, 1.0, vcc')
        a(f'v_mov_b32 v9, {RDY}')
        a('v_lshl_add_u32 v9, v5, 2, v9')
        a(f's_mov_b32 s19, {SPIN}')
        lab('L_wr')
        a('global_load_dword v10, v9, s[32:33] sc1')
        a('s_sub_u32 s19, s19, 1')
        a('s_cbranch_scc1 L_exit')
        a('s_waitcnt vmcnt(0)')
        a('v_cmp_ne_u32 vcc, s6, v10')
        a('s_cbranch_vccnz L_wr')
        self.stamp(24)
        self.wait_done('L_wd')
        a('s_setprio 3')
        AF = 160
        a(f's_mov_b32 s19, {SPIN}')
        lab('L_wp')
        for kk in range(11):
            a(f'global_load_dwordx4 v[{AF+4*kk}:{AF+4*kk+3}], v2, s[32:33] offset:{64*kk} sc1')
        a('s_sub_u32 s19, s19, 1')
        a('s_cbranch_scc1 L_exit')
        for kk in range(11):
            a(f's_waitcnt vmcnt({10-kk})')
            if kk == 0:
                a(f'v_xor_b32 v9, s6, v{AF+3}')
            else:
                a(f'v_bitop3_b32 v9, v{AF+4*kk+3}, s6, v9 bitop3:0xbe')
        a('v_cmp_ne_u32 vcc, 0, v9')
        a('s_and_b64 exec, exec, vcc')
        if opt['psleep']:
            a('s_cbranch_execz L_wpx')
            a(f's_sleep {opt["psleep"]}')
            a('s_branch L_wp')
            lab('L_wpx')
        else:
            a('s_cbranch_execnz L_wp')
        a('s_mov_b64 exec, -1')
        self.stamp(26)
        D0, D1 = 204, 208
        LS = AF + 42
        def mf(kk):
            for t, d in ((0, D0), (1, D1)):
                c = '0' if kk == 0 else f'v[{d}:{d+3}]'
                a(f'v_mfma_f32_16x16x32_bf16 v[{d}:{d+3}], v[{AF+4*kk}:{AF+4*kk+3}], v[{BF+8*kk+4*t}:{BF+8*kk+4*t+3}], {c}')
        a(f'v_mov_b32 v10, v{LS}')
        a('v_cmp_eq_u32 vcc, 2, v5')
        mf(0)
        a(f'v_cndmask_b32 v{LS}, v{LS}, 0, vcc')
        a('v_max_f32_dpp v11, v10, v10 quad_perm:[1,0,3,2] row_mask:0xf bank_mask:0xf')
        mf(1)
        a('v_max_f32_dpp v11, v11, v11 quad_perm:[2,3,0,1] row_mask:0xf bank_mask:0xf')
        a('v_sub_f32 v10, v10, v11')
        mf(2)
        a('v_exp_f32 v10, v10')
        mf(3)
        a('v_add_f32_dpp v11, v10, v10 quad_perm:[1,0,3,2] row_mask:0xf bank_mask:0xf')
        mf(4)
        a('v_add_f32_dpp v11, v11, v11 quad_perm:[2,3,0,1] row_mask:0xf bank_mask:0xf')
        a('v_rcp_f32 v11, v11')
        mf(5)
        a('v_mul_f32 v10, v10, v11')
        for r in range(4):
            a(f'ds_bpermute_b32 v{12+r}, v8, v10 offset:{4*r}')
        for kk in range(6, 11):
            mf(kk)
        a('s_waitcnt lgkmcnt(0)')
        self.nop(7)
        a(f'v_fma_f32 v16, v12, v{D0}, v4')
        a(f'v_fma_f32 v17, v12, v{D1}, v4')
        for r in range(1, 4):
            a(f'v_fmac_f32 v16, v{12+r}, v{D0+r}')
            a(f'v_fmac_f32 v17, v{12+r}, v{D1+r}')
        a('global_atomic_add_f32 v3, v16, s[32:33]')
        a('global_atomic_add_f32 v3, v17, s[32:33] offset:64')
        self.stamp(28)
        self.unvstamp(240, 20)
        self.unvstamp(242, 22)
        self.flush_stamps([(9, 20), (10, 22), (11, 24), (4, 26), (5, 28)])
        for i, v in enumerate((226, 228, 230, 232, 234, 236, 220, 222, 224, 238)):
            self.unvstamp(v, 20)
            self.flush_stamps([(16 + i, 20)])
        a('s_endpgm')

    def consumer(self):
        a, lab = self.a, self.lab
        lab('L_cons')
        a('s_mov_b32 s36, s8')
        a('s_mov_b32 s37, s9')
        a('s_mov_b32 s38, 3584')
        a('s_mov_b32 s39, 0x20000')
        a('s_mov_b32 s40, s28')
        a('s_mov_b32 s41, s29')
        a('s_mov_b32 s42, 3584')
        a('s_mov_b32 s43, 0x20000')
        a('s_mul_i32 s44, s2, 896')
        a('v_lshrrev_b32 v2, 2, v1')
        a('v_and_b32 v3, 3, v1')
        a('v_mul_u32_u24 v2, 28, v2')
        a('v_lshl_add_u32 v2, v3, 3, v2')
        for r in range(2):
            for ep in range(2):
                a(f'buffer_load_dword v{8+2*r+ep}, v2, s[36:39], s44 offen offset:{448*r+4*ep}')
        a('s_mov_b32 s46, 0x88888888')
        a('s_mov_b32 s47, 0x88888888')
        a(f's_mov_b32 s62, {f2u(1.0/448):#x}')
        a(f's_mov_b32 s63, {f2u(1e-5):#x}')
        a('s_waitcnt vmcnt(0)')
        XF = 12
        for i in range(4):
            self.unpack(XF + 2 * i, XF + 2 * i + 1, 8 + i)
        a(f'v_lshlrev_b32 v5, 4, v1')
        a(f'v_add_u32 v5, {TG}, v5')
        a('v_mul_u32_u24 v3, 12, v1')
        a(f'v_add_u32 v3, {L_TBL}, v3')
        TF = 160
        a(f's_mov_b32 s19, {SPIN}')
        lab('L_ct')
        for it in range(16):
            if it % 4 == 0 and it:
                a('v_add_u32 v5, 4096, v5')
            a(f'global_load_dwordx4 v[{TF+4*it}:{TF+4*it+3}], v5, s[32:33] offset:{1024*(it%4)} sc1')
        a('v_subrev_u32 v5, 12288, v5')
        a('s_sub_u32 s19, s19, 1')
        a('s_cbranch_scc1 L_exit')
        a('s_waitcnt vmcnt(0)')
        a(f'v_xor_b32 v9, s6, v{TF+3}')
        for it in range(1, 16):
            a(f'v_bitop3_b32 v9, v{TF+4*it+3}, s6, v9 bitop3:0xbe')
        a('v_cmp_ne_u32 vcc, 0, v9')
        a('s_cbranch_vccz L_ct2')
        a('s_sleep 32')
        a('s_branch L_ct')
        lab('L_ct2')
        for it in range(16):
            a(f'ds_write2_b32 v3, v{TF+4*it}, v{TF+4*it+1} offset0:0 offset1:1')
            a(f'ds_write_b32 v3, v{TF+4*it+2} offset:8')
            a('v_add_u32 v3, 768, v3')
        self.stamp(24)
        self.wait_done('L_cd')
        a('s_setprio 3')
        A = 20
        a(f's_mov_b32 s19, {SPIN}')
        a(f's_mov_b32 s45, {f2u(16.0):#x}')
        lab('L_cp')
        a(f'global_load_dwordx4 v[{A}:{A+3}], v4, s[32:33] sc1')
        a(f'global_load_dwordx4 v[{A+4}:{A+7}], v4, s[32:33] offset:1024 sc1')
        a('s_sub_u32 s19, s19, 1')
        a('s_cbranch_scc1 L_exit')
        a('s_waitcnt vmcnt(0)')
        a(f'v_cmp_eq_f32 vcc, s45, v{A+3}')
        a(f'v_cmp_eq_f32 s[48:49], s45, v{A+7}')
        a('s_and_b64 s[48:49], s[48:49], vcc')
        a('s_and_b64 s[48:49], s[48:49], s[46:47]')
        a('s_cmp_eq_u64 s[48:49], s[46:47]')
        a('s_cbranch_scc0 L_cp')
        self.stamp(26)
        P = 28
        Hh = 32
        Dd = 40
        S1, S2, PV, MO, RO = 48, 50, 52, 54, 56
        for i in range(4):
            a(f'v_cvt_pk_bf16_f32 v{P+i}, v{A+2*i}, v{A+2*i+1}')
        for i in range(4):
            self.unpack(A + 2 * i, A + 2 * i + 1, P + i)
        for i in range(4):
            a(f'v_pk_add_f32 v[{A+2*i}:{A+2*i+1}], v[{A+2*i}:{A+2*i+1}], v[{XF+2*i}:{XF+2*i+1}]')
        for i in range(4):
            a(f'v_cvt_pk_bf16_f32 v{P+i}, v{A+2*i}, v{A+2*i+1}')
        for i in range(4):
            self.unpack(Hh + 2 * i, Hh + 2 * i + 1, P + i)

        def sums(src, piv):
            if piv:
                a(f'v_readfirstlane_b32 s50, v{src}')
                a('s_nop 1')
                a(f'v_mov_b32 v{PV}, s50')
                for i in range(4):
                    a(f'v_pk_add_f32 v[{Dd+2*i}:{Dd+2*i+1}], v[{src+2*i}:{src+2*i+1}], v[{PV}:{PV+1}] op_sel_hi:[1,0] neg_lo:[0,1] neg_hi:[0,1]')
                s = Dd
            else:
                s = src
            for i in (2, 3, 6, 7):
                a(f'v_cndmask_b32 v{Dd+i}, v{s+i}, 0, s[46:47]')
            idx = [s, Dd + 2, s + 4, Dd + 6]
            a(f'v_pk_add_f32 v[{S1}:{S1+1}], v[{idx[0]}:{idx[0]+1}], v[{idx[1]}:{idx[1]+1}]')
            a(f'v_pk_mul_f32 v[{S2}:{S2+1}], v[{idx[0]}:{idx[0]+1}], v[{idx[0]}:{idx[0]+1}]')
            a(f'v_pk_add_f32 v[{S1}:{S1+1}], v[{S1}:{S1+1}], v[{idx[2]}:{idx[2]+1}]')
            a(f'v_pk_fma_f32 v[{S2}:{S2+1}], v[{idx[1]}:{idx[1]+1}], v[{idx[1]}:{idx[1]+1}], v[{S2}:{S2+1}]')
            a(f'v_pk_add_f32 v[{S1}:{S1+1}], v[{S1}:{S1+1}], v[{idx[3]}:{idx[3]+1}]')
            a(f'v_pk_fma_f32 v[{S2}:{S2+1}], v[{idx[2]}:{idx[2]+1}], v[{idx[2]}:{idx[2]+1}], v[{S2}:{S2+1}]')
            a(f'v_add_f32 v{S1}, v{S1}, v{S1+1}')
            a(f'v_pk_fma_f32 v[{S2}:{S2+1}], v[{idx[3]}:{idx[3]+1}], v[{idx[3]}:{idx[3]+1}], v[{S2}:{S2+1}]')
            a(f'v_add_f32 v{S2}, v{S2}, v{S2+1}')
            self.ladder64([S1, S2], [S1 + 1, S2 + 1])
            self.ln_stats(S1, S2, PV if piv else None, 58, 59, 62, 63, MO, RO)

        def norm(src, dst, keep_packed):
            for i in range(4):
                a(f'v_pk_add_f32 v[{dst+2*i}:{dst+2*i+1}], v[{src+2*i}:{src+2*i+1}], v[{MO}:{MO+1}] op_sel_hi:[1,0] neg_lo:[0,1] neg_hi:[0,1]')
            for i in range(4):
                a(f'v_cvt_pk_bf16_f32 v{P+i}, v{dst+2*i}, v{dst+2*i+1}')
            for i in range(4):
                self.unpack(dst + 2 * i, dst + 2 * i + 1, P + i)
            for i in range(4):
                a(f'v_pk_mul_f32 v[{dst+2*i}:{dst+2*i+1}], v[{dst+2*i}:{dst+2*i+1}], v[{RO}:{RO+1}] op_sel_hi:[1,0]')
            for i in range(4):
                a(f'v_cvt_pk_bf16_f32 v{P+i}, v{dst+2*i}, v{dst+2*i+1}')
            if not keep_packed:
                for i in range(4):
                    self.unpack(dst + 2 * i, dst + 2 * i + 1, P + i)

        sums(Hh, True)
        norm(Hh, A, False)
        sums(A, False)
        norm(A, A, True)
        I = 40
        a(f's_mov_b32 s50, {2*NTH}')
        a(f's_mov_b32 s51, {NTH}')
        for i in range(4):
            a(f'v_bfe_u32 v{A+2*i}, v{P+i}, 0, 15')
            a(f'v_bfe_u32 v{A+2*i+1}, v{P+i}, 16, 15')
            a(f'v_bfe_u32 v{I+2*i}, v{P+i}, 15, 1')
            a(f'v_lshrrev_b32 v{I+2*i+1}, 31, v{P+i}')
        for i in range(8):
            a(f'v_subrev_u32 v{A+i}, {E0 << 7}, v{A+i}')
        for i in range(8):
            a(f'v_min_u32 v{160+i}, {NTH-1}, v{A+i}')
            a(f'v_mul_u32_u24 v{I+i}, s50, v{I+i}')
        for i in range(8):
            a(f'v_lshl_add_u32 v{I+i}, v{160+i}, 1, v{I+i}')
        Y = 168
        for i in range(8):
            a(f'ds_read_u16 v{Y+i}, v{I+i} offset:{L_TBL}')
        for i in (2, 3, 6, 7):
            a(f'v_cndmask_b32 v{A+i}, v{A+i}, 0, s[46:47]')
        a(f'v_max3_u32 v48, v{A}, v{A+1}, v{A+2}')
        a(f'v_max3_u32 v48, v48, v{A+3}, v{A+4}')
        a(f'v_max3_u32 v48, v48, v{A+5}, v{A+6}')
        a(f'v_max_u32 v48, v48, v{A+7}')
        a('v_cmp_le_u32 vcc, s51, v48')
        a('s_waitcnt lgkmcnt(0)')
        a('s_cbranch_vccnz L_cslow')
        lab('L_cfin')
        for i in range(8):
            a(f'v_lshlrev_b32 v{Y+i}, 16, v{Y+i}')
        for i in range(4):
            a(f'v_pk_add_f32 v[{Y+2*i}:{Y+2*i+1}], v[{Y+2*i}:{Y+2*i+1}], v[{Hh+2*i}:{Hh+2*i+1}]')
        for i in range(4):
            a(f'v_cvt_pk_bf16_f32 v{P+i}, v{Y+2*i}, v{Y+2*i+1}')
        a(f'buffer_store_dword v{P}, v2, s[40:43], s44 offen')
        a(f'buffer_store_dword v{P+2}, v2, s[40:43], s44 offen offset:448')
        a('s_andn2_b64 exec, exec, s[46:47]')
        a(f'buffer_store_dword v{P+1}, v2, s[40:43], s44 offen offset:4')
        a(f'buffer_store_dword v{P+3}, v2, s[40:43], s44 offen offset:452')
        self.stamp(28)
        self.flush_stamps([(12, 24), (13, 26), (14, 28)])
        a('s_endpgm')
        lab('L_cslow')
        for i in range(8):
            u = self.u()
            a(f'v_cmp_le_u32 s[52:53], s51, v{A+i}')
            lab(f'L_cs{u}')
            a('s_cmp_eq_u64 s[52:53], 0')
            a(f's_cbranch_scc1 L_ce{u}')
            a('s_ff1_i32_b64 s54, s[52:53]')
            a('s_bitset0_b64 s[52:53], s54')
            a(f'v_readlane_b32 s70, v{P+i//2}, s54')
            a('s_nop 0')
            if i & 1:
                a('s_and_b32 s70, s70, 0xffff0000')
            else:
                a('s_lshl_b32 s70, s70, 16')
            a('s_mov_b32 s71, s70')
            a('s_call_b64 s[76:77], L_eval')
            a('s_nop 0')
            a('v_readfirstlane_b32 s55, v153')
            a('s_mov_b32 m0, s54')
            a('s_nop 3')
            a(f'v_writelane_b32 v{Y+i}, s55, m0')
            a(f's_branch L_cs{u}')
            lab(f'L_ce{u}')
        a('s_branch L_cfin')

    def build(self):
        a, lab = self.a, self.lab
        o = self.o
        o.append(HEADER.rstrip('\n'))
        o.append(f'; @launch grid=(256,1,1) block=(512,1,1) lds={L_END}')
        o.append('.amdgcn_target "amdgcn-amd-amdhsa--gfx950"')
        o.append('.text')
        o.append(f'.globl {KN}')
        o.append('.p2align 8')
        o.append(f'.type {KN},@function')
        lab(KN)
        a('s_cmp_ge_u32 s2, 256')
        a('s_cbranch_scc1 L_exit')
        self.stamp(78)
        a('s_load_dwordx16 s[8:23], s[0:1], 0')
        a('s_load_dwordx8 s[24:31], s[0:1], 64')
        a('s_load_dwordx2 s[32:33], s[0:1], 96')
        a('v_lshrrev_b32 v1, 6, v0')
        a('s_lshr_b32 s4, s2, 2')
        a('v_readfirstlane_b32 s3, v1')
        a('s_and_b32 s5, s2, 7')
        a('s_lshl_b32 s5, s5, 5')
        a('s_lshr_b32 s7, s2, 3')
        a('s_add_u32 s5, s5, s7')
        a('s_cmp_ge_u32 s3, 4')
        a('s_cbranch_scc1 L_helper')
        self.streamer()
        lab('L_helper')
        self.helper()
        lab('L_exit')
        a('s_endpgm')
        o.append('.section .rodata,"a"')
        o.append('.p2align 6')
        o.append(f'.amdhsa_kernel {KN}')
        o.append('  .amdhsa_next_free_vgpr 256')
        o.append('  .amdhsa_next_free_sgpr 102')
        o.append('  .amdhsa_accum_offset 256')
        o.append('  .amdhsa_group_segment_fixed_size 0')
        o.append('  .amdhsa_kernarg_size 104')
        o.append('  .amdhsa_user_sgpr_count 2')
        o.append('  .amdhsa_user_sgpr_kernarg_segment_ptr 1')
        o.append('  .amdhsa_system_sgpr_workgroup_id_x 1')
        o.append('.end_amdhsa_kernel')
        return '\n'.join(o) + '\n'


if __name__ == '__main__':
    out = sys.argv[1]
    opt = eval(sys.argv[2]) if len(sys.argv) > 2 else {}
    open(out, 'w').write(G(**opt).build())
```

```python
import sys, struct, math

KN = 'sequential_preLN__mha_block_cached__mixer_token_mlp__decode_kernel'
HEADER = open('sequential_preLN__mha_block_cached__mixer_token_mlp__decode.s.ref').read().split('; Override launch')[0]


def f2u(x):
    return struct.unpack('<I', struct.pack('<f', x))[0]


QG, OG, TG, ACC, RDY, TK = 0x0, 0x10000, 0x50000, 0x54000, 0x56000, 0x58000
STAMP = 256 << 20
L_FL2 = 576
L_FLG, L_CNT, L_NON, L_HDR, L_QL, L_QP, L_XN, L_OW, L_WOS, L_TBL, L_END = 0, 16, 20, 32, 64, 1024, 2048, 6144, 10752, 26112, 38400
E0 = 108
NTH = 3072
LOG2E = 1.4426950408889634
SPIN = 1 << 16


class G:
    def __init__(self, **opt):
        self.o = []
        self.opt = dict(stamps=False, wqf='nt', wof='nt', kvf='nt', dbg=False, pre=0, bar0=True, pace=8, exp='', LA=16, setC=False, NST=16, TP=8, psleep=0, vf=None)
        self.opt.update(opt)
        self.uid = 0

    def a(self, s):
        self.o.append('  ' + s)

    def lab(self, s):
        self.o.append(s + ':')

    def u(self):
        self.uid += 1
        return self.uid

    def nop(self, n):
        if n > 0:
            self.a(f's_nop {n-1}')

    def stamp(self, sreg):
        if self.opt['stamps']:
            self.a(f's_memrealtime s[{sreg}:{sreg+1}]')

    def dbgtime(self, slot_expr_sreg, base, atomic=False):
        if not self.opt['dbg']:
            return
        a = self.a
        a('s_memrealtime s[94:95]')
        a('s_and_b32 s96, s6, 0x3fff')
        a('s_lshr_b32 s97, s6, 2')
        a('s_and_b32 s97, s97, 0x0fffc000')
        a('s_or_b32 s96, s96, s97')
        a('s_waitcnt lgkmcnt(0)')
        a('s_sub_u32 s94, s94, s96')
        a('s_and_b32 s94, s94, 0x0fffffff')
        a('s_mov_b64 exec, 1')
        a('v_mov_b32 v250, s94')
        if slot_expr_sreg is None:
            a(f'v_mov_b32 v251, {4*base}')
        else:
            a(f's_lshl_b32 s95, s{slot_expr_sreg}, 2')
            a(f's_add_u32 s95, s95, {4*base}')
            a('v_mov_b32 v251, s95')
        if atomic:
            a('global_atomic_umax v251, v250, s[30:31]')
        else:
            a('global_store_dword v251, v250, s[30:31]')

    def vstamp(self, v):
        if self.opt['stamps']:
            self.a('s_memrealtime s[18:19]')
            self.a('s_waitcnt lgkmcnt(0)')
            self.a(f'v_mov_b32 v{v}, s18')
            self.a(f'v_mov_b32 v{v+1}, s19')

    def unvstamp(self, v, sreg):
        if self.opt['stamps']:
            self.a(f'v_readfirstlane_b32 s{sreg}, v{v}')
            self.a(f'v_readfirstlane_b32 s{sreg+1}, v{v+1}')
            self.a('s_nop 1')

    def flush_stamps(self, pairs, vt=250):
        if not self.opt['stamps']:
            return
        a = self.a
        a('s_waitcnt lgkmcnt(0)')
        a('s_mov_b64 exec, 1')
        a('s_lshl_b32 s7, s2, 8')
        a(f's_add_u32 s7, s7, {STAMP}')
        a(f'v_mov_b32 v{vt+2}, s7')
        for slot, sreg in pairs:
            a(f'v_mov_b32 v{vt}, s{sreg}')
            a(f'v_mov_b32 v{vt+1}, s{sreg+1}')
            a(f'global_store_dwordx2 v{vt+2}, v[{vt}:{vt+1}], s[32:33] offset:{8*slot}')
            a('s_nop 1')

    def bf16r(self, dst, src, tmp=None):
        t = dst if tmp is None else tmp
        self.a(f'v_cvt_pk_bf16_f32 v{t}, v{src}, v{src}')
        self.a(f'v_and_b32 v{dst}, 0xffff0000, v{t}')

    def unpack(self, lo, hi, p):
        self.a(f'v_lshlrev_b32 v{lo}, 16, v{p}')
        self.a(f'v_and_b32 v{hi}, 0xffff0000, v{p}')

    def ladder64(self, regs, tmps, op='v_add_f32'):
        a = self.a
        n = len(regs)
        for ror in (8, 4, 2, 1):
            self.nop(max(0, 2 - (n - 1)) if True else 0)
            for r in regs:
                a(f'{op}_dpp v{r}, v{r}, v{r} row_ror:{ror} row_mask:0xf bank_mask:0xf')
        for sw in ('v_permlane16_swap_b32', 'v_permlane32_swap_b32'):
            for r, t in zip(regs, tmps):
                a(f'v_mov_b32 v{t}, v{r}')
            self.nop(max(0, 2 - (n - 1)))
            for r, t in zip(regs, tmps):
                a(f'{sw} v{r}, v{t}')
            for r, t in zip(regs, tmps):
                a(f'{op} v{r}, v{r}, v{t}')

    def ln_stats(self, s1, s2, piv, t0, t1, sinv, seps, mout, rout):
        a = self.a
        a(f'v_mul_f32 v{s1}, s{sinv}, v{s1}')
        a(f'v_mul_f32 v{t0}, v{s1}, v{s1}')
        a(f'v_fma_f32 v{s2}, v{s2}, s{sinv}, -v{t0}')
        if piv is not None:
            a(f'v_add_f32 v{s1}, v{s1}, v{piv}')
        a(f'v_max_f32 v{s2}, 0, v{s2}')
        a(f'v_cvt_pk_bf16_f32 v{t0}, v{s1}, v{s2}')
        a(f'v_and_b32 v{t1}, 0xffff0000, v{t0}')
        a(f'v_lshlrev_b32 v{mout}, 16, v{t0}')
        a(f'v_add_f32 v{t1}, s{seps}, v{t1}')
        self.bf16r(t1, t1)
        a(f'v_sqrt_f32 v{t1}, v{t1}')
        a('s_nop 0')
        self.bf16r(t1, t1)
        a(f'v_rcp_f32 v{rout}, v{t1}')
        a('s_nop 0')

    def ld(self, R, n, sreg):
        j = n & 7
        srd = 's[36:39]' if n < 8 else 's[40:43]'
        self.a(f'buffer_load_dwordx4 v[{R+4*n}:{R+4*n+3}], v{2+j}, {srd}, s{sreg} offen {self.opt["kvf"] if (n < 8 or self.opt["vf"] is None) else self.opt["vf"]}')

    def chunk(self, R, issue, wait):
        a = self.a
        LA = self.opt['LA']

        NST, TP = self.opt['NST'], self.opt['TP']
        pool0 = 4 * NST * 0x8000
        npool = (16 - NST) * 16

        def hooks(n):
            if not issue:
                return
            if NST < 16 and n == (16 - LA - TP) % 16:
                u = self.u()
                lim = 1 if 16 - LA - TP >= 0 else 2
                a(f's_cmp_gt_u32 s45, {lim}')
                a(f's_cbranch_scc1 L_nt{u}')
                a('s_mov_b32 s50, 1')
                a('s_mov_b32 s51, 0')
                a('s_atomic_add_x2 s[50:51], s[52:53], 0x0 glc')
                self.lab(f'L_nt{u}')
            if n == 16 - LA:
                u = self.u()
                a('s_add_u32 s44, s47, 0x8000')
                a('s_cmp_gt_u32 s45, 1')
                a(f's_cbranch_scc1 L_st{u}')
                if NST < 16:
                    a('s_waitcnt lgkmcnt(0)')
                    a('s_cmp_lg_u32 s51, s6')
                    a('s_cbranch_scc1 L_tkretry')
                    self.lab('L_tkok')
                    a('s_lshr_b32 s48, s50, 2')
                    a('s_lshl_b32 s48, s48, 15')
                    a('s_and_b32 s49, s50, 3')
                    a('s_lshl_b32 s49, s49, 10')
                    a('s_add_u32 s48, s48, s49')
                    a('s_add_u32 s48, s48, s54')
                    a(f's_cmp_lt_u32 s50, {npool}')
                    a('s_cselect_b32 s44, s48, 0x200000')
                else:
                    a('s_mov_b32 s44, 0x200000')
                self.lab(f'L_st{u}')

        def iss(n):
            hooks(n)
            if issue:
                t = n + LA
                if t < 16:
                    self.ld(R, t, 47)
                else:
                    self.ld(R, t - 16, 44)
        if 'nocompute' in self.opt['exp']:
            for n in range(16):
                if wait: a(f's_waitcnt vmcnt({LA-1})')
                iss(n)
            return
        kvf = self.opt['kvf']
        Q, AC, S = 10, 14, 22
        X, C, C2, MN, AL, E, E1, PA0, PB0, PA1, PB1 = 30, 31, 32, 33, 34, 35, 36, 37, 38, 39, 42
        M, L = 40, 41
        SU, SU2 = 43, 44
        KR = lambda j: R + 4 * j
        VR = lambda j: R + 32 + 4 * j
        for j in range(8):
            if wait:
                a(f's_waitcnt vmcnt({LA-1})')
            k = KR(j)
            a(f'v_dot2_f32_bf16 v{S+j}, v{k}, v{Q}, 0')
            for i in range(1, 4):
                a(f'v_dot2_f32_bf16 v{S+j}, v{k+i}, v{Q+i}, v{S+j}')
            iss(j)
        for p in range(4):
            a(f'v_add_f32_dpp v{S+2*p}, v{S+2*p}, v{S+2*p} row_ror:8 row_mask:0xf bank_mask:0x3')
            a(f'v_add_f32_dpp v{S+2*p}, v{S+2*p+1}, v{S+2*p+1} row_ror:8 row_mask:0xf bank_mask:0xc')
        for p in (0, 4):
            a(f'v_add_f32_dpp v{S+p}, v{S+p}, v{S+p} row_half_mirror row_mask:0xf bank_mask:0x5')
            a(f'v_add_f32_dpp v{S+p}, v{S+p+2}, v{S+p+2} row_half_mirror row_mask:0xf bank_mask:0xa')
        self.nop(2)
        a(f'v_permlane16_swap_b32 v{S}, v{S+4}')
        a(f'v_add_f32 v{S}, v{S}, v{S+4}')
        self.nop(2)
        a(f'v_add_f32_dpp v{S}, v{S}, v{S} quad_perm:[1,0,3,2] row_mask:0xf bank_mask:0xf')
        self.nop(2)
        a(f'v_add_f32_dpp v{S}, v{S}, v{S} quad_perm:[2,3,0,1] row_mask:0xf bank_mask:0xf')
        self.bf16r(X, S)
        self.nop(2)
        a(f'v_max_f32_dpp v{C}, v{X}, v{X} row_ror:8 row_mask:0xf bank_mask:0xf')
        self.nop(2)
        a(f'v_max_f32_dpp v{C}, v{C}, v{C} row_half_mirror row_mask:0xf bank_mask:0xf')
        for sw in ('v_permlane16_swap_b32', 'v_permlane32_swap_b32'):
            a(f'v_mov_b32 v{C2}, v{C}')
            self.nop(2)
            a(f'{sw} v{C}, v{C2}')
            a(f'v_max_f32 v{C}, v{C}, v{C2}')
        a(f'v_mul_f32 v{C}, s46, v{C}')
        a(f'v_max_f32 v{MN}, v{M}, v{C}')
        a(f'v_fma_f32 v{E}, v{X}, s46, -v{MN}')
        a(f'v_sub_f32 v{AL}, v{M}, v{MN}')
        a(f'v_exp_f32 v{E}, v{E}')
        a(f'v_exp_f32 v{AL}, v{AL}')
        a(f'v_mov_b32 v{M}, v{MN}')
        a(f'v_mov_b32 v{E1}, v{E}')
        for i in range(2):
            a(f'v_mul_f32 v{AC+i}, v{AC+i}, v{AL}')
        a(f'v_permlane16_swap_b32 v{E}, v{E1}')
        for i in range(2, 8):
            a(f'v_mul_f32 v{AC+i}, v{AC+i}, v{AL}')
        a(f'v_cvt_pk_bf16_f32 v{PA0}, v{E}, 0')
        a(f'v_cvt_pk_bf16_f32 v{PB0}, 0, v{E}')
        a(f'v_cvt_pk_bf16_f32 v{PA1}, v{E1}, 0')
        a(f'v_cvt_pk_bf16_f32 v{PB1}, 0, v{E1}')
        a(f'v_add_f32 v{SU}, v{E}, v{E1}')
        a(f'v_mul_f32 v{L}, v{L}, v{AL}')
        extra = [
            [f'v_add_f32_dpp v{SU}, v{SU}, v{SU} row_ror:8 row_mask:0xf bank_mask:0xf'],
            [f'v_add_f32_dpp v{SU}, v{SU}, v{SU} row_half_mirror row_mask:0xf bank_mask:0xf'],
            [f'v_mov_b32 v{SU2}, v{SU}'],
            [f'v_permlane32_swap_b32 v{SU}, v{SU2}', f'v_add_f32 v{L}, v{L}, v{SU}', f'v_add_f32 v{L}, v{L}, v{SU2}'],
        ]
        for j in range(8):
            if wait:
                a(f's_waitcnt vmcnt({LA-1})')
            v = VR(j)
            pa, pb = (PA0, PB0) if j < 4 else (PA1, PB1)
            n = 8 * (j & 1) + 4 * ((j >> 1) & 1)
            for i in range(4):
                a(f'v_dot2c_f32_bf16_dpp v{AC+2*i}, v{pa}, v{v+i} row_newbcast:{n} row_mask:0xf bank_mask:0xf')
                a(f'v_dot2c_f32_bf16_dpp v{AC+2*i+1}, v{pb}, v{v+i} row_newbcast:{n} row_mask:0xf bank_mask:0xf')
            iss(8 + j)
            if j < len(extra):
                for s in extra[j]:
                    a(s)

    def issue_set(self, R, bar=-1, done=0, cnt=16):
        for n in range(cnt):
            if n == bar:
                self.a('s_barrier')
            if self.opt['pace'] and done + n >= self.opt['pace']:
                self.a(f's_waitcnt vmcnt({self.opt["pace"]-1})')
            self.ld(R, n, 44)

    def streamer(self):
        a, lab = self.a, self.lab
        RA, RB = 48, 112
        a('v_lshlrev_b32 v2, 4, v0')
        for j in range(1, 8):
            a(f'v_add_u32 v{2+j}, {4096*j}, v2')
        NST = self.opt['NST']
        a('s_lshl_b32 s7, s4, 21')
        a('s_mov_b32 s38, 0x200000')
        a('s_mov_b32 s39, 0x20000')
        a('s_mov_b32 s42, 0x200000')
        a('s_mov_b32 s43, 0x20000')
        a('s_and_b32 s44, s2, 3')
        a(f's_mul_i32 s44, s44, {NST*0x8000}')
        a('s_memrealtime s[48:49]')
        a('s_or_b32 s47, s2, s3')
        a('v_lshlrev_b32 v11, 6, v0')
        a('s_waitcnt lgkmcnt(0)')
        a('s_cmp_lg_u32 s47, 0')
        a('s_cbranch_scc1 L_sn0')
        a('s_and_b32 s49, s48, 0x3fff')
        a('s_lshl_b32 s48, s48, 2')
        a('s_and_b32 s48, s48, 0xbfff0000')
        a('s_or_b32 s48, s48, s49')
        a('s_or_b32 s48, s48, 0x8000')
        a('v_mov_b32 v10, s48')
        a('s_mov_b64 exec, 15')
        a('global_store_dword v11, v10, s[30:31] sc1')
        a('s_mov_b64 exec, -1')
        lab('L_sn0')
        if 'nohelp' in self.opt['exp']:
            a('v_mov_b32 v10, 0')
            a(f'ds_write_b32 v10, v10 offset:{L_CNT}')
        a('s_add_u32 s36, s10, s7')
        a('s_addc_u32 s37, s11, 0')
        a('s_add_u32 s40, s12, s7')
        a('s_addc_u32 s41, s13, 0')
        RC = 176
        setC = self.opt['setC']
        self.issue_set(RB, self.opt['pre'] if self.opt['bar0'] else -1)
        off = 0x8000
        done = 16
        if setC:
            a('s_add_u32 s44, s44, 0x8000')
            self.issue_set(RC, -1, done)
            off += 0x8000
            done += 16
        a('s_add_u32 s44, s44, 0x8000')
        a('s_load_dword s6, s[30:31], 192')
        self.issue_set(RA, -1, done, self.opt['LA'])
        a('s_mov_b32 s47, s44')
        a('s_lshl_b32 s48, s4, 8')
        a(f's_add_u32 s48, s48, {TK}')
        a('s_add_u32 s52, s32, s48')
        a('s_addc_u32 s53, s33, 0')
        a('s_lshl_b32 s54, s3, 10')
        a(f's_sub_u32 s54, {4*NST*0x8000}, s54')
        a('s_setprio 2')
        for i in range(8):
            a(f'v_mov_b32 v{14+i}, 0')
        a('v_mov_b32 v40, 0xff800000')
        a('v_mov_b32 v41, 0')
        a(f's_mov_b32 s46, {f2u(LOG2E/16.0):#x}')
        niter = NST - (2 if setC else 1)
        a(f's_mov_b32 s45, {niter}')
        a('v_and_b32 v45, 31, v0')
        a('v_lshlrev_b32 v46, 4, v45')
        a('v_mov_b32 v30, 0')
        self.stamp(80)
        a(f's_mov_b32 s48, {SPIN}')
        a('s_waitcnt lgkmcnt(0)')
        lab('L_snw')
        a('s_cmp_lg_u32 s6, 0')
        a('s_cbranch_scc1 L_sqw')
        a('s_sub_u32 s48, s48, 1')
        a('s_cbranch_scc1 L_exit')
        a('global_load_dword v31, v30, s[30:31] sc1')
        a('s_waitcnt vmcnt(0)')
        a('v_readfirstlane_b32 s6, v31')
        a('s_nop 0')
        a('s_branch L_snw')
        lab('L_sqs')
        a('s_sleep 1')
        lab('L_sqw')
        a(f'ds_read_b128 v[32:35], v30 offset:{L_FL2}')
        a(f'ds_read_b128 v[10:13], v46 offset:{L_QL}')
        a('s_sub_u32 s48, s48, 1')
        a('s_cbranch_scc1 L_exit')
        a('s_waitcnt lgkmcnt(0)')
        a('v_xor_b32 v32, s6, v32')
        a('v_bitop3_b32 v32, v33, s6, v32 bitop3:0xbe')
        a('v_bitop3_b32 v32, v34, s6, v32 bitop3:0xbe')
        a('v_bitop3_b32 v32, v35, s6, v32 bitop3:0xbe')
        a('v_cmp_eq_u32 vcc, 0, v32')
        a('v_mov_b32 v47, s6')
        if 'nohelp' not in self.opt['exp']:
            a('s_cbranch_vccz L_sqs')
        self.stamp(82)
        if self.opt['dbg']:
            self.dbgtime(None, 9, True)
            a('s_mov_b64 exec, -1')
            a('s_waitcnt vmcnt(0)')
        if self.opt['stamps']:
            a('s_memtime s[90:91]')
        lab('L_sloop')
        self.chunk(RA, True, True)
        a('s_mov_b32 s47, s44')
        a(f's_cmp_eq_u32 s45, {niter}')
        a('s_cbranch_scc1 L_sB')
        if setC:
            a(f's_cmp_eq_u32 s45, {niter-1}')
            a('s_cbranch_scc1 L_sC')
        lab('L_sback')
        a('s_sub_u32 s45, s45, 1')
        a('s_max_i32 s45, s45, 1')
        a('s_cmp_lt_u32 s47, 0x200000')
        a('s_cbranch_scc1 L_sloop')
        self.stamp(84)
        if self.opt['stamps']:
            a('s_memtime s[92:93]')
        AC = 14
        a('v_lshlrev_b32 v46, 5, v45')
        a('v_bfe_u32 v30, v0, 5, 1')
        a('v_lshl_add_u32 v46, v30, 4, v46')
        a('s_lshl_b32 s7, s3, 10')
        a('v_add_u32 v46, s7, v46')
        for i in range(4):
            a(f'v_permlane32_swap_b32 v{AC+i}, v{AC+4+i}')
        for i in range(4):
            a(f'v_add_f32 v{AC+i}, v{AC+i}, v{AC+4+i}')
        a('s_lshl_b32 s7, s3, 3')
        a('v_mov_b32 v30, s7')
        a(f'ds_write_b128 v46, v[{AC}:{AC+3}] offset:{L_OW}')
        a(f'ds_write_b64 v30, v[40:41] offset:{L_HDR}')
        a('v_mov_b32 v31, 0')
        a('v_mov_b32 v32, 1')
        a('s_mov_b64 exec, 1')
        a('s_waitcnt lgkmcnt(0)')
        a(f'ds_add_rtn_u32 v33, v31, v32 offset:{L_CNT}')
        a('s_mov_b64 exec, -1')
        a('v_and_b32 v34, 63, v0')
        a('v_mul_u32_u24 v35, 24, v34')
        a('s_waitcnt lgkmcnt(0)')
        a('v_readfirstlane_b32 s7, v33')
        a('s_nop 0')
        a('s_cmp_lg_u32 s7, 3')
        if self.opt['stamps']:
            a('s_cbranch_scc1 L_sexit')
        else:
            a('s_cbranch_scc1 L_exit')
        H = 180
        a(f'ds_read_b128 v[{H}:{H+3}], v31 offset:{L_HDR}')
        a(f'ds_read_b128 v[{H+4}:{H+7}], v31 offset:{L_HDR+16}')
        D = 188
        for w in range(4):
            for e in range(3):
                a(f'ds_read_b64 v[{D+6*w+2*e}:{D+6*w+2*e+1}], v35 offset:{L_OW+1024*w+8*e}')
        a('s_and_b32 s48, s4, 15')
        a('s_lshl_b32 s48, s48, 4')
        a('s_lshr_b32 s49, s4, 4')
        a('s_lshl2_add_u32 s48, s49, s48')
        a('s_and_b32 s49, s2, 3')
        a('s_add_u32 s48, s48, s49')
        a('s_lshl_b32 s48, s48, 10')
        a(f's_add_u32 s48, s48, {OG}')
        a('v_lshl_add_u32 v36, v34, 4, s48')
        a('s_waitcnt lgkmcnt(12)')
        a(f'v_max3_f32 v30, v{H}, v{H+2}, v{H+4}')
        a(f'v_max_f32 v30, v30, v{H+6}')
        for w in range(4):
            a(f'v_sub_f32 v{H+2*w}, v{H+2*w}, v30')
        for w in range(4):
            a(f'v_exp_f32 v{H+2*w}, v{H+2*w}')
        a('s_nop 0')
        a(f'v_mul_f32 v31, v{H}, v{H+1}')
        for w in range(1, 4):
            a(f'v_fmac_f32 v31, v{H+2*w}, v{H+2*w+1}')
        a('v_rcp_f32 v32, v31')
        a('v_log_f32 v33, v31')
        a('v_cmp_eq_u32 s[50:51], 42, v34')
        a('v_cmp_gt_u32 vcc, 43, v34')
        for w in range(4):
            a(f'v_mul_f32 v{H+2*w}, v{H+2*w}, v32')
        a('v_add_f32 v33, v33, v30')
        a('s_waitcnt lgkmcnt(0)')
        for e in range(6):
            a(f'v_mul_f32 v{22+e}, v{H}, v{D+e}')
        for w in range(1, 4):
            for e in range(6):
                a(f'v_fmac_f32 v{22+e}, v{H+2*w}, v{D+6*w+e}')
        a('v_cvt_pk_bf16_f32 v44, v22, v23')
        a('v_cvt_pk_bf16_f32 v45, v24, v25')
        a('v_cvt_pk_bf16_f32 v46, v26, v27')
        a('v_cndmask_b32 v44, 0, v44, vcc')
        a('v_cndmask_b32 v45, 0, v45, vcc')
        a('v_cndmask_b32 v46, 0, v46, vcc')
        a('v_cndmask_b32 v46, v46, v33, s[50:51]')
        a('s_mov_b32 exec_lo, -1')
        a('s_mov_b32 exec_hi, 0xfff')
        a('global_store_dwordx4 v36, v[44:47], s[32:33] sc1')
        self.stamp(86)
        self.dbgtime(None, 8, True)
        if self.opt['stamps']:
            self.flush_stamps([(3, 86)])
            lab('L_sexit')
            a('s_cmp_lg_u32 s3, 0')
            a('s_cbranch_scc1 L_exit')
            a('s_getreg_b32 s88, hwreg(HW_REG_XCC_ID)')
            a('s_and_b32 s88, s88, 15')
            a('s_mov_b32 s89, 0')
            a('s_sub_u32 s90, s92, s90')
            a('s_mov_b32 s91, 0')
            self.flush_stamps([(0, 78), (1, 80), (2, 82), (8, 84), (6, 88), (7, 90)])
        a('s_endpgm')
        if NST < 16:
            lab('L_tkretry')
            a(f's_mov_b32 s48, {SPIN}')
            lab('L_tkr2')
            a('s_sleep 8')
            a('s_mov_b32 s50, 1')
            a('s_mov_b32 s51, 0')
            a('s_atomic_add_x2 s[50:51], s[52:53], 0x0 glc')
            a('s_sub_u32 s48, s48, 1')
            a('s_cbranch_scc1 L_exit')
            a('s_waitcnt lgkmcnt(0)')
            a('s_cmp_lg_u32 s51, s6')
            a('s_cbranch_scc1 L_tkr2')
            a('s_branch L_tkok')
        lab('L_sB')
        if 'noBC' in self.opt['exp']:
            a('s_branch L_sback')
        self.chunk(RB, False, False)
        a('s_branch L_sback')
        if setC:
            lab('L_sC')
            if 'noBC' in self.opt['exp']:
                a('s_branch L_sback')
            self.chunk(RC, False, False)
            a('s_branch L_sback')

    W1, B1, W2P, C1P, ET, EA = 64, 92, 120, 134, 136, 152

    def eval_sub(self):
        a = self.a
        W1, B1, W2P, C1P, ET, EA = self.W1, self.B1, self.W2P, self.C1P, self.ET, self.EA
        self.lab('L_eval')
        a(f'v_mov_b32 v{EA}, 0')
        for base in range(0, 14, 2):
            prs = [(base, ET), (base + 1, ET + 6)]
            for p, t in prs:
                a(f'v_pk_mul_f32 v[{t}:{t+1}], v[{W1+2*p}:{W1+2*p+1}], s[70:71]')
            for p, t in prs:
                a(f'v_cvt_pk_bf16_f32 v{t+4}, v{t}, v{t+1}')
            for p, t in prs:
                self.unpack(t, t + 1, t + 4)
            for p, t in prs:
                a(f'v_pk_add_f32 v[{t}:{t+1}], v[{t}:{t+1}], v[{B1+2*p}:{B1+2*p+1}]')
            for p, t in prs:
                a(f'v_cvt_pk_bf16_f32 v{t+4}, v{t}, v{t+1}')
            for p, t in prs:
                self.unpack(t, t + 1, t + 4)
            for p, t in prs:
                a(f'v_pk_mul_f32 v[{t+2}:{t+3}], v[{t}:{t+1}], v[{t}:{t+1}]')
            for p, t in prs:
                a(f'v_pk_fma_f32 v[{t+2}:{t+3}], v[{t+2}:{t+3}], s[72:73], v[{C1P}:{C1P+1}]')
            for p, t in prs:
                a(f'v_pk_mul_f32 v[{t+2}:{t+3}], v[{t+2}:{t+3}], v[{t}:{t+1}]')
            for p, t in prs:
                a(f'v_exp_f32 v{t+2}, v{t+2}')
                a(f'v_exp_f32 v{t+3}, v{t+3}')
            a('s_nop 0')
            for p, t in prs:
                a(f'v_add_f32 v{t+2}, 1.0, v{t+2}')
                a(f'v_add_f32 v{t+3}, 1.0, v{t+3}')
            for p, t in prs:
                a(f'v_rcp_f32 v{t+2}, v{t+2}')
                a(f'v_rcp_f32 v{t+3}, v{t+3}')
            a('s_nop 0')
            for p, t in prs:
                a(f'v_pk_mul_f32 v[{t}:{t+1}], v[{t}:{t+1}], v[{t+2}:{t+3}]')
            for p, t in prs:
                a(f'v_cvt_pk_bf16_f32 v{t+4}, v{t}, v{t+1}')
            for p, t in prs:
                a(f'v_dot2c_f32_bf16 v{EA}, v{t+4}, v{W2P+p}')
        self.nop(2)
        self.ladder64([EA], [ET])
        self.bf16r(EA, EA)
        a(f'v_add_f32 v{EA}, s74, v{EA}')
        a(f'v_cvt_pk_bf16_f32 v153, v{EA}, 0')
        a('s_setpc_b64 s[76:77]')

    def helper(self):
        a, lab = self.a, self.lab
        opt = self.opt
        if 'nohelp' in opt['exp']:
            a('s_endpgm')
        self.stamp(90)
        a('s_setprio 3')
        a('s_sub_u32 s34, s3, 4')
        a('v_and_b32 v1, 63, v0')
        a('v_lshrrev_b32 v2, 4, v1')
        a('v_and_b32 v3, 15, v1')
        a('v_mul_u32_u24 v4, 896, v2')
        a('v_lshl_add_u32 v4, v3, 4, v4')
        a('v_cmp_gt_u32 s[60:61], 14, v3')
        a('v_bfrev_b32 v7, 1')
        a('v_lshrrev_b32 v5, 2, v1')
        a('v_and_b32 v6, 3, v1')
        a('v_cndmask_b32 v4, v7, v4, s[60:61]')
        a('v_cmp_gt_u32 vcc, 56, v1')
        a('v_lshlrev_b32 v56, 16, v5')
        a('v_lshl_add_u32 v56, v6, 3, v56')
        a('v_cndmask_b32 v56, v7, v56, vcc')
        for r in range(4):
            a(f's_add_u32 s{40+r}, s34, {r}')
            a(f's_and_b32 s{40+r}, s{40+r}, 3')
            a(f's_mul_i32 s{40+r}, s{40+r}, 224')
        a(f's_mul_i32 s48, s34, {112*8192}')
        a('s_lshl_b32 s49, s5, 5')
        a('s_add_u32 s48, s48, s49')
        for it in range(1, 8):
            a(f's_add_u32 s{48+it}, s48, {8192*it}')
        a('s_mov_b32 s38, 3584')
        a('s_mov_b32 s39, 0x20000')
        a('s_mov_b32 s46, 3670016')
        a('s_mov_b32 s47, 0x20000')
        a('s_waitcnt lgkmcnt(0)')
        self.stamp(92)
        a('s_mov_b32 s36, s8')
        a('s_mov_b32 s37, s9')
        a('s_mov_b32 s44, s14')
        a('s_mov_b32 s45, s15')
        for r in range(4):
            a(f'buffer_load_dwordx4 v[{8+4*r}:{11+4*r}], v4, s[36:39], s{40+r} offen')
        WR = 60
        for it in range(8):
            if 'nowq' in opt['exp']:
                a(f'buffer_load_dwordx2 v[{WR+2*it}:{WR+2*it+1}], v7, s[44:47], s{48+it} offen')
                continue
            a(f'buffer_load_dwordx2 v[{WR+2*it}:{WR+2*it+1}], v56, s[44:47], s{48+it} offen {opt["wqf"]}')
        self.stamp(94)
        if opt['bar0']:
            a('s_barrier')
        a(f's_mov_b32 s62, {f2u(1.0/448):#x}')
        a(f's_mov_b32 s63, {f2u(1e-5):#x}')
        a('s_mov_b32 s64, 0x05040100')
        a('s_mov_b32 s65, 0x07060302')
        a('s_lshl_b32 s18, s34, 10')
        a('v_lshl_add_u32 v57, v1, 4, s18')
        a('v_lshl_add_u32 v58, v5, 4, s18')
        self.vstamp(226)
        if self.opt['stamps']:
            for i in range(6):
                a(f'v_mov_b32 v{220+i}, s{90+i}')
        a('s_waitcnt vmcnt(8)')
        self.vstamp(228)
        XF = 24
        for i in range(16):
            self.unpack(XF + 2 * i, XF + 2 * i + 1, 8 + i)
        PV, S1, S2, DT = 76, 78, 80, 82
        a('s_nop 0')
        a(f'v_mov_b32_dpp v{PV}, v{XF} row_newbcast:0 row_mask:0xf bank_mask:0xf')
        for i in range(16):
            d = DT + 2 * (i & 1)
            a(f'v_pk_add_f32 v[{d}:{d+1}], v[{XF+2*i}:{XF+2*i+1}], v[{PV}:{PV+1}] op_sel_hi:[1,0] neg_lo:[0,1] neg_hi:[0,1]')
            if i == 0:
                a(f'v_pk_mul_f32 v[{S2}:{S2+1}], v[{d}:{d+1}], v[{d}:{d+1}]')
                a(f'v_mov_b32 v{S1}, v{d}')
                a(f'v_mov_b32 v{S1+1}, v{d+1}')
            else:
                a(f'v_pk_fma_f32 v[{S2}:{S2+1}], v[{d}:{d+1}], v[{d}:{d+1}], v[{S2}:{S2+1}]')
                a(f'v_pk_add_f32 v[{S1}:{S1+1}], v[{S1}:{S1+1}], v[{d}:{d+1}]')
        a(f'v_add_f32 v{S1}, v{S1}, v{S1+1}')
        a(f'v_add_f32 v{S2}, v{S2}, v{S2+1}')
        a(f'v_cndmask_b32 v{S1}, 0, v{S1}, s[60:61]')
        a(f'v_cndmask_b32 v{S2}, 0, v{S2}, s[60:61]')
        for ror in (8, 4, 2, 1):
            a('s_nop 0')
            a(f'v_add_f32_dpp v{S1}, v{S1}, v{S1} row_ror:{ror} row_mask:0xf bank_mask:0xf')
            a(f'v_add_f32_dpp v{S2}, v{S2}, v{S2} row_ror:{ror} row_mask:0xf bank_mask:0xf')
        MO, RO = 86, 88
        self.ln_stats(S1, S2, PV, 84, 85, 62, 63, MO, RO)
        for i in range(4):
            a(f'v_pk_add_f32 v[{XF+2*i}:{XF+2*i+1}], v[{XF+2*i}:{XF+2*i+1}], v[{MO}:{MO+1}] op_sel_hi:[1,0] neg_lo:[0,1] neg_hi:[0,1]')
        for i in range(4):
            a(f'v_cvt_pk_bf16_f32 v{8+i}, v{XF+2*i}, v{XF+2*i+1}')
        for i in range(4):
            self.unpack(XF + 2 * i, XF + 2 * i + 1, 8 + i)
        for i in range(4):
            a(f'v_pk_mul_f32 v[{XF+2*i}:{XF+2*i+1}], v[{XF+2*i}:{XF+2*i+1}], v[{RO}:{RO+1}] op_sel_hi:[1,0]')
        for i in range(4):
            a(f'v_cvt_pk_bf16_f32 v{8+i}, v{XF+2*i}, v{XF+2*i+1}')
        a(f'ds_write_b128 v57, v[8:11] offset:{L_XN}')
        a('s_waitcnt lgkmcnt(0)')
        a('s_load_dword s6, s[30:31], 0')
        XN = 8
        for b in range(4):
            a(f'ds_read_b128 v[{XN+4*b}:{XN+4*b+3}], v58 offset:{L_XN+256*b}')
        self.vstamp(230)
        a('s_waitcnt vmcnt(0)')
        self.vstamp(232)
        PP = 24
        for p in range(4):
            for dw in range(2):
                a(f'v_perm_b32 v{PP+4*p+2*dw}, v{WR+4*p+2+dw}, v{WR+4*p+dw}, s64')
                a(f'v_perm_b32 v{PP+4*p+2*dw+1}, v{WR+4*p+2+dw}, v{WR+4*p+dw}, s65')
        a('s_waitcnt lgkmcnt(0)')
        QA = 40
        for p in range(4):
            for b in range(4):
                for e in range(4):
                    src2 = '0' if p == 0 else f'v{QA+4*b+e}'
                    a(f'v_dot2_f32_bf16 v{QA+4*b+e}, v{PP+4*p+e}, v{XN+4*b+p}, {src2}')
        for v in range(0, 16, 2):
            a(f'v_add_f32_dpp v{QA+v}, v{QA+v}, v{QA+v} row_shl:4 row_mask:0xf bank_mask:0x5')
            a(f'v_add_f32_dpp v{QA+v}, v{QA+v+1}, v{QA+v+1} row_shr:4 row_mask:0xf bank_mask:0xa')
        for v in range(0, 16, 4):
            a(f'v_add_f32_dpp v{QA+v}, v{QA+v}, v{QA+v} row_ror:8 row_mask:0xf bank_mask:0x3')
            a(f'v_add_f32_dpp v{QA+v}, v{QA+v+2}, v{QA+v+2} row_ror:8 row_mask:0xf bank_mask:0xc')
        a('s_lshl_b32 s18, s34, 8')
        a('v_lshl_add_u32 v57, v1, 2, s18')
        a(f'v_permlane16_swap_b32 v{QA}, v{QA+4}')
        a(f'v_permlane16_swap_b32 v{QA+8}, v{QA+12}')
        a(f'v_add_f32 v{QA}, v{QA}, v{QA+4}')
        a(f'v_add_f32 v{QA+8}, v{QA+8}, v{QA+12}')
        self.nop(2)
        a(f'v_permlane32_swap_b32 v{QA}, v{QA+8}')
        a(f'v_add_f32 v{QA}, v{QA}, v{QA+8}')
        a(f'ds_write_b32 v57, v{QA} offset:{L_QP}')
        self.vstamp(234)
        for sec in (1, 2, 3):
            a('s_waitcnt lgkmcnt(0)')
            a('s_cmp_lg_u32 s6, 0')
            a('s_cbranch_scc1 L_hnok')
            a('s_sleep 4')
            a(f's_load_dword s6, s[30:31], {64*sec}')
        a(f's_mov_b32 s19, {SPIN}')
        a('v_mov_b32 v58, 0')
        a('s_waitcnt lgkmcnt(0)')
        lab('L_hnw')
        a('s_cmp_lg_u32 s6, 0')
        a('s_cbranch_scc1 L_hnok')
        a('s_sub_u32 s19, s19, 1')
        a('s_cbranch_scc1 L_exit')
        a('global_load_dword v59, v58, s[30:31] sc1')
        a('s_waitcnt vmcnt(0)')
        a('v_readfirstlane_b32 s6, v59')
        a('s_nop 0')
        a('s_branch L_hnw')
        lab('L_hnok')
        self.vstamp(236)
        a('s_lshl_b32 s18, s34, 2')
        a('v_mov_b32 v58, s18')
        a('v_mov_b32 v59, s6')
        a(f'ds_write_b32 v58, v59 offset:{L_FLG}')
        a('s_and_b32 s35, s4, 15')
        a('s_lshl_b32 s35, s35, 2')
        a('s_lshr_b32 s7, s4, 4')
        a('s_add_u32 s35, s35, s7')
        a('s_lshl_b32 s35, s35, 10')
        a('s_lshl_b32 s7, s34, 8')
        a('s_add_u32 s35, s35, s7')
        a('s_add_u32 s100, s32, s35')
        a('s_addc_u32 s101, s33, 0')
        a('s_cmp_lg_u32 s34, 0')
        a('s_cbranch_scc1 L_hq')
        a('v_mov_b32 v58, 0')
        a(f'ds_write_b32 v58, v58 offset:{L_CNT}')
        a('v_lshlrev_b32 v57, 2, v1')
        a('s_lshr_b32 s18, s5, 4')
        a('s_lshl_b32 s18, s18, 12')
        a('s_and_b32 s19, s5, 15')
        a('s_lshl_b32 s19, s19, 6')
        a('s_add_u32 s18, s18, s19')
        a('v_lshrrev_b32 v8, 4, v1')
        a('v_lshlrev_b32 v8, 10, v8')
        a('v_bfe_u32 v9, v1, 1, 1')
        a('v_lshl_add_u32 v8, v9, 4, v8')
        a('v_bfe_u32 v9, v1, 3, 1')
        a('v_lshl_add_u32 v8, v9, 5, v8')
        a('v_add_u32 v8, s18, v8')
        a(f's_mov_b32 s19, {SPIN}')
        lab('L_hfw')
        a(f'ds_read_b128 v[12:15], v58 offset:{L_FLG}')
        a('s_sub_u32 s19, s19, 1')
        a('s_cbranch_scc1 L_exit')
        a('s_waitcnt lgkmcnt(0)')
        a('v_xor_b32 v12, s6, v12')
        a('v_bitop3_b32 v12, v13, s6, v12 bitop3:0xbe')
        a('v_bitop3_b32 v12, v14, s6, v12 bitop3:0xbe')
        a('v_bitop3_b32 v12, v15, s6, v12 bitop3:0xbe')
        a('v_cmp_eq_u32 vcc, 0, v12')
        a('s_cbranch_vccz L_hfw')
        self.vstamp(238)
        a(f'ds_read2st64_b32 v[12:13], v57 offset0:{L_QP//256} offset1:{L_QP//256+1}')
        a(f'ds_read2st64_b32 v[14:15], v57 offset0:{L_QP//256+2} offset1:{L_QP//256+3}')
        a('v_mov_b32 v18, s6')
        a('v_mov_b32 v19, s6')
        a('s_waitcnt lgkmcnt(0)')
        a('v_add_f32 v12, v12, v13')
        a('v_add_f32 v14, v14, v15')
        a('v_add_f32 v12, v12, v14')
        self.nop(2)
        a('v_mov_b32_dpp v13, v12 row_shl:4 row_mask:0xf bank_mask:0xf')
        a('v_cvt_pk_bf16_f32 v16, v12, v13')
        self.nop(2)
        a('v_mov_b32_dpp v17, v16 quad_perm:[1,0,3,2] row_mask:0xf bank_mask:0xf')
        a('s_mov_b32 exec_lo, 0x05050505')
        a('s_mov_b32 exec_hi, 0x05050505')
        a('v_and_b32 v9, 4, v1')
        if 'noqst' not in opt['exp']:
            a('global_store_dwordx4 v8, v[16:19], s[32:33] sc1')
        a('s_mov_b64 exec, -1')
        self.vstamp(240)
        lab('L_hq')
        a(f's_mov_b32 s19, {SPIN}')
        if 'nopoll' in opt['exp']:
            a('s_sleep 60')
            a('s_branch L_hqok')
        lab('L_hqw')
        for p in range(4):
            a(f's_load_dwordx16 s[{36+16*p}:{51+16*p}], s[100:101], {64*p} glc')
        a('s_sub_u32 s19, s19, 1')
        a('s_cbranch_scc1 L_exit')
        a('s_waitcnt lgkmcnt(0)')
        tags = [36 + 16 * p + 4 * g + 2 for p in range(4) for g in range(4)]
        a(f's_xor_b32 s7, s{tags[0]}, s6')
        for t in tags[1:]:
            a(f's_xor_b32 s18, s{t}, s6')
            a('s_or_b32 s7, s7, s18')
        a('s_cbranch_scc0 L_hqok')
        a('s_sleep 2')
        a('s_branch L_hqw')
        lab('L_hqok')
        order = {0: 0, 1: 2, 4: 4, 5: 6, 8: 1, 9: 3, 12: 5, 13: 7}
        for p in range(4):
            for k, pr in order.items():
                a(f'v_writelane_b32 v8, s{36+16*p+k}, {8*p+pr}')
        a('s_lshl_b32 s18, s34, 7')
        a('v_lshl_add_u32 v9, v1, 2, s18')
        a('s_mov_b32 exec_hi, 0')
        a(f'ds_write_b32 v9, v8 offset:{L_QL}')
        a('s_mov_b64 exec, -1')
        a('s_load_dword s74, s[26:27], 0')
        a('s_lshl_b32 s18, s34, 2')
        a('v_mov_b32 v9, s18')
        a('v_mov_b32 v8, s6')
        a('s_waitcnt lgkmcnt(0)')
        a(f'ds_write_b32 v9, v8 offset:{L_FL2}')
        self.vstamp(242)
        a('s_setprio 0')
        if 'qonly' in opt['exp']:
            a('s_endpgm')
        if opt['NST'] < 16:
            a('s_and_b32 s18, s2, 3')
            a('s_lshl2_add_u32 s18, s18, s34')
            a('s_cmp_lg_u32 s18, 1')
            a('s_cbranch_scc1 L_htk')
            a('s_lshl_b32 s18, s4, 8')
            a(f's_add_u32 s18, s18, {TK}')
            a('v_mov_b32 v10, s18')
            a('v_mov_b32 v8, 0')
            a('v_mov_b32 v9, s6')
            a('s_mov_b64 exec, 1')
            a('global_store_dwordx2 v10, v[8:9], s[32:33] sc1')
            a('s_mov_b64 exec, -1')
            lab('L_htk')
        a('s_cmp_eq_u32 s34, 0')
        a('s_cbranch_scc1 L_work')
        a('s_cmp_ge_u32 s34, 2')
        a('s_cbranch_scc1 L_hw')
        a('s_cmp_ge_u32 s2, 4')
        a('s_cbranch_scc1 L_exit')
        a('s_lshl_b32 s18, s2, 11')
        a(f's_add_u32 s18, s18, {ACC}')
        a('v_lshl_add_u32 v4, v1, 4, s18')
        for i in range(4):
            a(f'v_mov_b32 v{8+i}, 0')
        a('global_store_dwordx4 v4, v[8:11], s[32:33] sc1')
        a('global_store_dwordx4 v4, v[8:11], s[32:33] offset:1024 sc1')
        a('s_lshl_b32 s18, s2, 2')
        a(f's_add_u32 s18, s18, {RDY}')
        a('v_mov_b32 v12, s18')
        a('v_mov_b32 v13, s6')
        a('s_waitcnt vmcnt(0)')
        a('s_mov_b64 exec, 1')
        a('global_store_dword v12, v13, s[32:33] sc1')
        a('s_mov_b64 exec, -1')
        lab('L_hw')
        a('v_lshlrev_b32 v2, 4, v1')
        a('v_lshlrev_b32 v3, 3, v1')
        W1, B1, C1P, W2P = self.W1, self.B1, self.C1P, self.W2P
        for base, sp in ((160, 20), (176, 22), (W2P, 24)):
            for r in range(3):
                a(f'global_load_dwordx4 v[{base+4*r}:{base+4*r+3}], v2, s[{sp}:{sp+1}] offset:{1024*r}')
            a(f'global_load_dwordx2 v[{base+12}:{base+13}], v3, s[{sp}:{sp+1}] offset:3072')
        k2 = -2.0 * math.sqrt(2.0 / math.pi) * LOG2E
        a(f'v_mov_b32 v{C1P}, {f2u(k2):#x}')
        a(f'v_mov_b32 v{C1P+1}, {f2u(k2):#x}')
        a(f's_mov_b32 s72, {f2u(k2*0.044715):#x}')
        a('s_mov_b32 s73, s72')
        a('s_lshl_b32 s74, s74, 16')
        a('s_waitcnt vmcnt(0)')
        for i in range(14):
            self.unpack(W1 + 2 * i, W1 + 2 * i + 1, 160 + i)
            self.unpack(B1 + 2 * i, B1 + 2 * i + 1, 176 + i)
        a('s_cmp_eq_u32 s34, 1')
        a('s_cbranch_scc1 L_cons')
        a('s_lshl_b32 s40, s2, 2')
        a('s_lshl1_add_u32 s40, s34, s40')
        a('s_sub_u32 s40, s40, 4')
        a('s_add_u32 s50, s40, 2')
        lab('L_tb')
        a('s_mul_i32 s41, s40, 6')
        a(f's_cmp_ge_u32 s41, {NTH}')
        a(f's_mov_b32 s43, {E0 << 7}')
        a(f's_cselect_b32 s42, {0x8000 - NTH + (E0 << 7)}, s43')
        a('s_add_u32 s41, s41, s42')
        for n in range(6):
            a(f's_add_u32 s70, s41, {n}')
            a('s_lshl_b32 s70, s70, 16')
            a('s_mov_b32 s71, s70')
            if 'noeval' not in self.opt['exp']:
                a('s_call_b64 s[76:77], L_eval')
            a('s_nop 0')
            a(f'v_readfirstlane_b32 s{44+n}, v153')
        a('s_nop 0')
        for n in range(3):
            a(f's_pack_ll_b32_b16 s{44+n}, s{44+2*n}, s{45+2*n}')
        a('s_lshl_b32 s41, s40, 4')
        a(f's_add_u32 s41, s41, {TG}')
        a('v_mov_b32 v8, s44')
        a('v_mov_b32 v9, s45')
        a('v_mov_b32 v10, s46')
        a('v_mov_b32 v11, s6')
        a('v_mov_b32 v12, s41')
        a('s_mov_b64 exec, 1')
        a('global_store_dwordx4 v12, v[8:11], s[32:33] sc1')
        a('s_mov_b64 exec, -1')
        a('s_add_u32 s40, s40, 1')
        a('s_cmp_lt_u32 s40, s50')
        a('s_cbranch_scc1 L_tb')
        if self.opt['stamps']:
            a('s_cmp_lg_u32 s34, 2')
            a('s_cbranch_scc1 L_exit')
            self.stamp(24)
            self.flush_stamps([(15, 24)])
        a('s_endpgm')
        lab('L_work')
        self.worker()
        self.consumer()
        self.eval_sub()

    def wait_done(self, name):
        a, lab = self.a, self.lab
        a('v_mov_b32 v6, 0')
        a(f's_mov_b32 s19, {SPIN}')
        lab(name)
        a('s_sleep 2')
        a(f'ds_read_b32 v7, v6 offset:{L_CNT}')
        a('s_sub_u32 s19, s19, 1')
        a('s_cbranch_scc1 L_exit')
        a('s_waitcnt lgkmcnt(0)')
        a('v_cmp_eq_u32 vcc, 0, v7')
        a(f's_cbranch_vccnz {name}')

    def worker(self):
        a, lab = self.a, self.lab
        opt = self.opt
        a('s_lshr_b32 s40, s5, 4')
        a('s_and_b32 s41, s5, 15')
        a('s_mul_i32 s42, s40, 229376')
        a('s_mul_i32 s43, s41, 56')
        a('s_add_u32 s42, s42, s43')
        a('s_add_u32 s36, s16, s42')
        a('s_addc_u32 s37, s17, 0')
        a('s_sub_u32 s38, 229376, s43')
        a('s_mov_b32 s39, 0x20000')
        a('v_mul_u32_u24 v2, 37, v1')
        a('v_lshrrev_b32 v2, 8, v2')
        a('v_mul_u32_u24 v3, 7, v2')
        a('v_sub_u32 v3, v1, v3')
        a('v_mul_u32_u24 v2, 896, v2')
        a('v_lshl_add_u32 v2, v3, 3, v2')
        a('v_lshlrev_b32 v3, 3, v1')
        a('s_mov_b32 exec_hi, 0x7fffffff')
        a('s_mov_b32 s44, 0')
        for it in range(30 if 'nowo' not in opt['exp'] else 0):
            a(f'buffer_load_dwordx2 v[{160+2*it}:{161+2*it}], v2, s[36:39], s44 offen {opt["wof"]}')
            a('s_add_u32 s44, s44, 8064')
        for it in range(30 if 'nowo' not in opt['exp'] else 0):
            a(f's_waitcnt vmcnt({29-it})')
            a(f'ds_write_b64 v3, v[{160+2*it}:{161+2*it}] offset:{L_WOS+504*it}')
        a('s_mov_b64 exec, -1')
        BF = 64
        for i in range(88):
            a(f'v_mov_b32 v{BF+i}, 0')
        a('v_lshrrev_b32 v5, 4, v1')
        a('v_and_b32 v6, 15, v1')
        a('v_mul_u32_u24 v2, 336, v5')
        a('v_lshl_add_u32 v2, v6, 1, v2')
        a('s_mov_b32 exec_lo, 0x3fff3fff')
        a('s_mov_b32 exec_hi, 0x3fff3fff')
        a('s_waitcnt lgkmcnt(0)')
        for kk in range(11 if 'nowo' not in opt['exp'] else 0):
            for t in range(2):
                for e in range(6):
                    a(f'ds_read_u16 v{8+6*t+e}, v2 offset:{L_WOS+1344*kk+56*e+28*t}')
            a('s_waitcnt lgkmcnt(0)')
            for t in range(2):
                for uu in range(3):
                    a(f'v_lshl_or_b32 v{BF+8*kk+4*t+uu}, v{8+6*t+2*uu+1}, 16, v{8+6*t+2*uu}')
        a('s_mov_b64 exec, -1')
        a('s_lshl_b32 s42, s40, 14')
        a(f's_add_u32 s42, s42, {OG}')
        a('v_lshlrev_b32 v2, 10, v6')
        a('v_lshl_add_u32 v2, v5, 4, v2')
        a('v_add_u32 v2, s42, v2')
        a('s_lshl_b32 s42, s41, 7')
        a(f's_add_u32 s42, s42, {ACC}')
        a('v_lshlrev_b32 v3, 11, v5')
        a('v_lshl_add_u32 v3, v6, 2, v3')
        a('v_add_u32 v3, s42, v3')
        a('v_cmp_eq_u32 vcc, 15, v6')
        a('v_lshlrev_b32 v8, 4, v5')
        a('v_add_u32 v8, 128, v8')
        a('v_cndmask_b32 v4, 0, 1.0, vcc')
        a(f'v_mov_b32 v9, {RDY}')
        a('v_lshl_add_u32 v9, v5, 2, v9')
        a(f's_mov_b32 s19, {SPIN}')
        lab('L_wr')
        a('global_load_dword v10, v9, s[32:33] sc1')
        a('s_sub_u32 s19, s19, 1')
        a('s_cbranch_scc1 L_exit')
        a('s_waitcnt vmcnt(0)')
        a('v_cmp_ne_u32 vcc, s6, v10')
        a('s_cbranch_vccnz L_wr')
        self.stamp(24)
        self.wait_done('L_wd')
        a('s_setprio 3')
        AF = 160
        a(f's_mov_b32 s19, {SPIN}')
        lab('L_wp')
        for kk in range(11):
            a(f'global_load_dwordx4 v[{AF+4*kk}:{AF+4*kk+3}], v2, s[32:33] offset:{64*kk} sc1')
        a('s_sub_u32 s19, s19, 1')
        a('s_cbranch_scc1 L_exit')
        for kk in range(11):
            a(f's_waitcnt vmcnt({10-kk})')
            if kk == 0:
                a(f'v_xor_b32 v9, s6, v{AF+3}')
            else:
                a(f'v_bitop3_b32 v9, v{AF+4*kk+3}, s6, v9 bitop3:0xbe')
        a('v_cmp_ne_u32 vcc, 0, v9')
        a('s_and_b64 exec, exec, vcc')
        if opt['psleep']:
            a('s_cbranch_execz L_wpx')
            a(f's_sleep {opt["psleep"]}')
            a('s_branch L_wp')
            lab('L_wpx')
        else:
            a('s_cbranch_execnz L_wp')
        a('s_mov_b64 exec, -1')
        self.stamp(26)
        D0, D1 = 204, 208
        LS = AF + 42
        def mf(kk):
            for t, d in ((0, D0), (1, D1)):
                c = '0' if kk == 0 else f'v[{d}:{d+3}]'
                a(f'v_mfma_f32_16x16x32_bf16 v[{d}:{d+3}], v[{AF+4*kk}:{AF+4*kk+3}], v[{BF+8*kk+4*t}:{BF+8*kk+4*t+3}], {c}')
        a(f'v_mov_b32 v10, v{LS}')
        a('v_cmp_eq_u32 vcc, 2, v5')
        mf(0)
        a(f'v_cndmask_b32 v{LS}, v{LS}, 0, vcc')
        a('v_max_f32_dpp v11, v10, v10 quad_perm:[1,0,3,2] row_mask:0xf bank_mask:0xf')
        mf(1)
        a('v_max_f32_dpp v11, v11, v11 quad_perm:[2,3,0,1] row_mask:0xf bank_mask:0xf')
        a('v_sub_f32 v10, v10, v11')
        mf(2)
        a('v_exp_f32 v10, v10')
        mf(3)
        a('v_add_f32_dpp v11, v10, v10 quad_perm:[1,0,3,2] row_mask:0xf bank_mask:0xf')
        mf(4)
        a('v_add_f32_dpp v11, v11, v11 quad_perm:[2,3,0,1] row_mask:0xf bank_mask:0xf')
        a('v_rcp_f32 v11, v11')
        mf(5)
        a('v_mul_f32 v10, v10, v11')
        for r in range(4):
            a(f'ds_bpermute_b32 v{12+r}, v8, v10 offset:{4*r}')
        for kk in range(6, 11):
            mf(kk)
        a('s_waitcnt lgkmcnt(0)')
        self.nop(7)
        a(f'v_fma_f32 v16, v12, v{D0}, v4')
        a(f'v_fma_f32 v17, v12, v{D1}, v4')
        for r in range(1, 4):
            a(f'v_fmac_f32 v16, v{12+r}, v{D0+r}')
            a(f'v_fmac_f32 v17, v{12+r}, v{D1+r}')
        a('global_atomic_add_f32 v3, v16, s[32:33]')
        a('global_atomic_add_f32 v3, v17, s[32:33] offset:64')
        self.stamp(28)
        self.unvstamp(240, 20)
        self.unvstamp(242, 22)
        self.flush_stamps([(9, 20), (10, 22), (11, 24), (4, 26), (5, 28)])
        for i, v in enumerate((226, 228, 230, 232, 234, 236, 220, 222, 224, 238)):
            self.unvstamp(v, 20)
            self.flush_stamps([(16 + i, 20)])
        a('s_endpgm')

    def consumer(self):
        a, lab = self.a, self.lab
        lab('L_cons')
        a('s_mov_b32 s36, s8')
        a('s_mov_b32 s37, s9')
        a('s_mov_b32 s38, 3584')
        a('s_mov_b32 s39, 0x20000')
        a('s_mov_b32 s40, s28')
        a('s_mov_b32 s41, s29')
        a('s_mov_b32 s42, 3584')
        a('s_mov_b32 s43, 0x20000')
        a('s_mul_i32 s44, s2, 896')
        a('v_lshrrev_b32 v2, 2, v1')
        a('v_and_b32 v3, 3, v1')
        a('v_mul_u32_u24 v2, 28, v2')
        a('v_lshl_add_u32 v2, v3, 3, v2')
        for r in range(2):
            for ep in range(2):
                a(f'buffer_load_dword v{8+2*r+ep}, v2, s[36:39], s44 offen offset:{448*r+4*ep}')
        a('s_mov_b32 s46, 0x88888888')
        a('s_mov_b32 s47, 0x88888888')
        a(f's_mov_b32 s62, {f2u(1.0/448):#x}')
        a(f's_mov_b32 s63, {f2u(1e-5):#x}')
        a('s_waitcnt vmcnt(0)')
        XF = 12
        for i in range(4):
            self.unpack(XF + 2 * i, XF + 2 * i + 1, 8 + i)
        a(f'v_lshlrev_b32 v5, 4, v1')
        a(f'v_add_u32 v5, {TG}, v5')
        a('v_mul_u32_u24 v3, 12, v1')
        a(f'v_add_u32 v3, {L_TBL}, v3')
        TF = 160
        a(f's_mov_b32 s19, {SPIN}')
        lab('L_ct')
        for it in range(16):
            if it % 4 == 0 and it:
                a('v_add_u32 v5, 4096, v5')
            a(f'global_load_dwordx4 v[{TF+4*it}:{TF+4*it+3}], v5, s[32:33] offset:{1024*(it%4)} sc1')
        a('v_subrev_u32 v5, 12288, v5')
        a('s_sub_u32 s19, s19, 1')
        a('s_cbranch_scc1 L_exit')
        a('s_waitcnt vmcnt(0)')
        a(f'v_xor_b32 v9, s6, v{TF+3}')
        for it in range(1, 16):
            a(f'v_bitop3_b32 v9, v{TF+4*it+3}, s6, v9 bitop3:0xbe')
        a('v_cmp_ne_u32 vcc, 0, v9')
        a('s_cbranch_vccz L_ct2')
        a('s_sleep 32')
        a('s_branch L_ct')
        lab('L_ct2')
        for it in range(16):
            a(f'ds_write2_b32 v3, v{TF+4*it}, v{TF+4*it+1} offset0:0 offset1:1')
            a(f'ds_write_b32 v3, v{TF+4*it+2} offset:8')
            a('v_add_u32 v3, 768, v3')
        self.stamp(24)
        self.wait_done('L_cd')
        a('s_setprio 3')
        A = 20
        a(f's_mov_b32 s19, {SPIN}')
        a(f's_mov_b32 s45, {f2u(16.0):#x}')
        lab('L_cp')
        a(f'global_load_dwordx4 v[{A}:{A+3}], v4, s[32:33] sc1')
        a(f'global_load_dwordx4 v[{A+4}:{A+7}], v4, s[32:33] offset:1024 sc1')
        a('s_sub_u32 s19, s19, 1')
        a('s_cbranch_scc1 L_exit')
        a('s_waitcnt vmcnt(0)')
        a(f'v_cmp_eq_f32 vcc, s45, v{A+3}')
        a(f'v_cmp_eq_f32 s[48:49], s45, v{A+7}')
        a('s_and_b64 s[48:49], s[48:49], vcc')
        a('s_and_b64 s[48:49], s[48:49], s[46:47]')
        a('s_cmp_eq_u64 s[48:49], s[46:47]')
        a('s_cbranch_scc0 L_cp')
        self.stamp(26)
        P = 28
        Hh = 32
        Dd = 40
        S1, S2, PV, MO, RO = 48, 50, 52, 54, 56
        for i in range(4):
            a(f'v_cvt_pk_bf16_f32 v{P+i}, v{A+2*i}, v{A+2*i+1}')
        for i in range(4):
            self.unpack(A + 2 * i, A + 2 * i + 1, P + i)
        for i in range(4):
            a(f'v_pk_add_f32 v[{A+2*i}:{A+2*i+1}], v[{A+2*i}:{A+2*i+1}], v[{XF+2*i}:{XF+2*i+1}]')
        for i in range(4):
            a(f'v_cvt_pk_bf16_f32 v{P+i}, v{A+2*i}, v{A+2*i+1}')
        for i in range(4):
            self.unpack(Hh + 2 * i, Hh + 2 * i + 1, P + i)

        def sums(src, piv):
            if piv:
                a(f'v_readfirstlane_b32 s50, v{src}')
                a('s_nop 1')
                a(f'v_mov_b32 v{PV}, s50')
                for i in range(4):
                    a(f'v_pk_add_f32 v[{Dd+2*i}:{Dd+2*i+1}], v[{src+2*i}:{src+2*i+1}], v[{PV}:{PV+1}] op_sel_hi:[1,0] neg_lo:[0,1] neg_hi:[0,1]')
                s = Dd
            else:
                s = src
            for i in (2, 3, 6, 7):
                a(f'v_cndmask_b32 v{Dd+i}, v{s+i}, 0, s[46:47]')
            idx = [s, Dd + 2, s + 4, Dd + 6]
            a(f'v_pk_add_f32 v[{S1}:{S1+1}], v[{idx[0]}:{idx[0]+1}], v[{idx[1]}:{idx[1]+1}]')
            a(f'v_pk_mul_f32 v[{S2}:{S2+1}], v[{idx[0]}:{idx[0]+1}], v[{idx[0]}:{idx[0]+1}]')
            a(f'v_pk_add_f32 v[{S1}:{S1+1}], v[{S1}:{S1+1}], v[{idx[2]}:{idx[2]+1}]')
            a(f'v_pk_fma_f32 v[{S2}:{S2+1}], v[{idx[1]}:{idx[1]+1}], v[{idx[1]}:{idx[1]+1}], v[{S2}:{S2+1}]')
            a(f'v_pk_add_f32 v[{S1}:{S1+1}], v[{S1}:{S1+1}], v[{idx[3]}:{idx[3]+1}]')
            a(f'v_pk_fma_f32 v[{S2}:{S2+1}], v[{idx[2]}:{idx[2]+1}], v[{idx[2]}:{idx[2]+1}], v[{S2}:{S2+1}]')
            a(f'v_add_f32 v{S1}, v{S1}, v{S1+1}')
            a(f'v_pk_fma_f32 v[{S2}:{S2+1}], v[{idx[3]}:{idx[3]+1}], v[{idx[3]}:{idx[3]+1}], v[{S2}:{S2+1}]')
            a(f'v_add_f32 v{S2}, v{S2}, v{S2+1}')
            self.ladder64([S1, S2], [S1 + 1, S2 + 1])
            self.ln_stats(S1, S2, PV if piv else None, 58, 59, 62, 63, MO, RO)

        def norm(src, dst, keep_packed):
            for i in range(4):
                a(f'v_pk_add_f32 v[{dst+2*i}:{dst+2*i+1}], v[{src+2*i}:{src+2*i+1}], v[{MO}:{MO+1}] op_sel_hi:[1,0] neg_lo:[0,1] neg_hi:[0,1]')
            for i in range(4):
                a(f'v_cvt_pk_bf16_f32 v{P+i}, v{dst+2*i}, v{dst+2*i+1}')
            for i in range(4):
                self.unpack(dst + 2 * i, dst + 2 * i + 1, P + i)
            for i in range(4):
                a(f'v_pk_mul_f32 v[{dst+2*i}:{dst+2*i+1}], v[{dst+2*i}:{dst+2*i+1}], v[{RO}:{RO+1}] op_sel_hi:[1,0]')
            for i in range(4):
                a(f'v_cvt_pk_bf16_f32 v{P+i}, v{dst+2*i}, v{dst+2*i+1}')
            if not keep_packed:
                for i in range(4):
                    self.unpack(dst + 2 * i, dst + 2 * i + 1, P + i)

        sums(Hh, True)
        norm(Hh, A, False)
        sums(A, False)
        norm(A, A, True)
        I = 40
        a(f's_mov_b32 s50, {2*NTH}')
        a(f's_mov_b32 s51, {NTH}')
        for i in range(4):
            a(f'v_bfe_u32 v{A+2*i}, v{P+i}, 0, 15')
            a(f'v_bfe_u32 v{A+2*i+1}, v{P+i}, 16, 15')
            a(f'v_bfe_u32 v{I+2*i}, v{P+i}, 15, 1')
            a(f'v_lshrrev_b32 v{I+2*i+1}, 31, v{P+i}')
        for i in range(8):
            a(f'v_subrev_u32 v{A+i}, {E0 << 7}, v{A+i}')
        for i in range(8):
            a(f'v_min_u32 v{160+i}, {NTH-1}, v{A+i}')
            a(f'v_mul_u32_u24 v{I+i}, s50, v{I+i}')
        for i in range(8):
            a(f'v_lshl_add_u32 v{I+i}, v{160+i}, 1, v{I+i}')
        Y = 168
        for i in range(8):
            a(f'ds_read_u16 v{Y+i}, v{I+i} offset:{L_TBL}')
        for i in (2, 3, 6, 7):
            a(f'v_cndmask_b32 v{A+i}, v{A+i}, 0, s[46:47]')
        a(f'v_max3_u32 v48, v{A}, v{A+1}, v{A+2}')
        a(f'v_max3_u32 v48, v48, v{A+3}, v{A+4}')
        a(f'v_max3_u32 v48, v48, v{A+5}, v{A+6}')
        a(f'v_max_u32 v48, v48, v{A+7}')
        a('v_cmp_le_u32 vcc, s51, v48')
        a('s_waitcnt lgkmcnt(0)')
        a('s_cbranch_vccnz L_cslow')
        lab('L_cfin')
        for i in range(8):
            a(f'v_lshlrev_b32 v{Y+i}, 16, v{Y+i}')
        for i in range(4):
            a(f'v_pk_add_f32 v[{Y+2*i}:{Y+2*i+1}], v[{Y+2*i}:{Y+2*i+1}], v[{Hh+2*i}:{Hh+2*i+1}]')
        for i in range(4):
            a(f'v_cvt_pk_bf16_f32 v{P+i}, v{Y+2*i}, v{Y+2*i+1}')
        a(f'buffer_store_dword v{P}, v2, s[40:43], s44 offen')
        a(f'buffer_store_dword v{P+2}, v2, s[40:43], s44 offen offset:448')
        a('s_andn2_b64 exec, exec, s[46:47]')
        a(f'buffer_store_dword v{P+1}, v2, s[40:43], s44 offen offset:4')
        a(f'buffer_store_dword v{P+3}, v2, s[40:43], s44 offen offset:452')
        self.stamp(28)
        self.dbgtime(2, 4)
        self.flush_stamps([(12, 24), (13, 26), (14, 28)])
        a('s_endpgm')
        lab('L_cslow')
        for i in range(8):
            u = self.u()
            a(f'v_cmp_le_u32 s[52:53], s51, v{A+i}')
            lab(f'L_cs{u}')
            a('s_cmp_eq_u64 s[52:53], 0')
            a(f's_cbranch_scc1 L_ce{u}')
            a('s_ff1_i32_b64 s54, s[52:53]')
            a('s_bitset0_b64 s[52:53], s54')
            a(f'v_readlane_b32 s70, v{P+i//2}, s54')
            a('s_nop 0')
            if i & 1:
                a('s_and_b32 s70, s70, 0xffff0000')
            else:
                a('s_lshl_b32 s70, s70, 16')
            a('s_mov_b32 s71, s70')
            a('s_call_b64 s[76:77], L_eval')
            a('s_nop 0')
            a('v_readfirstlane_b32 s55, v153')
            a('s_mov_b32 m0, s54')
            a('s_nop 3')
            a(f'v_writelane_b32 v{Y+i}, s55, m0')
            a(f's_branch L_cs{u}')
            lab(f'L_ce{u}')
        a('s_branch L_cfin')

    def build(self):
        a, lab = self.a, self.lab
        o = self.o
        o.append(HEADER.rstrip('\n'))
        o.append(f'; @launch grid=(256,1,1) block=(512,1,1) lds={L_END}')
        o.append('.amdgcn_target "amdgcn-amd-amdhsa--gfx950"')
        o.append('.text')
        o.append(f'.globl {KN}')
        o.append('.p2align 8')
        o.append(f'.type {KN},@function')
        lab(KN)
        a('s_cmp_ge_u32 s2, 256')
        a('s_cbranch_scc1 L_exit')
        self.stamp(78)
        a('s_load_dwordx16 s[8:23], s[0:1], 0')
        a('s_load_dwordx8 s[24:31], s[0:1], 64')
        a('s_load_dwordx2 s[32:33], s[0:1], 96')
        a('v_lshrrev_b32 v1, 6, v0')
        a('s_lshr_b32 s4, s2, 2')
        a('v_readfirstlane_b32 s3, v1')
        a('s_and_b32 s5, s2, 7')
        a('s_lshl_b32 s5, s5, 5')
        a('s_lshr_b32 s7, s2, 3')
        a('s_add_u32 s5, s5, s7')
        a('s_cmp_ge_u32 s3, 4')
        a('s_cbranch_scc1 L_helper')
        self.streamer()
        lab('L_helper')
        self.helper()
        lab('L_exit')
        a('s_endpgm')
        o.append('.section .rodata,"a"')
        o.append('.p2align 6')
        o.append(f'.amdhsa_kernel {KN}')
        o.append('  .amdhsa_next_free_vgpr 256')
        o.append('  .amdhsa_next_free_sgpr 102')
        o.append('  .amdhsa_accum_offset 256')
        o.append('  .amdhsa_group_segment_fixed_size 0')
        o.append('  .amdhsa_kernarg_size 104')
        o.append('  .amdhsa_user_sgpr_count 2')
        o.append('  .amdhsa_user_sgpr_kernarg_segment_ptr 1')
        o.append('  .amdhsa_system_sgpr_workgroup_id_x 1')
        o.append('.end_amdhsa_kernel')
        return '\n'.join(o) + '\n'


if __name__ == '__main__':
    out = sys.argv[1]
    opt = eval(sys.argv[2]) if len(sys.argv) > 2 else {}
    open(out, 'w').write(G(**opt).build())
```

```python
import sys, struct, math

KN = 'sequential_preLN__mha_block_cached__mixer_token_mlp__decode_kernel'
HEADER = open('sequential_preLN__mha_block_cached__mixer_token_mlp__decode.s.ref').read().split('; Override launch')[0]


def f2u(x):
    return struct.unpack('<I', struct.pack('<f', x))[0]


QG, OG, TG, ACC, RDY, TK = 0x0, 0x10000, 0x50000, 0x54000, 0x56000, 0x58000
STAMP = 256 << 20
L_FL2 = 576
L_FLG, L_CNT, L_NON, L_HDR, L_QL, L_QP, L_XN, L_OW, L_WOS, L_TBL, L_END = 0, 16, 20, 32, 64, 1024, 2048, 6144, 10752, 26112, 38400
E0 = 108
NTH = 3072
LOG2E = 1.4426950408889634
SPIN = 1 << 16


class G:
    def __init__(self, **opt):
        self.o = []
        self.opt = dict(stamps=False, wqf='nt', wof='nt', kvf='nt', dbg=False, pre=0, bar0=True, pace=8, exp='', LA=16, setC=False, NST=16, TP=8, psleep=0, vf=None, fix=0)
        self.opt.update(opt)
        self.uid = 0

    def a(self, s):
        self.o.append('  ' + s)

    def lab(self, s):
        self.o.append(s + ':')

    def u(self):
        self.uid += 1
        return self.uid

    def nop(self, n):
        if n > 0:
            self.a(f's_nop {n-1}')

    def stamp(self, sreg):
        if self.opt['stamps']:
            self.a(f's_memrealtime s[{sreg}:{sreg+1}]')

    def dbgtime(self, slot_expr_sreg, base, atomic=False):
        if not self.opt['dbg']:
            return
        a = self.a
        a('s_memrealtime s[94:95]')
        a('s_and_b32 s96, s6, 0x3fff')
        a('s_lshr_b32 s97, s6, 2')
        a('s_and_b32 s97, s97, 0x0fffc000')
        a('s_or_b32 s96, s96, s97')
        a('s_waitcnt lgkmcnt(0)')
        a('s_sub_u32 s94, s94, s96')
        a('s_and_b32 s94, s94, 0x0fffffff')
        a('s_mov_b64 exec, 1')
        a('v_mov_b32 v250, s94')
        if slot_expr_sreg is None:
            a(f'v_mov_b32 v251, {4*base}')
        else:
            a(f's_lshl_b32 s95, s{slot_expr_sreg}, 2')
            a(f's_add_u32 s95, s95, {4*base}')
            a('v_mov_b32 v251, s95')
        if atomic:
            a('global_atomic_umax v251, v250, s[30:31]')
        else:
            a('global_store_dword v251, v250, s[30:31]')

    def vstamp(self, v):
        if self.opt['stamps']:
            self.a('s_memrealtime s[18:19]')
            self.a('s_waitcnt lgkmcnt(0)')
            self.a(f'v_mov_b32 v{v}, s18')
            self.a(f'v_mov_b32 v{v+1}, s19')

    def unvstamp(self, v, sreg):
        if self.opt['stamps']:
            self.a(f'v_readfirstlane_b32 s{sreg}, v{v}')
            self.a(f'v_readfirstlane_b32 s{sreg+1}, v{v+1}')
            self.a('s_nop 1')

    def flush_stamps(self, pairs, vt=250):
        if not self.opt['stamps']:
            return
        a = self.a
        a('s_waitcnt lgkmcnt(0)')
        a('s_mov_b64 exec, 1')
        a('s_lshl_b32 s7, s2, 8')
        a(f's_add_u32 s7, s7, {STAMP}')
        a(f'v_mov_b32 v{vt+2}, s7')
        for slot, sreg in pairs:
            a(f'v_mov_b32 v{vt}, s{sreg}')
            a(f'v_mov_b32 v{vt+1}, s{sreg+1}')
            a(f'global_store_dwordx2 v{vt+2}, v[{vt}:{vt+1}], s[32:33] offset:{8*slot}')
            a('s_nop 1')

    def bf16r(self, dst, src, tmp=None):
        t = dst if tmp is None else tmp
        self.a(f'v_cvt_pk_bf16_f32 v{t}, v{src}, v{src}')
        self.a(f'v_and_b32 v{dst}, 0xffff0000, v{t}')

    def unpack(self, lo, hi, p):
        self.a(f'v_lshlrev_b32 v{lo}, 16, v{p}')
        self.a(f'v_and_b32 v{hi}, 0xffff0000, v{p}')

    def ladder64(self, regs, tmps, op='v_add_f32'):
        a = self.a
        n = len(regs)
        for ror in (8, 4, 2, 1):
            self.nop(max(0, 2 - (n - 1)) if True else 0)
            for r in regs:
                a(f'{op}_dpp v{r}, v{r}, v{r} row_ror:{ror} row_mask:0xf bank_mask:0xf')
        for sw in ('v_permlane16_swap_b32', 'v_permlane32_swap_b32'):
            for r, t in zip(regs, tmps):
                a(f'v_mov_b32 v{t}, v{r}')
            self.nop(max(0, 2 - (n - 1)))
            for r, t in zip(regs, tmps):
                a(f'{sw} v{r}, v{t}')
            for r, t in zip(regs, tmps):
                a(f'{op} v{r}, v{r}, v{t}')

    def ln_stats(self, s1, s2, piv, t0, t1, sinv, seps, mout, rout):
        a = self.a
        a(f'v_mul_f32 v{s1}, s{sinv}, v{s1}')
        a(f'v_mul_f32 v{t0}, v{s1}, v{s1}')
        a(f'v_fma_f32 v{s2}, v{s2}, s{sinv}, -v{t0}')
        if piv is not None:
            a(f'v_add_f32 v{s1}, v{s1}, v{piv}')
        a(f'v_max_f32 v{s2}, 0, v{s2}')
        a(f'v_cvt_pk_bf16_f32 v{t0}, v{s1}, v{s2}')
        a(f'v_and_b32 v{t1}, 0xffff0000, v{t0}')
        a(f'v_lshlrev_b32 v{mout}, 16, v{t0}')
        a(f'v_add_f32 v{t1}, s{seps}, v{t1}')
        self.bf16r(t1, t1)
        a(f'v_sqrt_f32 v{t1}, v{t1}')
        a('s_nop 0')
        self.bf16r(t1, t1)
        a(f'v_rcp_f32 v{rout}, v{t1}')
        a('s_nop 0')

    def ld(self, R, n, sreg):
        j = n & 7
        srd = 's[36:39]' if n < 8 else 's[40:43]'
        self.a(f'buffer_load_dwordx4 v[{R+4*n}:{R+4*n+3}], v{2+j}, {srd}, s{sreg} offen {self.opt["kvf"] if (n < 8 or self.opt["vf"] is None) else self.opt["vf"]}')

    def chunk(self, R, issue, wait):
        a = self.a
        LA = self.opt['LA']

        NST, TP = self.opt['NST'], self.opt['TP']
        pool0 = 4 * NST * 0x8000
        npool = (16 - NST) * 16

        def hooks(n):
            if not issue:
                return
            if NST < 16 and n == (16 - LA - TP) % 16:
                u = self.u()
                lim = 1 if 16 - LA - TP >= 0 else 2
                a(f's_cmp_gt_u32 s45, {lim}')
                a(f's_cbranch_scc1 L_nt{u}')
                a('s_mov_b32 s50, 1')
                a('s_mov_b32 s51, 0')
                a('s_atomic_add_x2 s[50:51], s[52:53], 0x0 glc')
                self.lab(f'L_nt{u}')
            if n == 16 - LA:
                u = self.u()
                a('s_add_u32 s44, s47, 0x8000')
                a('s_cmp_gt_u32 s45, 1')
                a(f's_cbranch_scc1 L_st{u}')
                if NST < 16:
                    a('s_waitcnt lgkmcnt(0)')
                    a('s_cmp_lg_u32 s51, s6')
                    a('s_cbranch_scc1 L_tkretry')
                    self.lab('L_tkok')
                    a('s_lshr_b32 s48, s50, 2')
                    a('s_lshl_b32 s48, s48, 15')
                    a('s_and_b32 s49, s50, 3')
                    a('s_lshl_b32 s49, s49, 10')
                    a('s_add_u32 s48, s48, s49')
                    a('s_add_u32 s48, s48, s54')
                    a(f's_cmp_lt_u32 s50, {npool}')
                    a('s_cselect_b32 s44, s48, 0x200000')
                else:
                    a('s_mov_b32 s44, 0x200000')
                self.lab(f'L_st{u}')

        def iss(n):
            hooks(n)
            if issue:
                t = n + LA
                if t < 16:
                    self.ld(R, t, 47)
                else:
                    self.ld(R, t - 16, 44)
        if 'nocompute' in self.opt['exp']:
            for n in range(16):
                if wait: a(f's_waitcnt vmcnt({LA-1})')
                iss(n)
            return
        kvf = self.opt['kvf']
        Q, AC, S = 10, 14, 22
        X, C, C2, MN, AL, E, E1, PA0, PB0, PA1, PB1 = 30, 31, 32, 33, 34, 35, 36, 37, 38, 39, 42
        M, L = 40, 41
        SU, SU2 = 43, 44
        KR = lambda j: R + 4 * j
        VR = lambda j: R + 32 + 4 * j
        for j in range(8):
            if wait:
                a(f's_waitcnt vmcnt({LA-1})')
            k = KR(j)
            a(f'v_dot2_f32_bf16 v{S+j}, v{k}, v{Q}, 0')
            for i in range(1, 4):
                a(f'v_dot2_f32_bf16 v{S+j}, v{k+i}, v{Q+i}, v{S+j}')
            iss(j)
        for p in range(4):
            a(f'v_add_f32_dpp v{S+2*p}, v{S+2*p}, v{S+2*p} row_ror:8 row_mask:0xf bank_mask:0x3')
            a(f'v_add_f32_dpp v{S+2*p}, v{S+2*p+1}, v{S+2*p+1} row_ror:8 row_mask:0xf bank_mask:0xc')
        for p in (0, 4):
            a(f'v_add_f32_dpp v{S+p}, v{S+p}, v{S+p} row_half_mirror row_mask:0xf bank_mask:0x5')
            a(f'v_add_f32_dpp v{S+p}, v{S+p+2}, v{S+p+2} row_half_mirror row_mask:0xf bank_mask:0xa')
        self.nop(2)
        a(f'v_permlane16_swap_b32 v{S}, v{S+4}')
        a(f'v_add_f32 v{S}, v{S}, v{S+4}')
        self.nop(2)
        a(f'v_add_f32_dpp v{S}, v{S}, v{S} quad_perm:[1,0,3,2] row_mask:0xf bank_mask:0xf')
        self.nop(2)
        a(f'v_add_f32_dpp v{S}, v{S}, v{S} quad_perm:[2,3,0,1] row_mask:0xf bank_mask:0xf')
        self.bf16r(X, S)
        self.nop(2)
        a(f'v_max_f32_dpp v{C}, v{X}, v{X} row_ror:8 row_mask:0xf bank_mask:0xf')
        self.nop(2)
        a(f'v_max_f32_dpp v{C}, v{C}, v{C} row_half_mirror row_mask:0xf bank_mask:0xf')
        for sw in ('v_permlane16_swap_b32', 'v_permlane32_swap_b32'):
            a(f'v_mov_b32 v{C2}, v{C}')
            self.nop(2)
            a(f'{sw} v{C}, v{C2}')
            a(f'v_max_f32 v{C}, v{C}, v{C2}')
        a(f'v_mul_f32 v{C}, s46, v{C}')
        a(f'v_max_f32 v{MN}, v{M}, v{C}')
        a(f'v_fma_f32 v{E}, v{X}, s46, -v{MN}')
        a(f'v_sub_f32 v{AL}, v{M}, v{MN}')
        a(f'v_exp_f32 v{E}, v{E}')
        a(f'v_exp_f32 v{AL}, v{AL}')
        a(f'v_mov_b32 v{M}, v{MN}')
        a(f'v_mov_b32 v{E1}, v{E}')
        for i in range(2):
            a(f'v_mul_f32 v{AC+i}, v{AC+i}, v{AL}')
        a(f'v_permlane16_swap_b32 v{E}, v{E1}')
        for i in range(2, 8):
            a(f'v_mul_f32 v{AC+i}, v{AC+i}, v{AL}')
        a(f'v_cvt_pk_bf16_f32 v{PA0}, v{E}, 0')
        a(f'v_cvt_pk_bf16_f32 v{PB0}, 0, v{E}')
        a(f'v_cvt_pk_bf16_f32 v{PA1}, v{E1}, 0')
        a(f'v_cvt_pk_bf16_f32 v{PB1}, 0, v{E1}')
        a(f'v_add_f32 v{SU}, v{E}, v{E1}')
        a(f'v_mul_f32 v{L}, v{L}, v{AL}')
        extra = [
            [f'v_add_f32_dpp v{SU}, v{SU}, v{SU} row_ror:8 row_mask:0xf bank_mask:0xf'],
            [f'v_add_f32_dpp v{SU}, v{SU}, v{SU} row_half_mirror row_mask:0xf bank_mask:0xf'],
            [f'v_mov_b32 v{SU2}, v{SU}'],
            [f'v_permlane32_swap_b32 v{SU}, v{SU2}', f'v_add_f32 v{L}, v{L}, v{SU}', f'v_add_f32 v{L}, v{L}, v{SU2}'],
        ]
        for j in range(8):
            if wait:
                a(f's_waitcnt vmcnt({LA-1})')
            v = VR(j)
            pa, pb = (PA0, PB0) if j < 4 else (PA1, PB1)
            n = 8 * (j & 1) + 4 * ((j >> 1) & 1)
            for i in range(4):
                a(f'v_dot2c_f32_bf16_dpp v{AC+2*i}, v{pa}, v{v+i} row_newbcast:{n} row_mask:0xf bank_mask:0xf')
                a(f'v_dot2c_f32_bf16_dpp v{AC+2*i+1}, v{pb}, v{v+i} row_newbcast:{n} row_mask:0xf bank_mask:0xf')
            iss(8 + j)
            if j < len(extra):
                for s in extra[j]:
                    a(s)

    def issue_set(self, R, bar=-1, done=0, cnt=16):
        for n in range(cnt):
            if n == bar:
                self.a('s_barrier')
            if self.opt['pace'] and done + n >= self.opt['pace']:
                self.a(f's_waitcnt vmcnt({self.opt["pace"]-1})')
            self.ld(R, n, 44)

    def streamer(self):
        a, lab = self.a, self.lab
        RA, RB = 48, 112
        a('v_lshlrev_b32 v2, 4, v0')
        for j in range(1, 8):
            a(f'v_add_u32 v{2+j}, {4096*j}, v2')
        NST = self.opt['NST']
        a('s_lshl_b32 s7, s4, 21')
        a('s_mov_b32 s38, 0x200000')
        a('s_mov_b32 s39, 0x20000')
        a('s_mov_b32 s42, 0x200000')
        a('s_mov_b32 s43, 0x20000')
        a('s_and_b32 s44, s2, 3')
        a(f's_mul_i32 s44, s44, {NST*0x8000}')
        a('s_memrealtime s[48:49]')
        a('s_or_b32 s47, s2, s3')
        a('v_lshlrev_b32 v11, 6, v0')
        a('s_waitcnt lgkmcnt(0)')
        a('s_cmp_lg_u32 s47, 0')
        a('s_cbranch_scc1 L_sn0')
        a('s_and_b32 s49, s48, 0x3fff')
        a('s_lshl_b32 s48, s48, 2')
        a('s_and_b32 s48, s48, 0xbfff0000')
        a('s_or_b32 s48, s48, s49')
        a('s_or_b32 s48, s48, 0x8000')
        a('v_mov_b32 v10, s48')
        a('s_mov_b64 exec, 15')
        a('global_store_dword v11, v10, s[30:31] sc1')
        a('s_mov_b64 exec, -1')
        lab('L_sn0')
        if 'nohelp' in self.opt['exp']:
            a('v_mov_b32 v10, 0')
            a(f'ds_write_b32 v10, v10 offset:{L_CNT}')
        a('s_add_u32 s36, s10, s7')
        a('s_addc_u32 s37, s11, 0')
        a('s_add_u32 s40, s12, s7')
        a('s_addc_u32 s41, s13, 0')
        RC = 176
        setC = self.opt['setC']
        self.issue_set(RB, self.opt['pre'] if self.opt['bar0'] else -1)
        off = 0x8000
        done = 16
        if setC:
            a('s_add_u32 s44, s44, 0x8000')
            self.issue_set(RC, -1, done)
            off += 0x8000
            done += 16
        a('s_add_u32 s44, s44, 0x8000')
        a('s_load_dword s6, s[30:31], 192')
        self.issue_set(RA, -1, done, self.opt['LA'])
        a('s_mov_b32 s47, s44')
        a('s_lshl_b32 s48, s4, 8')
        a(f's_add_u32 s48, s48, {TK}')
        a('s_add_u32 s52, s32, s48')
        a('s_addc_u32 s53, s33, 0')
        a('s_lshl_b32 s54, s3, 10')
        a(f's_sub_u32 s54, {4*NST*0x8000}, s54')
        a('s_setprio 2')
        for i in range(8):
            a(f'v_mov_b32 v{14+i}, 0')
        a('v_mov_b32 v40, 0xff800000')
        a('v_mov_b32 v41, 0')
        a(f's_mov_b32 s46, {f2u(LOG2E/16.0):#x}')
        niter = NST - (2 if setC else 1)
        a(f's_mov_b32 s45, {niter}')
        a('v_and_b32 v45, 31, v0')
        a('v_lshlrev_b32 v46, 4, v45')
        a('v_mov_b32 v30, 0')
        self.stamp(80)
        a(f's_mov_b32 s48, {SPIN}')
        a('s_waitcnt lgkmcnt(0)')
        lab('L_snw')
        a('s_cmp_lg_u32 s6, 0')
        a('s_cbranch_scc1 L_sqw')
        a('s_sub_u32 s48, s48, 1')
        a('s_cbranch_scc1 L_exit')
        a('global_load_dword v31, v30, s[30:31] sc1')
        a('s_waitcnt vmcnt(0)')
        a('v_readfirstlane_b32 s6, v31')
        a('s_nop 0')
        a('s_branch L_snw')
        lab('L_sqs')
        a('s_sleep 1')
        lab('L_sqw')
        a(f'ds_read_b128 v[32:35], v30 offset:{L_FL2}')
        a(f'ds_read_b128 v[10:13], v46 offset:{L_QL}')
        a('s_sub_u32 s48, s48, 1')
        a('s_cbranch_scc1 L_exit')
        a('s_waitcnt lgkmcnt(0)')
        a('v_xor_b32 v32, s6, v32')
        a('v_bitop3_b32 v32, v33, s6, v32 bitop3:0xbe')
        a('v_bitop3_b32 v32, v34, s6, v32 bitop3:0xbe')
        a('v_bitop3_b32 v32, v35, s6, v32 bitop3:0xbe')
        a('v_cmp_eq_u32 vcc, 0, v32')
        a('v_mov_b32 v47, s6')
        if 'nohelp' not in self.opt['exp']:
            a('s_cbranch_vccz L_sqs')
        self.stamp(82)
        if self.opt['dbg']:
            self.dbgtime(None, 9, True)
            a('s_mov_b64 exec, -1')
            a('s_waitcnt vmcnt(0)')
        if self.opt['stamps']:
            a('s_memtime s[90:91]')
        lab('L_sloop')
        self.chunk(RA, True, True)
        a('s_mov_b32 s47, s44')
        a(f's_cmp_eq_u32 s45, {niter}')
        a('s_cbranch_scc1 L_sB')
        if setC:
            a(f's_cmp_eq_u32 s45, {niter-1}')
            a('s_cbranch_scc1 L_sC')
        lab('L_sback')
        a('s_sub_u32 s45, s45, 1')
        a('s_max_i32 s45, s45, 1')
        a('s_cmp_lt_u32 s47, 0x200000')
        a('s_cbranch_scc1 L_sloop')
        self.stamp(84)
        if self.opt['stamps']:
            a('s_memtime s[92:93]')
        AC = 14
        a('v_lshlrev_b32 v46, 5, v45')
        a('v_bfe_u32 v30, v0, 5, 1')
        a('v_lshl_add_u32 v46, v30, 4, v46')
        a('s_lshl_b32 s7, s3, 10')
        a('v_add_u32 v46, s7, v46')
        for i in range(4):
            a(f'v_permlane32_swap_b32 v{AC+i}, v{AC+4+i}')
        for i in range(4):
            a(f'v_add_f32 v{AC+i}, v{AC+i}, v{AC+4+i}')
        a('s_lshl_b32 s7, s3, 3')
        a('v_mov_b32 v30, s7')
        a(f'ds_write_b128 v46, v[{AC}:{AC+3}] offset:{L_OW}')
        a(f'ds_write_b64 v30, v[40:41] offset:{L_HDR}')
        a('v_mov_b32 v31, 0')
        a('v_mov_b32 v32, 1')
        a('s_mov_b64 exec, 1')
        a('s_waitcnt lgkmcnt(0)')
        a(f'ds_add_rtn_u32 v33, v31, v32 offset:{L_CNT}')
        a('s_mov_b64 exec, -1')
        a('v_and_b32 v34, 63, v0')
        a('v_mul_u32_u24 v35, 24, v34')
        a('s_waitcnt lgkmcnt(0)')
        a('v_readfirstlane_b32 s7, v33')
        a('s_nop 0')
        a('s_cmp_lg_u32 s7, 3')
        if self.opt['stamps']:
            a('s_cbranch_scc1 L_sexit')
        else:
            a('s_cbranch_scc1 L_exit')
        H = 180
        a(f'ds_read_b128 v[{H}:{H+3}], v31 offset:{L_HDR}')
        a(f'ds_read_b128 v[{H+4}:{H+7}], v31 offset:{L_HDR+16}')
        D = 188
        for w in range(4):
            for e in range(3):
                a(f'ds_read_b64 v[{D+6*w+2*e}:{D+6*w+2*e+1}], v35 offset:{L_OW+1024*w+8*e}')
        a('s_and_b32 s48, s4, 15')
        a('s_lshl_b32 s48, s48, 4')
        a('s_lshr_b32 s49, s4, 4')
        a('s_lshl2_add_u32 s48, s49, s48')
        a('s_and_b32 s49, s2, 3')
        a('s_add_u32 s48, s48, s49')
        a('s_lshl_b32 s48, s48, 10')
        a(f's_add_u32 s48, s48, {OG}')
        a('v_lshl_add_u32 v36, v34, 4, s48')
        a('s_waitcnt lgkmcnt(12)')
        a(f'v_max3_f32 v30, v{H}, v{H+2}, v{H+4}')
        a(f'v_max_f32 v30, v30, v{H+6}')
        for w in range(4):
            a(f'v_sub_f32 v{H+2*w}, v{H+2*w}, v30')
        for w in range(4):
            a(f'v_exp_f32 v{H+2*w}, v{H+2*w}')
        a('s_nop 0')
        a(f'v_mul_f32 v31, v{H}, v{H+1}')
        for w in range(1, 4):
            a(f'v_fmac_f32 v31, v{H+2*w}, v{H+2*w+1}')
        a('v_rcp_f32 v32, v31')
        a('v_log_f32 v33, v31')
        a('v_cmp_eq_u32 s[50:51], 42, v34')
        a('v_cmp_gt_u32 vcc, 43, v34')
        for w in range(4):
            a(f'v_mul_f32 v{H+2*w}, v{H+2*w}, v32')
        a('v_add_f32 v33, v33, v30')
        a('s_waitcnt lgkmcnt(0)')
        for e in range(6):
            a(f'v_mul_f32 v{22+e}, v{H}, v{D+e}')
        for w in range(1, 4):
            for e in range(6):
                a(f'v_fmac_f32 v{22+e}, v{H+2*w}, v{D+6*w+e}')
        a('v_cvt_pk_bf16_f32 v44, v22, v23')
        a('v_cvt_pk_bf16_f32 v45, v24, v25')
        a('v_cvt_pk_bf16_f32 v46, v26, v27')
        a('v_cndmask_b32 v44, 0, v44, vcc')
        a('v_cndmask_b32 v45, 0, v45, vcc')
        a('v_cndmask_b32 v46, 0, v46, vcc')
        a('v_cndmask_b32 v46, v46, v33, s[50:51]')
        a('s_mov_b32 exec_lo, -1')
        a('s_mov_b32 exec_hi, 0xfff')
        a('global_store_dwordx4 v36, v[44:47], s[32:33] sc1')
        self.stamp(86)
        self.dbgtime(None, 8, True)
        if self.opt['stamps']:
            self.flush_stamps([(3, 86)])
            lab('L_sexit')
            a('s_cmp_lg_u32 s3, 0')
            a('s_cbranch_scc1 L_exit')
            a('s_getreg_b32 s88, hwreg(HW_REG_XCC_ID)')
            a('s_and_b32 s88, s88, 15')
            a('s_mov_b32 s89, 0')
            a('s_sub_u32 s90, s92, s90')
            a('s_mov_b32 s91, 0')
            self.flush_stamps([(0, 78), (1, 80), (2, 82), (8, 84), (6, 88), (7, 90)])
        a('s_endpgm')
        if NST < 16:
            lab('L_tkretry')
            a(f's_mov_b32 s48, {SPIN}')
            lab('L_tkr2')
            a('s_sleep 8')
            a('s_mov_b32 s50, 1')
            a('s_mov_b32 s51, 0')
            a('s_atomic_add_x2 s[50:51], s[52:53], 0x0 glc')
            a('s_sub_u32 s48, s48, 1')
            a('s_cbranch_scc1 L_exit')
            a('s_waitcnt lgkmcnt(0)')
            a('s_cmp_lg_u32 s51, s6')
            a('s_cbranch_scc1 L_tkr2')
            a('s_branch L_tkok')
        lab('L_sB')
        if 'noBC' in self.opt['exp']:
            a('s_branch L_sback')
        self.chunk(RB, False, False)
        a('s_branch L_sback')
        if setC:
            lab('L_sC')
            if 'noBC' in self.opt['exp']:
                a('s_branch L_sback')
            self.chunk(RC, False, False)
            a('s_branch L_sback')

    W1, B1, W2P, C1P, ET, EA = 64, 92, 120, 134, 136, 152

    def eval_sub(self):
        a = self.a
        W1, B1, W2P, C1P, ET, EA = self.W1, self.B1, self.W2P, self.C1P, self.ET, self.EA
        self.lab('L_eval')
        a(f'v_mov_b32 v{EA}, 0')
        for base in range(0, 14, 2):
            prs = [(base, ET), (base + 1, ET + 6)]
            for p, t in prs:
                a(f'v_pk_mul_f32 v[{t}:{t+1}], v[{W1+2*p}:{W1+2*p+1}], s[70:71]')
            for p, t in prs:
                a(f'v_cvt_pk_bf16_f32 v{t+4}, v{t}, v{t+1}')
            for p, t in prs:
                self.unpack(t, t + 1, t + 4)
            for p, t in prs:
                a(f'v_pk_add_f32 v[{t}:{t+1}], v[{t}:{t+1}], v[{B1+2*p}:{B1+2*p+1}]')
            for p, t in prs:
                a(f'v_cvt_pk_bf16_f32 v{t+4}, v{t}, v{t+1}')
            for p, t in prs:
                self.unpack(t, t + 1, t + 4)
            for p, t in prs:
                a(f'v_pk_mul_f32 v[{t+2}:{t+3}], v[{t}:{t+1}], v[{t}:{t+1}]')
            for p, t in prs:
                a(f'v_pk_fma_f32 v[{t+2}:{t+3}], v[{t+2}:{t+3}], s[72:73], v[{C1P}:{C1P+1}]')
            for p, t in prs:
                a(f'v_pk_mul_f32 v[{t+2}:{t+3}], v[{t+2}:{t+3}], v[{t}:{t+1}]')
            for p, t in prs:
                a(f'v_exp_f32 v{t+2}, v{t+2}')
                a(f'v_exp_f32 v{t+3}, v{t+3}')
            a('s_nop 0')
            for p, t in prs:
                a(f'v_add_f32 v{t+2}, 1.0, v{t+2}')
                a(f'v_add_f32 v{t+3}, 1.0, v{t+3}')
            for p, t in prs:
                a(f'v_rcp_f32 v{t+2}, v{t+2}')
                a(f'v_rcp_f32 v{t+3}, v{t+3}')
            a('s_nop 0')
            for p, t in prs:
                a(f'v_pk_mul_f32 v[{t}:{t+1}], v[{t}:{t+1}], v[{t+2}:{t+3}]')
            for p, t in prs:
                a(f'v_cvt_pk_bf16_f32 v{t+4}, v{t}, v{t+1}')
            for p, t in prs:
                a(f'v_dot2c_f32_bf16 v{EA}, v{t+4}, v{W2P+p}')
        self.nop(2)
        self.ladder64([EA], [ET])
        self.bf16r(EA, EA)
        a(f'v_add_f32 v{EA}, s74, v{EA}')
        a(f'v_cvt_pk_bf16_f32 v153, v{EA}, 0')
        a('s_setpc_b64 s[76:77]')

    def helper(self):
        a, lab = self.a, self.lab
        opt = self.opt
        if 'nohelp' in opt['exp']:
            a('s_endpgm')
        self.stamp(90)
        a('s_setprio 3')
        a('s_sub_u32 s34, s3, 4')
        a('v_and_b32 v1, 63, v0')
        a('v_lshrrev_b32 v2, 4, v1')
        a('v_and_b32 v3, 15, v1')
        a('v_mul_u32_u24 v4, 896, v2')
        a('v_lshl_add_u32 v4, v3, 4, v4')
        a('v_cmp_gt_u32 s[60:61], 14, v3')
        a('v_bfrev_b32 v7, 1')
        a('v_lshrrev_b32 v5, 2, v1')
        a('v_and_b32 v6, 3, v1')
        a('v_cndmask_b32 v4, v7, v4, s[60:61]')
        a('v_cmp_gt_u32 vcc, 56, v1')
        a('v_lshlrev_b32 v56, 16, v5')
        a('v_lshl_add_u32 v56, v6, 3, v56')
        a('v_cndmask_b32 v56, v7, v56, vcc')
        for r in range(4):
            a(f's_add_u32 s{40+r}, s34, {r}')
            a(f's_and_b32 s{40+r}, s{40+r}, 3')
            a(f's_mul_i32 s{40+r}, s{40+r}, 224')
        a(f's_mul_i32 s48, s34, {112*8192}')
        a('s_lshl_b32 s49, s5, 5')
        a('s_add_u32 s48, s48, s49')
        for it in range(1, 8):
            a(f's_add_u32 s{48+it}, s48, {8192*it}')
        a('s_mov_b32 s38, 3584')
        a('s_mov_b32 s39, 0x20000')
        a('s_mov_b32 s46, 3670016')
        a('s_mov_b32 s47, 0x20000')
        a('s_waitcnt lgkmcnt(0)')
        self.stamp(92)
        a('s_mov_b32 s36, s8')
        a('s_mov_b32 s37, s9')
        a('s_mov_b32 s44, s14')
        a('s_mov_b32 s45, s15')
        for r in range(4):
            a(f'buffer_load_dwordx4 v[{8+4*r}:{11+4*r}], v4, s[36:39], s{40+r} offen')
        WR = 60
        for it in range(8):
            if 'nowq' in opt['exp']:
                a(f'buffer_load_dwordx2 v[{WR+2*it}:{WR+2*it+1}], v7, s[44:47], s{48+it} offen')
                continue
            a(f'buffer_load_dwordx2 v[{WR+2*it}:{WR+2*it+1}], v56, s[44:47], s{48+it} offen {opt["wqf"]}')
        self.stamp(94)
        if opt['bar0']:
            a('s_barrier')
        a(f's_mov_b32 s62, {f2u(1.0/448):#x}')
        a(f's_mov_b32 s63, {f2u(1e-5):#x}')
        a('s_mov_b32 s64, 0x05040100')
        a('s_mov_b32 s65, 0x07060302')
        a('s_lshl_b32 s18, s34, 10')
        a('v_lshl_add_u32 v57, v1, 4, s18')
        a('v_lshl_add_u32 v58, v5, 4, s18')
        self.vstamp(226)
        if self.opt['stamps']:
            for i in range(6):
                a(f'v_mov_b32 v{220+i}, s{90+i}')
        a('s_waitcnt vmcnt(8)')
        self.vstamp(228)
        XF = 24
        for i in range(16):
            self.unpack(XF + 2 * i, XF + 2 * i + 1, 8 + i)
        PV, S1, S2, DT = 76, 78, 80, 82
        a('s_nop 0')
        a(f'v_mov_b32_dpp v{PV}, v{XF} row_newbcast:0 row_mask:0xf bank_mask:0xf')
        for i in range(16):
            d = DT + 2 * (i & 1)
            a(f'v_pk_add_f32 v[{d}:{d+1}], v[{XF+2*i}:{XF+2*i+1}], v[{PV}:{PV+1}] op_sel_hi:[1,0] neg_lo:[0,1] neg_hi:[0,1]')
            if i == 0:
                a(f'v_pk_mul_f32 v[{S2}:{S2+1}], v[{d}:{d+1}], v[{d}:{d+1}]')
                a(f'v_mov_b32 v{S1}, v{d}')
                a(f'v_mov_b32 v{S1+1}, v{d+1}')
            else:
                a(f'v_pk_fma_f32 v[{S2}:{S2+1}], v[{d}:{d+1}], v[{d}:{d+1}], v[{S2}:{S2+1}]')
                a(f'v_pk_add_f32 v[{S1}:{S1+1}], v[{S1}:{S1+1}], v[{d}:{d+1}]')
        a(f'v_add_f32 v{S1}, v{S1}, v{S1+1}')
        a(f'v_add_f32 v{S2}, v{S2}, v{S2+1}')
        a(f'v_cndmask_b32 v{S1}, 0, v{S1}, s[60:61]')
        a(f'v_cndmask_b32 v{S2}, 0, v{S2}, s[60:61]')
        for ror in (8, 4, 2, 1):
            a('s_nop 0')
            a(f'v_add_f32_dpp v{S1}, v{S1}, v{S1} row_ror:{ror} row_mask:0xf bank_mask:0xf')
            a(f'v_add_f32_dpp v{S2}, v{S2}, v{S2} row_ror:{ror} row_mask:0xf bank_mask:0xf')
        MO, RO = 86, 88
        self.ln_stats(S1, S2, PV, 84, 85, 62, 63, MO, RO)
        for i in range(4):
            a(f'v_pk_add_f32 v[{XF+2*i}:{XF+2*i+1}], v[{XF+2*i}:{XF+2*i+1}], v[{MO}:{MO+1}] op_sel_hi:[1,0] neg_lo:[0,1] neg_hi:[0,1]')
        for i in range(4):
            a(f'v_cvt_pk_bf16_f32 v{8+i}, v{XF+2*i}, v{XF+2*i+1}')
        for i in range(4):
            self.unpack(XF + 2 * i, XF + 2 * i + 1, 8 + i)
        for i in range(4):
            a(f'v_pk_mul_f32 v[{XF+2*i}:{XF+2*i+1}], v[{XF+2*i}:{XF+2*i+1}], v[{RO}:{RO+1}] op_sel_hi:[1,0]')
        for i in range(4):
            a(f'v_cvt_pk_bf16_f32 v{8+i}, v{XF+2*i}, v{XF+2*i+1}')
        a(f'ds_write_b128 v57, v[8:11] offset:{L_XN}')
        a('s_waitcnt lgkmcnt(0)')
        a('s_load_dword s6, s[30:31], 0')
        XN = 8
        for b in range(4):
            a(f'ds_read_b128 v[{XN+4*b}:{XN+4*b+3}], v58 offset:{L_XN+256*b}')
        self.vstamp(230)
        a('s_waitcnt vmcnt(0)')
        self.vstamp(232)
        PP = 24
        for p in range(4):
            for dw in range(2):
                a(f'v_perm_b32 v{PP+4*p+2*dw}, v{WR+4*p+2+dw}, v{WR+4*p+dw}, s64')
                a(f'v_perm_b32 v{PP+4*p+2*dw+1}, v{WR+4*p+2+dw}, v{WR+4*p+dw}, s65')
        a('s_waitcnt lgkmcnt(0)')
        QA = 40
        for p in range(4):
            for b in range(4):
                for e in range(4):
                    src2 = '0' if p == 0 else f'v{QA+4*b+e}'
                    a(f'v_dot2_f32_bf16 v{QA+4*b+e}, v{PP+4*p+e}, v{XN+4*b+p}, {src2}')
        for v in range(0, 16, 2):
            a(f'v_add_f32_dpp v{QA+v}, v{QA+v}, v{QA+v} row_shl:4 row_mask:0xf bank_mask:0x5')
            a(f'v_add_f32_dpp v{QA+v}, v{QA+v+1}, v{QA+v+1} row_shr:4 row_mask:0xf bank_mask:0xa')
        for v in range(0, 16, 4):
            a(f'v_add_f32_dpp v{QA+v}, v{QA+v}, v{QA+v} row_ror:8 row_mask:0xf bank_mask:0x3')
            a(f'v_add_f32_dpp v{QA+v}, v{QA+v+2}, v{QA+v+2} row_ror:8 row_mask:0xf bank_mask:0xc')
        a('s_lshl_b32 s18, s34, 8')
        a('v_lshl_add_u32 v57, v1, 2, s18')
        a(f'v_permlane16_swap_b32 v{QA}, v{QA+4}')
        a(f'v_permlane16_swap_b32 v{QA+8}, v{QA+12}')
        a(f'v_add_f32 v{QA}, v{QA}, v{QA+4}')
        a(f'v_add_f32 v{QA+8}, v{QA+8}, v{QA+12}')
        self.nop(2)
        a(f'v_permlane32_swap_b32 v{QA}, v{QA+8}')
        a(f'v_add_f32 v{QA}, v{QA}, v{QA+8}')
        a(f'ds_write_b32 v57, v{QA} offset:{L_QP}')
        self.vstamp(234)
        for sec in (1, 2, 3):
            a('s_waitcnt lgkmcnt(0)')
            a('s_cmp_lg_u32 s6, 0')
            a('s_cbranch_scc1 L_hnok')
            a('s_sleep 4')
            a(f's_load_dword s6, s[30:31], {64*sec}')
        a(f's_mov_b32 s19, {SPIN}')
        a('v_mov_b32 v58, 0')
        a('s_waitcnt lgkmcnt(0)')
        lab('L_hnw')
        a('s_cmp_lg_u32 s6, 0')
        a('s_cbranch_scc1 L_hnok')
        a('s_sub_u32 s19, s19, 1')
        a('s_cbranch_scc1 L_exit')
        a('global_load_dword v59, v58, s[30:31] sc1')
        a('s_waitcnt vmcnt(0)')
        a('v_readfirstlane_b32 s6, v59')
        a('s_nop 0')
        a('s_branch L_hnw')
        lab('L_hnok')
        self.vstamp(236)
        a('s_lshl_b32 s18, s34, 2')
        a('v_mov_b32 v58, s18')
        a('v_mov_b32 v59, s6')
        a(f'ds_write_b32 v58, v59 offset:{L_FLG}')
        a('s_and_b32 s35, s4, 15')
        a('s_lshl_b32 s35, s35, 2')
        a('s_lshr_b32 s7, s4, 4')
        a('s_add_u32 s35, s35, s7')
        a('s_lshl_b32 s35, s35, 10')
        a('s_lshl_b32 s7, s34, 8')
        a('s_add_u32 s35, s35, s7')
        a('s_add_u32 s100, s32, s35')
        a('s_addc_u32 s101, s33, 0')
        a('s_cmp_lg_u32 s34, 0')
        a('s_cbranch_scc1 L_hq')
        a('v_mov_b32 v58, 0')
        a(f'ds_write_b32 v58, v58 offset:{L_CNT}')
        a('v_lshlrev_b32 v57, 2, v1')
        a('s_lshr_b32 s18, s5, 4')
        a('s_lshl_b32 s18, s18, 12')
        a('s_and_b32 s19, s5, 15')
        a('s_lshl_b32 s19, s19, 6')
        a('s_add_u32 s18, s18, s19')
        a('v_lshrrev_b32 v8, 4, v1')
        a('v_lshlrev_b32 v8, 10, v8')
        a('v_bfe_u32 v9, v1, 1, 1')
        a('v_lshl_add_u32 v8, v9, 4, v8')
        a('v_bfe_u32 v9, v1, 3, 1')
        a('v_lshl_add_u32 v8, v9, 5, v8')
        a('v_add_u32 v8, s18, v8')
        a(f's_mov_b32 s19, {SPIN}')
        lab('L_hfw')
        a(f'ds_read_b128 v[12:15], v58 offset:{L_FLG}')
        a('s_sub_u32 s19, s19, 1')
        a('s_cbranch_scc1 L_exit')
        a('s_waitcnt lgkmcnt(0)')
        a('v_xor_b32 v12, s6, v12')
        a('v_bitop3_b32 v12, v13, s6, v12 bitop3:0xbe')
        a('v_bitop3_b32 v12, v14, s6, v12 bitop3:0xbe')
        a('v_bitop3_b32 v12, v15, s6, v12 bitop3:0xbe')
        a('v_cmp_eq_u32 vcc, 0, v12')
        a('s_cbranch_vccz L_hfw')
        self.vstamp(238)
        a(f'ds_read2st64_b32 v[12:13], v57 offset0:{L_QP//256} offset1:{L_QP//256+1}')
        a(f'ds_read2st64_b32 v[14:15], v57 offset0:{L_QP//256+2} offset1:{L_QP//256+3}')
        a('v_mov_b32 v18, s6')
        a('v_mov_b32 v19, s6')
        a('s_waitcnt lgkmcnt(0)')
        a('v_add_f32 v12, v12, v13')
        a('v_add_f32 v14, v14, v15')
        a('v_add_f32 v12, v12, v14')
        self.nop(2)
        a('v_mov_b32_dpp v13, v12 row_shl:4 row_mask:0xf bank_mask:0xf')
        a('v_cvt_pk_bf16_f32 v16, v12, v13')
        self.nop(2)
        a('v_mov_b32_dpp v17, v16 quad_perm:[1,0,3,2] row_mask:0xf bank_mask:0xf')
        a('s_mov_b32 exec_lo, 0x05050505')
        a('s_mov_b32 exec_hi, 0x05050505')
        a('v_and_b32 v9, 4, v1')
        if 'noqst' not in opt['exp']:
            a('global_store_dwordx4 v8, v[16:19], s[32:33] sc1')
        a('s_mov_b64 exec, -1')
        self.vstamp(240)
        lab('L_hq')
        a(f's_mov_b32 s19, {SPIN}')
        if 'nopoll' in opt['exp']:
            a('s_sleep 60')
            a('s_branch L_hqok')
        lab('L_hqw')
        for p in range(4):
            a(f's_load_dwordx16 s[{36+16*p}:{51+16*p}], s[100:101], {64*p} glc')
        a('s_sub_u32 s19, s19, 1')
        a('s_cbranch_scc1 L_exit')
        a('s_waitcnt lgkmcnt(0)')
        tags = [36 + 16 * p + 4 * g + 2 for p in range(4) for g in range(4)]
        a(f's_xor_b32 s7, s{tags[0]}, s6')
        for t in tags[1:]:
            a(f's_xor_b32 s18, s{t}, s6')
            a('s_or_b32 s7, s7, s18')
        a('s_cbranch_scc0 L_hqok')
        a('s_sleep 2')
        a('s_branch L_hqw')
        lab('L_hqok')
        order = {0: 0, 1: 2, 4: 4, 5: 6, 8: 1, 9: 3, 12: 5, 13: 7}
        for p in range(4):
            for k, pr in order.items():
                a(f'v_writelane_b32 v8, s{36+16*p+k}, {8*p+pr}')
        a('s_lshl_b32 s18, s34, 7')
        a('v_lshl_add_u32 v9, v1, 2, s18')
        a('s_mov_b32 exec_hi, 0')
        a(f'ds_write_b32 v9, v8 offset:{L_QL}')
        a('s_mov_b64 exec, -1')
        a('s_load_dword s74, s[26:27], 0')
        a('s_lshl_b32 s18, s34, 2')
        a('v_mov_b32 v9, s18')
        a('v_mov_b32 v8, s6')
        a('s_waitcnt lgkmcnt(0)')
        a(f'ds_write_b32 v9, v8 offset:{L_FL2}')
        self.vstamp(242)
        a('s_setprio 0')
        if 'qonly' in opt['exp']:
            a('s_endpgm')
        if opt['NST'] < 16:
            a('s_and_b32 s18, s2, 3')
            a('s_lshl2_add_u32 s18, s18, s34')
            a('s_cmp_lg_u32 s18, 1')
            a('s_cbranch_scc1 L_htk')
            a('s_lshl_b32 s18, s4, 8')
            a(f's_add_u32 s18, s18, {TK}')
            a('v_mov_b32 v10, s18')
            a('v_mov_b32 v8, 0')
            a('v_mov_b32 v9, s6')
            a('s_mov_b64 exec, 1')
            a('global_store_dwordx2 v10, v[8:9], s[32:33] sc1')
            a('s_mov_b64 exec, -1')
            lab('L_htk')
        a('s_cmp_eq_u32 s34, 0')
        a('s_cbranch_scc1 L_work')
        a('s_cmp_ge_u32 s34, 2')
        a('s_cbranch_scc1 L_hw')
        a('s_cmp_ge_u32 s2, 4')
        a('s_cbranch_scc1 L_exit')
        a('s_lshl_b32 s18, s2, 11')
        a(f's_add_u32 s18, s18, {ACC}')
        a('v_lshl_add_u32 v4, v1, 4, s18')
        for i in range(4):
            a(f'v_mov_b32 v{8+i}, 0')
        a('global_store_dwordx4 v4, v[8:11], s[32:33] sc1')
        a('global_store_dwordx4 v4, v[8:11], s[32:33] offset:1024 sc1')
        a('s_lshl_b32 s18, s2, 2')
        a(f's_add_u32 s18, s18, {RDY}')
        a('v_mov_b32 v12, s18')
        a('v_mov_b32 v13, s6')
        a('s_waitcnt vmcnt(0)')
        a('s_mov_b64 exec, 1')
        a('global_store_dword v12, v13, s[32:33] sc1')
        a('s_mov_b64 exec, -1')
        lab('L_hw')
        a('v_lshlrev_b32 v2, 4, v1')
        a('v_lshlrev_b32 v3, 3, v1')
        W1, B1, C1P, W2P = self.W1, self.B1, self.C1P, self.W2P
        for base, sp in ((160, 20), (176, 22), (W2P, 24)):
            for r in range(3):
                a(f'global_load_dwordx4 v[{base+4*r}:{base+4*r+3}], v2, s[{sp}:{sp+1}] offset:{1024*r}')
            a(f'global_load_dwordx2 v[{base+12}:{base+13}], v3, s[{sp}:{sp+1}] offset:3072')
        k2 = -2.0 * math.sqrt(2.0 / math.pi) * LOG2E
        a(f'v_mov_b32 v{C1P}, {f2u(k2):#x}')
        a(f'v_mov_b32 v{C1P+1}, {f2u(k2):#x}')
        a(f's_mov_b32 s72, {f2u(k2*0.044715):#x}')
        a('s_mov_b32 s73, s72')
        a('s_lshl_b32 s74, s74, 16')
        a('s_waitcnt vmcnt(0)')
        for i in range(14):
            self.unpack(W1 + 2 * i, W1 + 2 * i + 1, 160 + i)
            self.unpack(B1 + 2 * i, B1 + 2 * i + 1, 176 + i)
        a('s_cmp_eq_u32 s34, 1')
        a('s_cbranch_scc1 L_cons')
        a('s_lshl_b32 s40, s2, 2')
        a('s_lshl1_add_u32 s40, s34, s40')
        a('s_sub_u32 s40, s40, 4')
        a('s_add_u32 s50, s40, 2')
        lab('L_tb')
        a('s_mul_i32 s41, s40, 6')
        a(f's_cmp_ge_u32 s41, {NTH}')
        a(f's_mov_b32 s43, {E0 << 7}')
        a(f's_cselect_b32 s42, {0x8000 - NTH + (E0 << 7)}, s43')
        a('s_add_u32 s41, s41, s42')
        for n in range(6):
            a(f's_add_u32 s70, s41, {n}')
            a('s_lshl_b32 s70, s70, 16')
            a('s_mov_b32 s71, s70')
            if 'noeval' not in self.opt['exp']:
                a('s_call_b64 s[76:77], L_eval')
            a('s_nop 0')
            a(f'v_readfirstlane_b32 s{44+n}, v153')
        a('s_nop 0')
        for n in range(3):
            a(f's_pack_ll_b32_b16 s{44+n}, s{44+2*n}, s{45+2*n}')
        a('s_lshl_b32 s41, s40, 4')
        a(f's_add_u32 s41, s41, {TG}')
        a('v_mov_b32 v8, s44')
        a('v_mov_b32 v9, s45')
        a('v_mov_b32 v10, s46')
        a('v_mov_b32 v11, s6')
        a('v_mov_b32 v12, s41')
        a('s_mov_b64 exec, 1')
        a('global_store_dwordx4 v12, v[8:11], s[32:33] sc1')
        a('s_mov_b64 exec, -1')
        a('s_add_u32 s40, s40, 1')
        a('s_cmp_lt_u32 s40, s50')
        a('s_cbranch_scc1 L_tb')
        if self.opt['stamps']:
            a('s_cmp_lg_u32 s34, 2')
            a('s_cbranch_scc1 L_exit')
            self.stamp(24)
            self.flush_stamps([(15, 24)])
        a('s_endpgm')
        lab('L_work')
        self.worker()
        self.consumer()
        self.eval_sub()

    def wait_done(self, name):
        a, lab = self.a, self.lab
        a('v_mov_b32 v6, 0')
        a(f's_mov_b32 s19, {SPIN}')
        lab(name)
        a('s_sleep 2')
        a(f'ds_read_b32 v7, v6 offset:{L_CNT}')
        a('s_sub_u32 s19, s19, 1')
        a('s_cbranch_scc1 L_exit')
        a('s_waitcnt lgkmcnt(0)')
        a('v_cmp_eq_u32 vcc, 0, v7')
        a(f's_cbranch_vccnz {name}')

    def worker(self):
        a, lab = self.a, self.lab
        opt = self.opt
        a('s_lshr_b32 s40, s5, 4')
        a('s_and_b32 s41, s5, 15')
        a('s_mul_i32 s42, s40, 229376')
        a('s_mul_i32 s43, s41, 56')
        a('s_add_u32 s42, s42, s43')
        a('s_add_u32 s36, s16, s42')
        a('s_addc_u32 s37, s17, 0')
        a('s_sub_u32 s38, 229376, s43')
        a('s_mov_b32 s39, 0x20000')
        a('v_mul_u32_u24 v2, 37, v1')
        a('v_lshrrev_b32 v2, 8, v2')
        a('v_mul_u32_u24 v3, 7, v2')
        a('v_sub_u32 v3, v1, v3')
        a('v_mul_u32_u24 v2, 896, v2')
        a('v_lshl_add_u32 v2, v3, 3, v2')
        a('v_lshlrev_b32 v3, 3, v1')
        a('s_mov_b32 exec_hi, 0x7fffffff')
        a('s_mov_b32 s44, 0')
        for it in range(30 if 'nowo' not in opt['exp'] else 0):
            a(f'buffer_load_dwordx2 v[{160+2*it}:{161+2*it}], v2, s[36:39], s44 offen {opt["wof"]}')
            a('s_add_u32 s44, s44, 8064')
        for it in range(30 if 'nowo' not in opt['exp'] else 0):
            a(f's_waitcnt vmcnt({29-it})')
            a(f'ds_write_b64 v3, v[{160+2*it}:{161+2*it}] offset:{L_WOS+504*it}')
        a('s_mov_b64 exec, -1')
        BF = 64
        for i in range(88):
            a(f'v_mov_b32 v{BF+i}, 0')
        a('v_lshrrev_b32 v5, 4, v1')
        a('v_and_b32 v6, 15, v1')
        a('v_mul_u32_u24 v2, 336, v5')
        a('v_lshl_add_u32 v2, v6, 1, v2')
        a('s_mov_b32 exec_lo, 0x3fff3fff')
        a('s_mov_b32 exec_hi, 0x3fff3fff')
        a('s_waitcnt lgkmcnt(0)')
        for kk in range(11 if 'nowo' not in opt['exp'] else 0):
            for t in range(2):
                for e in range(6):
                    a(f'ds_read_u16 v{8+6*t+e}, v2 offset:{L_WOS+1344*kk+56*e+28*t}')
            a('s_waitcnt lgkmcnt(0)')
            for t in range(2):
                for uu in range(3):
                    a(f'v_lshl_or_b32 v{BF+8*kk+4*t+uu}, v{8+6*t+2*uu+1}, 16, v{8+6*t+2*uu}')
        a('s_mov_b64 exec, -1')
        a('s_lshl_b32 s42, s40, 14')
        a(f's_add_u32 s42, s42, {OG}')
        a('v_lshlrev_b32 v2, 10, v6')
        a('v_lshl_add_u32 v2, v5, 4, v2')
        a('v_add_u32 v2, s42, v2')
        a('s_lshl_b32 s42, s41, 7')
        a(f's_add_u32 s42, s42, {ACC}')
        a('v_lshlrev_b32 v3, 11, v5')
        a('v_lshl_add_u32 v3, v6, 2, v3')
        a('v_add_u32 v3, s42, v3')
        a('v_cmp_eq_u32 vcc, 15, v6')
        a('v_lshlrev_b32 v8, 4, v5')
        a('v_add_u32 v8, 128, v8')
        a('v_cndmask_b32 v4, 0, 1.0, vcc')
        a(f'v_mov_b32 v9, {RDY}')
        a('v_lshl_add_u32 v9, v5, 2, v9')
        a(f's_mov_b32 s19, {SPIN}')
        lab('L_wr')
        a('global_load_dword v10, v9, s[32:33] sc1')
        a('s_sub_u32 s19, s19, 1')
        a('s_cbranch_scc1 L_exit')
        a('s_waitcnt vmcnt(0)')
        a('v_cmp_ne_u32 vcc, s6, v10')
        a('s_cbranch_vccnz L_wr')
        self.stamp(24)
        self.wait_done('L_wd')
        a('s_setprio 3')
        AF = 160
        a(f's_mov_b32 s19, {SPIN}')
        lab('L_wp')
        for kk in range(11):
            a(f'global_load_dwordx4 v[{AF+4*kk}:{AF+4*kk+3}], v2, s[32:33] offset:{64*kk} sc1')
        a('s_sub_u32 s19, s19, 1')
        a('s_cbranch_scc1 L_exit')
        for kk in range(11):
            a(f's_waitcnt vmcnt({10-kk})')
            if kk == 0:
                a(f'v_xor_b32 v9, s6, v{AF+3}')
            else:
                a(f'v_bitop3_b32 v9, v{AF+4*kk+3}, s6, v9 bitop3:0xbe')
        a('v_cmp_ne_u32 vcc, 0, v9')
        a('s_and_b64 exec, exec, vcc')
        if opt['psleep']:
            a('s_cbranch_execz L_wpx')
            a(f's_sleep {opt["psleep"]}')
            a('s_branch L_wp')
            lab('L_wpx')
        else:
            a('s_cbranch_execnz L_wp')
        a('s_mov_b64 exec, -1')
        self.stamp(26)
        D0, D1 = 204, 208
        LS = AF + 42
        def mf(kk):
            for t, d in ((0, D0), (1, D1)):
                c = '0' if kk == 0 else f'v[{d}:{d+3}]'
                a(f'v_mfma_f32_16x16x32_bf16 v[{d}:{d+3}], v[{AF+4*kk}:{AF+4*kk+3}], v[{BF+8*kk+4*t}:{BF+8*kk+4*t+3}], {c}')
        a(f'v_mov_b32 v10, v{LS}')
        a('v_cmp_eq_u32 vcc, 2, v5')
        mf(0)
        a(f'v_cndmask_b32 v{LS}, v{LS}, 0, vcc')
        a('v_max_f32_dpp v11, v10, v10 quad_perm:[1,0,3,2] row_mask:0xf bank_mask:0xf')
        mf(1)
        a('v_max_f32_dpp v11, v11, v11 quad_perm:[2,3,0,1] row_mask:0xf bank_mask:0xf')
        a('v_sub_f32 v10, v10, v11')
        mf(2)
        a('v_exp_f32 v10, v10')
        mf(3)
        a('v_add_f32_dpp v11, v10, v10 quad_perm:[1,0,3,2] row_mask:0xf bank_mask:0xf')
        mf(4)
        a('v_add_f32_dpp v11, v11, v11 quad_perm:[2,3,0,1] row_mask:0xf bank_mask:0xf')
        a('v_rcp_f32 v11, v11')
        mf(5)
        a('v_mul_f32 v10, v10, v11')
        for r in range(4):
            a(f'ds_bpermute_b32 v{12+r}, v8, v10 offset:{4*r}')
        for kk in range(6, 11):
            mf(kk)
        a('s_waitcnt lgkmcnt(0)')
        self.nop(7)
        a(f'v_fma_f32 v16, v12, v{D0}, v4')
        a(f'v_fma_f32 v17, v12, v{D1}, v4')
        for r in range(1, 4):
            a(f'v_fmac_f32 v16, v{12+r}, v{D0+r}')
            a(f'v_fmac_f32 v17, v{12+r}, v{D1+r}')
        a('global_atomic_add_f32 v3, v16, s[32:33]')
        a('global_atomic_add_f32 v3, v17, s[32:33] offset:64')
        self.stamp(28)
        self.unvstamp(240, 20)
        self.unvstamp(242, 22)
        self.flush_stamps([(9, 20), (10, 22), (11, 24), (4, 26), (5, 28)])
        for i, v in enumerate((226, 228, 230, 232, 234, 236, 220, 222, 224, 238)):
            self.unvstamp(v, 20)
            self.flush_stamps([(16 + i, 20)])
        a('s_endpgm')

    def consumer(self):
        a, lab = self.a, self.lab
        lab('L_cons')
        a('s_mov_b32 s36, s8')
        a('s_mov_b32 s37, s9')
        a('s_mov_b32 s38, 3584')
        a('s_mov_b32 s39, 0x20000')
        a('s_mov_b32 s40, s28')
        a('s_mov_b32 s41, s29')
        a('s_mov_b32 s42, 3584')
        a('s_mov_b32 s43, 0x20000')
        a('s_mul_i32 s44, s2, 896')
        a('v_lshrrev_b32 v2, 2, v1')
        a('v_and_b32 v3, 3, v1')
        a('v_mul_u32_u24 v2, 28, v2')
        a('v_lshl_add_u32 v2, v3, 3, v2')
        for r in range(2):
            for ep in range(2):
                a(f'buffer_load_dword v{8+2*r+ep}, v2, s[36:39], s44 offen offset:{448*r+4*ep}')
        a('s_mov_b32 s46, 0x88888888')
        a('s_mov_b32 s47, 0x88888888')
        a(f's_mov_b32 s62, {f2u(1.0/448):#x}')
        a(f's_mov_b32 s63, {f2u(1e-5):#x}')
        a('s_waitcnt vmcnt(0)')
        XF = 12
        for i in range(4):
            self.unpack(XF + 2 * i, XF + 2 * i + 1, 8 + i)
        a(f'v_lshlrev_b32 v5, 4, v1')
        a(f'v_add_u32 v5, {TG}, v5')
        a('v_mul_u32_u24 v3, 12, v1')
        a(f'v_add_u32 v3, {L_TBL}, v3')
        TF = 160
        a(f's_mov_b32 s19, {SPIN}')
        lab('L_ct')
        for it in range(16):
            if it % 4 == 0 and it:
                a('v_add_u32 v5, 4096, v5')
            a(f'global_load_dwordx4 v[{TF+4*it}:{TF+4*it+3}], v5, s[32:33] offset:{1024*(it%4)} sc1')
        a('v_subrev_u32 v5, 12288, v5')
        a('s_sub_u32 s19, s19, 1')
        a('s_cbranch_scc1 L_exit')
        a('s_waitcnt vmcnt(0)')
        a(f'v_xor_b32 v9, s6, v{TF+3}')
        for it in range(1, 16):
            a(f'v_bitop3_b32 v9, v{TF+4*it+3}, s6, v9 bitop3:0xbe')
        a('v_cmp_ne_u32 vcc, 0, v9')
        a('s_cbranch_vccz L_ct2')
        a('s_sleep 32')
        a('s_branch L_ct')
        lab('L_ct2')
        for it in range(16):
            a(f'ds_write2_b32 v3, v{TF+4*it}, v{TF+4*it+1} offset0:0 offset1:1')
            a(f'ds_write_b32 v3, v{TF+4*it+2} offset:8')
            a('v_add_u32 v3, 768, v3')
        self.stamp(24)
        self.wait_done('L_cd')
        a('s_setprio 3')
        A = 20
        a(f's_mov_b32 s19, {SPIN}')
        a(f's_mov_b32 s45, {f2u(16.0):#x}')
        lab('L_cp')
        a(f'global_load_dwordx4 v[{A}:{A+3}], v4, s[32:33] sc1')
        a(f'global_load_dwordx4 v[{A+4}:{A+7}], v4, s[32:33] offset:1024 sc1')
        a('s_sub_u32 s19, s19, 1')
        a('s_cbranch_scc1 L_exit')
        a('s_waitcnt vmcnt(0)')
        a(f'v_cmp_eq_f32 vcc, s45, v{A+3}')
        a(f'v_cmp_eq_f32 s[48:49], s45, v{A+7}')
        a('s_and_b64 s[48:49], s[48:49], vcc')
        a('s_and_b64 s[48:49], s[48:49], s[46:47]')
        a('s_cmp_eq_u64 s[48:49], s[46:47]')
        a('s_cbranch_scc0 L_cp')
        self.stamp(26)
        P = 28
        Hh = 32
        Dd = 40
        S1, S2, PV, MO, RO = 48, 50, 52, 54, 56
        for i in range(4):
            a(f'v_cvt_pk_bf16_f32 v{P+i}, v{A+2*i}, v{A+2*i+1}')
        for i in range(4):
            self.unpack(A + 2 * i, A + 2 * i + 1, P + i)
        for i in range(4):
            a(f'v_pk_add_f32 v[{A+2*i}:{A+2*i+1}], v[{A+2*i}:{A+2*i+1}], v[{XF+2*i}:{XF+2*i+1}]')
        for i in range(4):
            a(f'v_cvt_pk_bf16_f32 v{P+i}, v{A+2*i}, v{A+2*i+1}')
        for i in range(4):
            self.unpack(Hh + 2 * i, Hh + 2 * i + 1, P + i)

        def sums(src, piv):
            if piv:
                a(f'v_readfirstlane_b32 s50, v{src}')
                a('s_nop 1')
                a(f'v_mov_b32 v{PV}, s50')
                for i in range(4):
                    a(f'v_pk_add_f32 v[{Dd+2*i}:{Dd+2*i+1}], v[{src+2*i}:{src+2*i+1}], v[{PV}:{PV+1}] op_sel_hi:[1,0] neg_lo:[0,1] neg_hi:[0,1]')
                s = Dd
            else:
                s = src
            for i in (2, 3, 6, 7):
                a(f'v_cndmask_b32 v{Dd+i}, v{s+i}, 0, s[46:47]')
            idx = [s, Dd + 2, s + 4, Dd + 6]
            a(f'v_pk_add_f32 v[{S1}:{S1+1}], v[{idx[0]}:{idx[0]+1}], v[{idx[1]}:{idx[1]+1}]')
            a(f'v_pk_mul_f32 v[{S2}:{S2+1}], v[{idx[0]}:{idx[0]+1}], v[{idx[0]}:{idx[0]+1}]')
            a(f'v_pk_add_f32 v[{S1}:{S1+1}], v[{S1}:{S1+1}], v[{idx[2]}:{idx[2]+1}]')
            a(f'v_pk_fma_f32 v[{S2}:{S2+1}], v[{idx[1]}:{idx[1]+1}], v[{idx[1]}:{idx[1]+1}], v[{S2}:{S2+1}]')
            a(f'v_pk_add_f32 v[{S1}:{S1+1}], v[{S1}:{S1+1}], v[{idx[3]}:{idx[3]+1}]')
            a(f'v_pk_fma_f32 v[{S2}:{S2+1}], v[{idx[2]}:{idx[2]+1}], v[{idx[2]}:{idx[2]+1}], v[{S2}:{S2+1}]')
            a(f'v_add_f32 v{S1}, v{S1}, v{S1+1}')
            a(f'v_pk_fma_f32 v[{S2}:{S2+1}], v[{idx[3]}:{idx[3]+1}], v[{idx[3]}:{idx[3]+1}], v[{S2}:{S2+1}]')
            a(f'v_add_f32 v{S2}, v{S2}, v{S2+1}')
            self.ladder64([S1, S2], [S1 + 1, S2 + 1])
            self.ln_stats(S1, S2, PV if piv else None, 58, 59, 62, 63, MO, RO)

        def norm(src, dst, keep_packed):
            for i in range(4):
                a(f'v_pk_add_f32 v[{dst+2*i}:{dst+2*i+1}], v[{src+2*i}:{src+2*i+1}], v[{MO}:{MO+1}] op_sel_hi:[1,0] neg_lo:[0,1] neg_hi:[0,1]')
            for i in range(4):
                a(f'v_cvt_pk_bf16_f32 v{P+i}, v{dst+2*i}, v{dst+2*i+1}')
            for i in range(4):
                self.unpack(dst + 2 * i, dst + 2 * i + 1, P + i)
            for i in range(4):
                a(f'v_pk_mul_f32 v[{dst+2*i}:{dst+2*i+1}], v[{dst+2*i}:{dst+2*i+1}], v[{RO}:{RO+1}] op_sel_hi:[1,0]')
            for i in range(4):
                a(f'v_cvt_pk_bf16_f32 v{P+i}, v{dst+2*i}, v{dst+2*i+1}')
            if not keep_packed:
                for i in range(4):
                    self.unpack(dst + 2 * i, dst + 2 * i + 1, P + i)

        sums(Hh, True)
        norm(Hh, A, False)
        sums(A, False)
        norm(A, A, True)
        I = 40
        a(f's_mov_b32 s50, {2*NTH}')
        a(f's_mov_b32 s51, {NTH}')
        for i in range(4):
            a(f'v_bfe_u32 v{A+2*i}, v{P+i}, 0, 15')
            a(f'v_bfe_u32 v{A+2*i+1}, v{P+i}, 16, 15')
            a(f'v_bfe_u32 v{I+2*i}, v{P+i}, 15, 1')
            a(f'v_lshrrev_b32 v{I+2*i+1}, 31, v{P+i}')
        for i in range(8):
            a(f'v_subrev_u32 v{A+i}, {E0 << 7}, v{A+i}')
        for i in range(8):
            a(f'v_min_u32 v{160+i}, {NTH-1}, v{A+i}')
            a(f'v_mul_u32_u24 v{I+i}, s50, v{I+i}')
        for i in range(8):
            a(f'v_lshl_add_u32 v{I+i}, v{160+i}, 1, v{I+i}')
        Y = 168
        for i in range(8):
            a(f'ds_read_u16 v{Y+i}, v{I+i} offset:{L_TBL}')
        for i in (2, 3, 6, 7):
            a(f'v_cndmask_b32 v{A+i}, v{A+i}, 0, s[46:47]')
        a(f'v_max3_u32 v48, v{A}, v{A+1}, v{A+2}')
        a(f'v_max3_u32 v48, v48, v{A+3}, v{A+4}')
        a(f'v_max3_u32 v48, v48, v{A+5}, v{A+6}')
        a(f'v_max_u32 v48, v48, v{A+7}')
        a('v_cmp_le_u32 vcc, s51, v48')
        a('s_waitcnt lgkmcnt(0)')
        a('s_cbranch_vccnz L_cslow')
        lab('L_cfin')
        for i in range(8):
            a(f'v_lshlrev_b32 v{Y+i}, 16, v{Y+i}')
        for i in range(4):
            a(f'v_pk_add_f32 v[{Y+2*i}:{Y+2*i+1}], v[{Y+2*i}:{Y+2*i+1}], v[{Hh+2*i}:{Hh+2*i+1}]')
        for i in range(4):
            a(f'v_cvt_pk_bf16_f32 v{P+i}, v{Y+2*i}, v{Y+2*i+1}')
        a(f'buffer_store_dword v{P}, v2, s[40:43], s44 offen')
        a(f'buffer_store_dword v{P+2}, v2, s[40:43], s44 offen offset:448')
        a('s_andn2_b64 exec, exec, s[46:47]')
        a(f'buffer_store_dword v{P+1}, v2, s[40:43], s44 offen offset:4')
        a(f'buffer_store_dword v{P+3}, v2, s[40:43], s44 offen offset:452')
        self.stamp(28)
        if self.opt['fix']:
            a('s_and_b32 s96, s6, 0x3fff')
            a('s_lshr_b32 s97, s6, 2')
            a('s_and_b32 s97, s97, 0x0fffc000')
            a('s_or_b32 s96, s96, s97')
            lab('L_fix')
            a('s_memrealtime s[94:95]')
            a('s_waitcnt lgkmcnt(0)')
            a('s_sub_u32 s94, s94, s96')
            a('s_and_b32 s94, s94, 0x0fffffff')
            a(f's_cmp_lt_u32 s94, {self.opt["fix"]}')
            a('s_cbranch_scc1 L_fix')
        self.dbgtime(2, 4)
        self.flush_stamps([(12, 24), (13, 26), (14, 28)])
        a('s_endpgm')
        lab('L_cslow')
        for i in range(8):
            u = self.u()
            a(f'v_cmp_le_u32 s[52:53], s51, v{A+i}')
            lab(f'L_cs{u}')
            a('s_cmp_eq_u64 s[52:53], 0')
            a(f's_cbranch_scc1 L_ce{u}')
            a('s_ff1_i32_b64 s54, s[52:53]')
            a('s_bitset0_b64 s[52:53], s54')
            a(f'v_readlane_b32 s70, v{P+i//2}, s54')
            a('s_nop 0')
            if i & 1:
                a('s_and_b32 s70, s70, 0xffff0000')
            else:
                a('s_lshl_b32 s70, s70, 16')
            a('s_mov_b32 s71, s70')
            a('s_call_b64 s[76:77], L_eval')
            a('s_nop 0')
            a('v_readfirstlane_b32 s55, v153')
            a('s_mov_b32 m0, s54')
            a('s_nop 3')
            a(f'v_writelane_b32 v{Y+i}, s55, m0')
            a(f's_branch L_cs{u}')
            lab(f'L_ce{u}')
        a('s_branch L_cfin')

    def build(self):
        a, lab = self.a, self.lab
        o = self.o
        o.append(HEADER.rstrip('\n'))
        o.append(f'; @launch grid=(256,1,1) block=(512,1,1) lds={L_END}')
        o.append('.amdgcn_target "amdgcn-amd-amdhsa--gfx950"')
        o.append('.text')
        o.append(f'.globl {KN}')
        o.append('.p2align 8')
        o.append(f'.type {KN},@function')
        lab(KN)
        a('s_cmp_ge_u32 s2, 256')
        a('s_cbranch_scc1 L_exit')
        self.stamp(78)
        a('s_load_dwordx16 s[8:23], s[0:1], 0')
        a('s_load_dwordx8 s[24:31], s[0:1], 64')
        a('s_load_dwordx2 s[32:33], s[0:1], 96')
        a('v_lshrrev_b32 v1, 6, v0')
        a('s_lshr_b32 s4, s2, 2')
        a('v_readfirstlane_b32 s3, v1')
        a('s_and_b32 s5, s2, 7')
        a('s_lshl_b32 s5, s5, 5')
        a('s_lshr_b32 s7, s2, 3')
        a('s_add_u32 s5, s5, s7')
        a('s_cmp_ge_u32 s3, 4')
        a('s_cbranch_scc1 L_helper')
        self.streamer()
        lab('L_helper')
        self.helper()
        lab('L_exit')
        a('s_endpgm')
        o.append('.section .rodata,"a"')
        o.append('.p2align 6')
        o.append(f'.amdhsa_kernel {KN}')
        o.append('  .amdhsa_next_free_vgpr 256')
        o.append('  .amdhsa_next_free_sgpr 102')
        o.append('  .amdhsa_accum_offset 256')
        o.append('  .amdhsa_group_segment_fixed_size 0')
        o.append('  .amdhsa_kernarg_size 104')
        o.append('  .amdhsa_user_sgpr_count 2')
        o.append('  .amdhsa_user_sgpr_kernarg_segment_ptr 1')
        o.append('  .amdhsa_system_sgpr_workgroup_id_x 1')
        o.append('.end_amdhsa_kernel')
        return '\n'.join(o) + '\n'


if __name__ == '__main__':
    out = sys.argv[1]
    opt = eval(sys.argv[2]) if len(sys.argv) > 2 else {}
    open(out, 'w').write(G(**opt).build())
```

```python
import sys, struct, math

KN = 'sequential_preLN__mha_block_cached__mixer_token_mlp__decode_kernel'
HEADER = open('sequential_preLN__mha_block_cached__mixer_token_mlp__decode.s.ref').read().split('; Override launch')[0]


def f2u(x):
    return struct.unpack('<I', struct.pack('<f', x))[0]


QG, OG, TG, TK, RDY, ACC = 0x0, 0x10000, 0x50000, 0x54000, 0x58000, 0x60000
STAMP = 256 << 20
E0 = 108
NTH = 3072
L_FLG, L_CNT, L_WOF, L_HDR, L_QL, L_FL2 = 0, 16, 20, 32, 64, 576
L_XN, L_OW, L_QP = 2048, 6144, 10752
L_TBL = 2 * (E0 << 7)
L_WOS = 34048
L_END = L_TBL + 65536 + 2 * NTH
RS = 144
LOG2E = 1.4426950408889634
SPIN = 1 << 18
FRESH = 1500
GRACE = 200

DOC = '''; Single fused launch, 256 workgroups x 8 waves (one workgroup per CU).
'''


class G:
    def __init__(self, **opt):
        self.o = []
        self.opt = dict(stamps=False, wqf='nt', wof='nt', kvf='nt', vf=None, pace=12, LA=12, setC=True, NST=14, TP=8,
                        psleep=1, HALF=False, outf='', tsleep=127, fix=0, exp='', pdelay=False, hs0=16, qsleep=2, R=2, pbar=-1, early=True, swin=16, ILV=False, NF=0)
        self.opt.update(opt)
        self.uid = 0

    def a(self, s):
        self.o.append('  ' + s)

    def lab(self, s):
        self.o.append(s + ':')

    def u(self):
        self.uid += 1
        return self.uid

    def nop(self, n):
        if n > 0:
            self.a(f's_nop {n-1}')

    def stamp(self, sreg):
        if self.opt['stamps']:
            self.a(f's_memrealtime s[{sreg}:{sreg+1}]')

    def vstamp(self, v):
        if self.opt['stamps']:
            self.a('s_memrealtime s[18:19]')
            self.a('s_waitcnt lgkmcnt(0)')
            self.a(f'v_mov_b32 v{v}, s18')
            self.a(f'v_mov_b32 v{v+1}, s19')

    def unvstamp(self, v, sreg):
        if self.opt['stamps']:
            self.a(f'v_readfirstlane_b32 s{sreg}, v{v}')
            self.a(f'v_readfirstlane_b32 s{sreg+1}, v{v+1}')
            self.a('s_nop 1')

    def flush_stamps(self, pairs, vt=250):
        if not self.opt['stamps']:
            return
        a = self.a
        a('s_waitcnt lgkmcnt(0)')
        a('s_mov_b64 exec, 1')
        a('s_lshl_b32 s7, s2, 8')
        a(f's_add_u32 s7, s7, {STAMP}')
        a(f'v_mov_b32 v{vt+2}, s7')
        for slot, sreg in pairs:
            a(f'v_mov_b32 v{vt}, s{sreg}')
            a(f'v_mov_b32 v{vt+1}, s{sreg+1}')
            a(f'global_store_dwordx2 v{vt+2}, v[{vt}:{vt+1}], s[32:33] offset:{8*slot}')
            a('s_nop 1')

    def fresh(self, ts, t0, t1):
        a = self.a
        a(f's_and_b32 s{t0}, s6, 0x3fff')
        a(f's_lshr_b32 s{t1}, s6, 2')
        a(f's_and_b32 s{t1}, s{t1}, 0x0fffc000')
        a(f's_or_b32 s{t0}, s{t0}, s{t1}')
        a(f's_sub_u32 s{t0}, s{t0}, s{ts}')
        a(f's_add_u32 s{t0}, s{t0}, {FRESH}')
        a(f's_bfe_u32 s{t0}, s{t0}, 0x1001b')
        a(f's_bfe_u32 s{t1}, s6, 0x1000f')
        a(f's_cmp_gt_u32 s{t1}, s{t0}')

    def tag_slow(self, name, ok, ts, t0, t1, cnt, va, vb):
        a, lab = self.a, self.lab
        a(f's_mov_b32 s{cnt}, {SPIN}')
        a(f'v_mov_b32 v{va}, 0')
        lab(name)
        a(f'global_load_dword v{vb}, v{va}, s[30:31] sc1')
        a(f's_sub_u32 s{cnt}, s{cnt}, 1')
        a('s_cbranch_scc1 L_exit')
        a('s_waitcnt vmcnt(0)')
        a(f'v_readfirstlane_b32 s6, v{vb}')
        a('s_nop 0')
        self.fresh(ts, t0, t1)
        a(f's_cbranch_scc1 {ok}')
        a(f's_cmp_gt_u32 s{cnt}, {SPIN - GRACE}')
        a(f's_cbranch_scc1 {name}')
        a('s_cmp_eq_u32 s6, 0')
        a(f's_cbranch_scc1 {name}')
        a(f's_branch {ok}')

    def flags4(self, v):
        a = self.a
        a(f'v_xor_b32 v{v}, s6, v{v}')
        for i in (1, 2, 3):
            a(f'v_bitop3_b32 v{v}, v{v+i}, s6, v{v} bitop3:0xbe')
        a(f'v_cmp_eq_u32 vcc, 0, v{v}')

    def bf16r(self, dst, src):
        self.a(f'v_cvt_pk_bf16_f32 v{dst}, 0, v{src}')

    def unpack(self, lo, hi, p):
        self.a(f'v_lshlrev_b32 v{lo}, 16, v{p}')
        self.a(f'v_and_b32 v{hi}, 0xffff0000, v{p}')

    def ladder64(self, regs, tmps, op='v_add_f32'):
        a = self.a
        n = len(regs)
        for ror in (8, 4, 2, 1):
            self.nop(max(0, 2 - (n - 1)))
            for r in regs:
                a(f'{op}_dpp v{r}, v{r}, v{r} row_ror:{ror} row_mask:0xf bank_mask:0xf')
        for sw in ('v_permlane16_swap_b32', 'v_permlane32_swap_b32'):
            for r, t in zip(regs, tmps):
                a(f'v_mov_b32 v{t}, v{r}')
            self.nop(max(0, 2 - (n - 1)))
            for r, t in zip(regs, tmps):
                a(f'{sw} v{r}, v{t}')
            for r, t in zip(regs, tmps):
                a(f'{op} v{r}, v{r}, v{t}')

    def ln_stats(self, s1, s2, piv, t0, t1, sinv, seps, mout, rout):
        a = self.a
        a(f'v_mul_f32 v{s1}, s{sinv}, v{s1}')
        a(f'v_mul_f32 v{t0}, v{s1}, v{s1}')
        a(f'v_fma_f32 v{s2}, v{s2}, s{sinv}, -v{t0}')
        if piv is not None:
            a(f'v_add_f32 v{s1}, {piv}, v{s1}')
        a(f'v_max_f32 v{s2}, 0, v{s2}')
        self.bf16r(t1, s2)
        self.bf16r(mout, s1)
        a(f'v_add_f32 v{t1}, s{seps}, v{t1}')
        self.bf16r(t1, t1)
        a(f'v_sqrt_f32 v{t1}, v{t1}')
        a('s_nop 0')
        self.bf16r(t1, t1)
        a(f'v_rcp_f32 v{rout}, v{t1}')
        a('s_nop 0')

    def cstep(self):
        return 0x20000 if self.opt['ILV'] else 0x8000

    def ld(self, R, n, sreg):
        j = n & 7
        srd = 's[36:39]' if n < 8 else 's[40:43]'
        fl = self.opt['kvf'] if (n < 8 or self.opt['vf'] is None) else self.opt['vf']
        self.a(f'buffer_load_dwordx4 v[{R+4*n}:{R+4*n+3}], v{2+j}, {srd}, s{sreg} offen {fl}')

    def chunk(self, R, issue, wait):
        a = self.a
        LA, NST, TP, HALF = self.opt['LA'], self.opt['NST'], self.opt['TP'], self.opt['HALF']
        pool0 = 4 * NST * 0x8000
        npool = (16 - NST) * 16 * (2 if HALF else 1) - (self.opt['NF'] if HALF else 0)

        def hooks(n):
            if NST < 16 and n == (16 - LA - TP) % 16:
                u = self.u()
                wrap = 16 - LA - TP < 0
                a(f's_cmp_gt_u32 s45, {2 if wrap else 1}')
                a(f's_cbranch_scc1 L_nt{u}')
                if wrap:
                    a('s_cmp_ge_u32 s44, 0x200000')
                    a(f's_cbranch_scc1 L_nt{u}')
                a('s_mov_b32 s50, 1')
                a('s_mov_b32 s51, 0')
                a('s_atomic_add_x2 s[50:51], s[52:53], 0x0 glc')
                self.lab(f'L_nt{u}')
            if n == 16 - LA:
                u = self.u()
                a(f's_add_u32 s44, s47, {self.cstep():#x}')
                a('s_cmp_gt_u32 s45, 1')
                a(f's_cbranch_scc1 L_st{u}')
                if NST < 16:
                    a('s_waitcnt lgkmcnt(0)')
                    a('s_cmp_lg_u32 s51, s6')
                    a('s_cbranch_scc1 L_tkretry')
                    self.lab('L_tkok')
                    NF = self.opt['NF']
                    if HALF and NF:
                        a('s_lshr_b32 s48, s50, 2')
                        a(f's_min_u32 s49, s48, {NF // 4}')
                        a('s_add_u32 s48, s48, s49')
                        a('s_lshl_b32 s48, s48, 14')
                        a(f's_add_u32 s38, s48, {pool0 + 0x4000}')
                        a('s_min_u32 s38, s38, 0x200000')
                        a(f's_cmp_lt_u32 s50, {NF}')
                        a('s_cselect_b32 s38, 0x200000, s38')
                        a('s_cselect_b32 s62, 0, 0xffff0000')
                    else:
                        a('s_lshr_b32 s48, s50, 2')
                        a(f's_lshl_b32 s48, s48, {14 if HALF else 15}')
                        if HALF:
                            a(f's_add_u32 s38, s48, {pool0 + 0x4000}')
                            a('s_min_u32 s38, s38, 0x200000')
                            a('s_mov_b32 s62, 0xffff0000')
                    a('s_and_b32 s49, s50, 3')
                    a('s_lshl_b32 s49, s49, 10')
                    a('s_add_u32 s48, s48, s49')
                    a('s_add_u32 s48, s48, s54')
                    a(f's_cmp_lt_u32 s50, {npool}')
                    a('s_cselect_b32 s44, s48, 0x200000')
                else:
                    a('s_mov_b32 s44, 0x200000')
                self.lab(f'L_st{u}')
            if HALF and n == (24 - LA) % 16:
                a('s_mov_b32 s42, s38')

        def iss(n):
            if issue:
                hooks(n)
                t = n + LA
                if t < 16:
                    self.ld(R, t, 47)
                else:
                    self.ld(R, t - 16, 44)

        Q, AC, S = 10, 14, 22
        X, C, C2, MN, AL, E, E1, PA0, PB0, PA1, PB1 = 30, 31, 32, 33, 34, 35, 36, 37, 38, 39, 42
        M, L = 40, 41
        SU, SU2 = 43, 44
        for j in range(8):
            if wait:
                a(f's_waitcnt vmcnt({LA-1})')
            k = R + 4 * j
            a(f'v_dot2_f32_bf16 v{S+j}, v{k}, v{Q}, 0')
            for i in range(1, 4):
                a(f'v_dot2_f32_bf16 v{S+j}, v{k+i}, v{Q+i}, v{S+j}')
            iss(j)
        for p in range(4):
            a(f'v_add_f32_dpp v{S+2*p}, v{S+2*p}, v{S+2*p} row_ror:8 row_mask:0xf bank_mask:0x3')
            a(f'v_add_f32_dpp v{S+2*p}, v{S+2*p+1}, v{S+2*p+1} row_ror:8 row_mask:0xf bank_mask:0xc')
        for p in (0, 4):
            a(f'v_add_f32_dpp v{S+p}, v{S+p}, v{S+p} row_half_mirror row_mask:0xf bank_mask:0x5')
            a(f'v_add_f32_dpp v{S+p}, v{S+p+2}, v{S+p+2} row_half_mirror row_mask:0xf bank_mask:0xa')
        self.nop(2)
        a(f'v_permlane16_swap_b32 v{S}, v{S+4}')
        a(f'v_add_f32 v{S}, v{S}, v{S+4}')
        self.nop(2)
        a(f'v_add_f32_dpp v{S}, v{S}, v{S} quad_perm:[1,0,3,2] row_mask:0xf bank_mask:0xf')
        self.nop(2)
        a(f'v_add_f32_dpp v{S}, v{S}, v{S} quad_perm:[2,3,0,1] row_mask:0xf bank_mask:0xf')
        self.bf16r(X, S)
        if HALF and issue:
            a(f'v_cndmask_b32 v{X}, v{X}, v254, s[56:57]')
        self.nop(2)
        a(f'v_max_f32_dpp v{C}, v{X}, v{X} row_ror:8 row_mask:0xf bank_mask:0xf')
        self.nop(2)
        a(f'v_max_f32_dpp v{C}, v{C}, v{C} row_half_mirror row_mask:0xf bank_mask:0xf')
        for sw in ('v_permlane16_swap_b32', 'v_permlane32_swap_b32'):
            a(f'v_mov_b32 v{C2}, v{C}')
            self.nop(2)
            a(f'{sw} v{C}, v{C2}')
            a(f'v_max_f32 v{C}, v{C}, v{C2}')
        a(f'v_mul_f32 v{C}, s46, v{C}')
        a(f'v_max_f32 v{MN}, v{M}, v{C}')
        a(f'v_fma_f32 v{E}, v{X}, s46, -v{MN}')
        a(f'v_sub_f32 v{AL}, v{M}, v{MN}')
        a(f'v_exp_f32 v{E}, v{E}')
        a(f'v_exp_f32 v{AL}, v{AL}')
        a(f'v_mov_b32 v{M}, v{MN}')
        a(f'v_mov_b32 v{E1}, v{E}')
        for i in range(2):
            a(f'v_mul_f32 v{AC+i}, v{AC+i}, v{AL}')
        a(f'v_permlane16_swap_b32 v{E}, v{E1}')
        for i in range(2, 8):
            a(f'v_mul_f32 v{AC+i}, v{AC+i}, v{AL}')
        a(f'v_cvt_pk_bf16_f32 v{PA0}, v{E}, 0')
        a(f'v_cvt_pk_bf16_f32 v{PB0}, 0, v{E}')
        a(f'v_cvt_pk_bf16_f32 v{PA1}, v{E1}, 0')
        a(f'v_cvt_pk_bf16_f32 v{PB1}, 0, v{E1}')
        a(f'v_add_f32 v{SU}, v{E}, v{E1}')
        a(f'v_mul_f32 v{L}, v{L}, v{AL}')
        extra = [
            [f'v_add_f32_dpp v{SU}, v{SU}, v{SU} row_ror:8 row_mask:0xf bank_mask:0xf'],
            [f'v_add_f32_dpp v{SU}, v{SU}, v{SU} row_half_mirror row_mask:0xf bank_mask:0xf'],
            [f'v_mov_b32 v{SU2}, v{SU}'],
            [f'v_permlane32_swap_b32 v{SU}, v{SU2}', f'v_add_f32 v{L}, v{L}, v{SU}', f'v_add_f32 v{L}, v{L}, v{SU2}'],
        ]
        for j in range(8):
            if wait:
                a(f's_waitcnt vmcnt({LA-1})')
            v = R + 32 + 4 * j
            pa, pb = (PA0, PB0) if j < 4 else (PA1, PB1)
            n = 8 * (j & 1) + 4 * ((j >> 1) & 1)
            for i in range(4):
                a(f'v_dot2c_f32_bf16_dpp v{AC+2*i}, v{pa}, v{v+i} row_newbcast:{n} row_mask:0xf bank_mask:0xf')
                a(f'v_dot2c_f32_bf16_dpp v{AC+2*i+1}, v{pb}, v{v+i} row_newbcast:{n} row_mask:0xf bank_mask:0xf')
            iss(8 + j)
            if j < len(extra):
                for s in extra[j]:
                    a(s)

    def issue_set(self, R, done=0, cnt=16):
        for n in range(cnt):
            if self.opt['pace'] and done + n >= self.opt['pace']:
                self.a(f's_waitcnt vmcnt({self.opt["pace"]-1})')
            self.ld(R, n, 44)

    def streamer(self):
        a, lab = self.a, self.lab
        opt = self.opt
        RA, RB, RC = 48, 112, 176
        NST, setC = opt['NST'], opt['setC']
        a('v_lshlrev_b32 v2, 4, v0')
        for j in range(1, 8):
            a(f'v_add_u32 v{2+j}, {4096*j}, v2')
        a('s_lshl_b32 s7, s4, 21')
        a('s_mov_b32 s38, 0x200000')
        a('s_mov_b32 s39, 0x20000')
        a('s_mov_b32 s42, 0x200000')
        a('s_mov_b32 s43, 0x20000')
        a('s_and_b32 s44, s2, 3')
        a(f's_mul_i32 s44, s44, {0x8000 if opt["ILV"] else NST*0x8000}')
        a('s_or_b32 s47, s2, s3')
        a('v_lshlrev_b32 v11, 6, v0')
        a('s_waitcnt lgkmcnt(0)')
        a('s_cmp_lg_u32 s47, 0')
        a('s_cbranch_scc1 L_sn0')
        a('s_and_b32 s49, s98, 0x3fff')
        a('s_lshl_b32 s48, s98, 2')
        a('s_and_b32 s48, s48, 0x3fff0000')
        a('s_or_b32 s48, s48, s49')
        a('s_or_b32 s48, s48, 0x8000')
        a('v_mov_b32 v10, s48')
        a('s_mov_b64 exec, 15')
        a('global_store_dword v11, v10, s[30:31] sc1')
        a('s_mov_b64 exec, -1')
        lab('L_sn0')
        a('s_add_u32 s36, s10, s7')
        a('s_addc_u32 s37, s11, 0')
        a('s_add_u32 s40, s12, s7')
        a('s_addc_u32 s41, s13, 0')
        if opt['pdelay']:
            a('s_cmp_eq_u32 s5, 0')
            a('s_cbranch_scc1 L_spd')
            a('s_barrier')
            lab('L_spd')
        self.issue_set(RB)
        done = 16
        if setC:
            a(f's_add_u32 s44, s44, {self.cstep():#x}')
            self.issue_set(RC, done)
            done += 16
        a(f's_add_u32 s44, s44, {self.cstep():#x}')
        a('s_load_dword s6, s[30:31], 192')
        self.issue_set(RA, done, opt['LA'])
        a('s_mov_b32 s47, s44')
        a('s_lshl_b32 s48, s4, 8')
        a(f's_add_u32 s48, s48, {TK}')
        a('s_add_u32 s52, s32, s48')
        a('s_addc_u32 s53, s33, 0')
        a('s_lshl_b32 s54, s3, 10')
        a(f's_sub_u32 s54, {4*NST*0x8000}, s54')
        a('s_setprio 2')
        for i in range(8):
            a(f'v_mov_b32 v{14+i}, 0')
        a('v_mov_b32 v40, 0xff800000')
        a('v_mov_b32 v41, 0')
        a(f's_mov_b32 s46, {f2u(LOG2E/16.0):#x}')
        niter = NST - (2 if setC else 1)
        a(f's_mov_b32 s45, {niter}')
        a('s_mov_b64 s[56:57], 0')
        a('s_mov_b32 s62, 0')
        a('v_mov_b32 v254, 0xff800000')
        a('v_and_b32 v253, 63, v0')
        a('v_cmp_le_u32 vcc, 24, v253')
        a('v_and_b32 v45, 31, v0')
        a('v_lshlrev_b32 v247, 4, v45')
        a('v_cndmask_b32 v30, 0, 24, vcc')
        a('v_sub_u32 v30, v253, v30')
        a('v_mul_u32_u24 v249, 24, v30')
        a('v_cndmask_b32 v31, 0, 1, vcc')
        a('v_lshl_add_u32 v249, v31, 9, v249')
        a('v_cmp_eq_u32 s[58:59], 21, v30')
        a('v_cmp_gt_u32 s[60:61], 21, v30')
        a('v_cmp_gt_u32 s[64:65], 22, v30')
        a('v_lshlrev_b32 v46, 5, v45')
        a('v_bfe_u32 v30, v0, 5, 1')
        a('v_lshl_add_u32 v46, v30, 4, v46')
        a('s_lshl_b32 s7, s3, 10')
        a('v_add_u32 v46, s7, v46')
        a('s_lshl_b32 s7, s3, 3')
        a('v_mov_b32 v45, s7')
        a('s_and_b32 s48, s4, 15')
        a('s_lshl_b32 s48, s48, 4')
        a('s_lshr_b32 s49, s4, 4')
        a('s_lshl2_add_u32 s48, s49, s48')
        a('s_and_b32 s49, s2, 3')
        a('s_add_u32 s48, s48, s49')
        a('s_lshl_b32 s48, s48, 10')
        a(f's_add_u32 s48, s48, {OG}')
        a('v_lshl_add_u32 v248, v253, 4, s48')
        a('v_mov_b32 v30, 0')
        self.stamp(80)
        a('s_waitcnt lgkmcnt(0)')
        self.fresh(98, 48, 49)
        a('s_cbranch_scc0 L_snw')
        lab('L_snok')
        a(f's_mov_b32 s48, {SPIN}')
        a('v_mov_b32 v47, s6')
        a('s_branch L_sqw')
        lab('L_sqs')
        a('s_sleep 1')
        lab('L_sqw')
        a(f'ds_read_b128 v[32:35], v30 offset:{L_FL2}')
        a(f'ds_read_b128 v[10:13], v247 offset:{L_QL}')
        a('s_sub_u32 s48, s48, 1')
        a('s_cbranch_scc1 L_exit')
        a('s_waitcnt lgkmcnt(0)')
        self.flags4(32)
        a('s_cbranch_vccz L_sqs')
        self.stamp(82)
        if opt['stamps']:
            a('s_memtime s[90:91]')
        lab('L_sloop')
        self.chunk(RA, True, True)
        a('s_mov_b32 s47, s44')
        if opt['HALF']:
            a('s_mov_b32 s56, s62')
            a('s_mov_b32 s57, s62')
        a(f's_cmp_eq_u32 s45, {niter}')
        a('s_cbranch_scc1 L_sB')
        if setC:
            a(f's_cmp_eq_u32 s45, {niter-1}')
            a('s_cbranch_scc1 L_sC')
        lab('L_sback')
        a('s_sub_u32 s45, s45, 1')
        a('s_max_i32 s45, s45, 1')
        a('s_cmp_lt_u32 s47, 0x200000')
        a('s_cbranch_scc1 L_sloop')
        self.stamp(84)
        if opt['stamps']:
            a('s_memtime s[92:93]')
        AC = 14
        a('s_waitcnt lgkmcnt(0)')
        a('v_mov_b32 v31, 0')
        a('v_mov_b32 v32, 1')
        for i in range(4):
            a(f'v_permlane32_swap_b32 v{AC+i}, v{AC+4+i}')
        for i in range(4):
            a(f'v_add_f32 v{AC+i}, v{AC+i}, v{AC+4+i}')
        a(f'ds_write_b128 v46, v[{AC}:{AC+3}] offset:{L_OW}')
        a(f'ds_write_b64 v45, v[40:41] offset:{L_HDR}')
        a('s_mov_b64 exec, 1')
        a(f'ds_add_rtn_u32 v33, v31, v32 offset:{L_CNT}')
        a('s_mov_b64 exec, -1')
        H, D = 236, 212
        a(f'ds_read_b128 v[{H}:{H+3}], v31 offset:{L_HDR}')
        a(f'ds_read_b128 v[{H+4}:{H+7}], v31 offset:{L_HDR+16}')
        for w in range(4):
            for e in range(3):
                a(f'ds_read_b64 v[{D+6*w+2*e}:{D+6*w+2*e+1}], v249 offset:{L_OW+1024*w+8*e}')
        a('s_waitcnt lgkmcnt(14)')
        a('v_readfirstlane_b32 s7, v33')
        a('s_nop 0')
        a('s_cmp_lg_u32 s7, 3')
        a('s_cbranch_scc1 L_sexit' if opt['stamps'] else 's_cbranch_scc1 L_exit')
        a('s_waitcnt lgkmcnt(12)')
        a(f'v_max3_f32 v30, v{H}, v{H+2}, v{H+4}')
        a(f'v_max_f32 v30, v30, v{H+6}')
        for w in range(4):
            a(f'v_sub_f32 v{H+2*w}, v{H+2*w}, v30')
        for w in range(4):
            a(f'v_exp_f32 v{H+2*w}, v{H+2*w}')
        a('s_nop 0')
        a(f'v_mul_f32 v31, v{H}, v{H+1}')
        for w in range(1, 4):
            a(f'v_fmac_f32 v31, v{H+2*w}, v{H+2*w+1}')
        a('v_rcp_f32 v32, v31')
        a('v_log_f32 v33, v31')
        a('s_waitcnt lgkmcnt(0)')
        for e in range(0, 6, 2):
            a(f'v_pk_mul_f32 v[{22+e}:{23+e}], v[{D+e}:{D+e+1}], v[{H}:{H+1}] op_sel_hi:[1,0]')
        for w in range(1, 4):
            for e in range(0, 6, 2):
                a(f'v_pk_fma_f32 v[{22+e}:{23+e}], v[{D+6*w+e}:{D+6*w+e+1}], v[{H+2*w}:{H+2*w+1}], v[{22+e}:{23+e}] op_sel_hi:[1,0,1]')
        a('v_add_f32 v33, v33, v30')
        for e in range(0, 6, 2):
            a(f'v_pk_mul_f32 v[{22+e}:{23+e}], v[{22+e}:{23+e}], v[32:33] op_sel_hi:[1,0]')
        a('v_cvt_pk_bf16_f32 v44, v22, v23')
        a('v_cvt_pk_bf16_f32 v45, v24, v25')
        a('v_cvt_pk_bf16_f32 v46, v26, v27')
        a('v_cndmask_b32 v44, 0, v44, s[64:65]')
        a('v_cndmask_b32 v45, 0, v45, s[60:61]')
        a('v_cndmask_b32 v46, 0, v46, s[60:61]')
        a('v_cndmask_b32 v45, v45, v33, s[58:59]')
        a('s_mov_b32 exec_hi, 0xffff')
        a('global_store_dwordx4 v248, v[44:47], s[32:33] sc1')
        self.stamp(86)
        if opt['stamps']:
            self.flush_stamps([(3, 86)])
            lab('L_sexit')
            a('s_cmp_lg_u32 s3, 0')
            a('s_cbranch_scc1 L_exit')
            a('s_getreg_b32 s88, hwreg(HW_REG_XCC_ID)')
            a('s_and_b32 s88, s88, 15')
            a('s_mov_b32 s89, 0')
            a('s_sub_u32 s90, s92, s90')
            a('s_mov_b32 s91, 0')
            self.flush_stamps([(0, 98), (1, 80), (2, 82), (8, 84), (6, 88), (7, 90)])
        a('s_endpgm')
        if NST < 16:
            lab('L_tkretry')
            a(f's_mov_b32 s48, {SPIN}')
            lab('L_tkr2')
            a('s_sleep 8')
            a('s_mov_b32 s50, 1')
            a('s_mov_b32 s51, 0')
            a('s_atomic_add_x2 s[50:51], s[52:53], 0x0 glc')
            a('s_sub_u32 s48, s48, 1')
            a('s_cbranch_scc1 L_exit')
            a('s_waitcnt lgkmcnt(0)')
            a('s_cmp_lg_u32 s51, s6')
            a('s_cbranch_scc1 L_tkr2')
            a('s_branch L_tkok')
        lab('L_snw')
        self.tag_slow('L_snw2', 'L_snok', 98, 48, 49, 50, 30, 31)
        lab('L_sB')
        self.chunk(RB, False, False)
        a('s_branch L_sback')
        if setC:
            lab('L_sC')
            self.chunk(RC, False, False)
            a('s_branch L_sback')

    W1, B1, W2P, C1P, ET, EA = 64, 92, 120, 134, 136, 152

    def eval_sub(self):
        a = self.a
        W1, B1, W2P, C1P, ET, EA = self.W1, self.B1, self.W2P, self.C1P, self.ET, self.EA
        self.lab('L_eval')
        a(f'v_mov_b32 v{EA}, 0')
        for base in range(0, 14, 2):
            prs = [(base, ET), (base + 1, ET + 6)]
            for p, t in prs:
                a(f'v_pk_mul_f32 v[{t}:{t+1}], v[{W1+2*p}:{W1+2*p+1}], s[70:71]')
            for p, t in prs:
                self.bf16r(t, t)
                self.bf16r(t + 1, t + 1)
            for p, t in prs:
                a(f'v_pk_add_f32 v[{t}:{t+1}], v[{t}:{t+1}], v[{B1+2*p}:{B1+2*p+1}]')
            for p, t in prs:
                self.bf16r(t, t)
                self.bf16r(t + 1, t + 1)
            for p, t in prs:
                a(f'v_pk_mul_f32 v[{t+2}:{t+3}], v[{t}:{t+1}], v[{t}:{t+1}]')
            for p, t in prs:
                a(f'v_pk_fma_f32 v[{t+2}:{t+3}], v[{t+2}:{t+3}], s[72:73], v[{C1P}:{C1P+1}]')
            for p, t in prs:
                a(f'v_pk_mul_f32 v[{t+2}:{t+3}], v[{t+2}:{t+3}], v[{t}:{t+1}]')
            for p, t in prs:
                a(f'v_exp_f32 v{t+2}, v{t+2}')
                a(f'v_exp_f32 v{t+3}, v{t+3}')
            a('s_nop 0')
            for p, t in prs:
                a(f'v_add_f32 v{t+2}, 1.0, v{t+2}')
                a(f'v_add_f32 v{t+3}, 1.0, v{t+3}')
            for p, t in prs:
                a(f'v_rcp_f32 v{t+2}, v{t+2}')
                a(f'v_rcp_f32 v{t+3}, v{t+3}')
            a('s_nop 0')
            for p, t in prs:
                a(f'v_pk_mul_f32 v[{t}:{t+1}], v[{t}:{t+1}], v[{t+2}:{t+3}]')
            for p, t in prs:
                a(f'v_cvt_pk_bf16_f32 v{t+4}, v{t}, v{t+1}')
            for p, t in prs:
                a(f'v_dot2c_f32_bf16 v{EA}, v{t+4}, v{W2P+p}')
        self.nop(2)
        self.ladder64([EA], [ET])
        self.bf16r(EA, EA)
        a(f'v_add_f32 v{EA}, s74, v{EA}')
        a(f'v_cvt_pk_bf16_f32 v153, v{EA}, 0')
        a('s_setpc_b64 s[76:77]')

    def producer(self):
        a, lab = self.a, self.lab
        opt = self.opt
        a('v_lshrrev_b32 v2, 4, v1')
        a('v_and_b32 v3, 15, v1')
        a('v_mul_u32_u24 v4, 896, v2')
        a('v_lshl_add_u32 v4, v3, 4, v4')
        a('v_cmp_gt_u32 s[60:61], 14, v3')
        a('v_bfrev_b32 v7, 1')
        a('v_lshrrev_b32 v5, 3, v1')
        a('v_and_b32 v6, 7, v1')
        a('v_cndmask_b32 v4, v7, v4, s[60:61]')
        a(f's_mov_b32 s7, {14*8192}')
        a('v_mul_lo_u32 v56, s7, v5')
        a('v_lshl_add_u32 v56, v6, 4, v56')
        for r in range(4):
            a(f's_add_u32 s{40+r}, s34, {r}')
            a(f's_and_b32 s{40+r}, s{40+r}, 3')
            a(f's_mul_i32 s{40+r}, s{40+r}, 224')
        a(f's_mul_i32 s48, s34, {112*8192}')
        a('s_lshl_b32 s49, s4, 7')
        a('s_add_u32 s48, s48, s49')
        a('s_mov_b32 s38, 3584')
        a('s_mov_b32 s39, 0x20000')
        a('s_mov_b32 s46, 3670016')
        a('s_mov_b32 s47, 0x20000')
        a('s_waitcnt lgkmcnt(0)')
        a('s_mov_b32 s35, s98')
        a('s_mov_b32 s36, s8')
        a('s_mov_b32 s37, s9')
        a('s_mov_b32 s44, s14')
        a('s_mov_b32 s45, s15')
        for r in range(4):
            a(f'buffer_load_dwordx4 v[{8+4*r}:{11+4*r}], v4, s[36:39], s{40+r} offen')
        WR = 100
        for it in range(14):
            a(f'buffer_load_dwordx4 v[{WR+4*it}:{WR+4*it+3}], v56, s[44:47], s48 offen {opt["wqf"]}')
            if it < 13:
                a('s_add_u32 s48, s48, 8192')
        if opt['pdelay'] and opt['pbar'] < 0:
            a('s_barrier')
        a(f's_mov_b32 s62, {f2u(1.0/448):#x}')
        a(f's_mov_b32 s63, {f2u(1e-5):#x}')
        a('s_mov_b32 s64, 0x05040100')
        a('s_mov_b32 s65, 0x07060302')
        a('s_lshl_b32 s18, s34, 10')
        a('v_lshl_add_u32 v57, v1, 4, s18')
        a('v_mul_u32_u24 v58, 28, v5')
        a('v_add_u32 v58, s18, v58')
        a('s_waitcnt vmcnt(14)')
        self.vstamp(228)
        XF = 24
        for i in range(16):
            self.unpack(XF + 2 * i, XF + 2 * i + 1, 8 + i)
        PV, S1, S2, DT = 76, 78, 80, 82
        a('s_nop 0')
        a(f'v_mov_b32_dpp v{PV}, v{XF} row_newbcast:0 row_mask:0xf bank_mask:0xf')
        for i in range(16):
            d = DT + 2 * (i & 1)
            a(f'v_pk_add_f32 v[{d}:{d+1}], v[{XF+2*i}:{XF+2*i+1}], v[{PV}:{PV+1}] op_sel_hi:[1,0] neg_lo:[0,1] neg_hi:[0,1]')
            if i == 0:
                a(f'v_pk_mul_f32 v[{S2}:{S2+1}], v[{d}:{d+1}], v[{d}:{d+1}]')
                a(f'v_mov_b32 v{S1}, v{d}')
                a(f'v_mov_b32 v{S1+1}, v{d+1}')
            else:
                a(f'v_pk_fma_f32 v[{S2}:{S2+1}], v[{d}:{d+1}], v[{d}:{d+1}], v[{S2}:{S2+1}]')
                a(f'v_pk_add_f32 v[{S1}:{S1+1}], v[{S1}:{S1+1}], v[{d}:{d+1}]')
        a(f'v_add_f32 v{S1}, v{S1}, v{S1+1}')
        a(f'v_add_f32 v{S2}, v{S2}, v{S2+1}')
        a(f'v_cndmask_b32 v{S1}, 0, v{S1}, s[60:61]')
        a(f'v_cndmask_b32 v{S2}, 0, v{S2}, s[60:61]')
        for ror in (8, 4, 2, 1):
            a('s_nop 0')
            a(f'v_add_f32_dpp v{S1}, v{S1}, v{S1} row_ror:{ror} row_mask:0xf bank_mask:0xf')
            a(f'v_add_f32_dpp v{S2}, v{S2}, v{S2} row_ror:{ror} row_mask:0xf bank_mask:0xf')
        MO, RO = 86, 88
        self.ln_stats(S1, S2, f'v{PV}', 84, 85, 62, 63, MO, RO)
        for i in range(4):
            a(f'v_pk_add_f32 v[{XF+2*i}:{XF+2*i+1}], v[{XF+2*i}:{XF+2*i+1}], v[{MO}:{MO+1}] op_sel_hi:[1,0] neg_lo:[0,1] neg_hi:[0,1]')
        for i in range(8):
            self.bf16r(XF + i, XF + i)
        for i in range(4):
            a(f'v_pk_mul_f32 v[{XF+2*i}:{XF+2*i+1}], v[{XF+2*i}:{XF+2*i+1}], v[{RO}:{RO+1}] op_sel_hi:[1,0]')
        for i in range(4):
            a(f'v_cvt_pk_bf16_f32 v{8+i}, v{XF+2*i}, v{XF+2*i+1}')
        a(f'ds_write_b128 v57, v[8:11] offset:{L_XN}')
        a(f'v_add_u32 v58, {L_XN}, v58')
        a('s_waitcnt lgkmcnt(0)')
        XN = 8
        for b in range(4):
            for p in range(0, 6, 2):
                a(f'ds_read2_b32 v[{XN+8*b+p}:{XN+8*b+p+1}], v58 offset0:{64*b+p} offset1:{64*b+p+1}')
            a(f'ds_read_b32 v{XN+8*b+6}, v58 offset:{256*b+24}')
            if b == 2:
                a('s_waitcnt lgkmcnt(8)')
        a('s_waitcnt lgkmcnt(0)')
        a('s_load_dword s6, s[30:31], 0')
        PP, QA = 40, 60
        for p in range(7):
            a(f's_waitcnt vmcnt({12-2*p})')
            if opt['pdelay'] and opt['pbar'] == p:
                a('s_barrier')
            r0, r1 = WR + 8 * p, WR + 8 * p + 4
            for dw in range(4):
                a(f'v_perm_b32 v{PP+2*dw}, v{r1+dw}, v{r0+dw}, s64')
                a(f'v_perm_b32 v{PP+2*dw+1}, v{r1+dw}, v{r0+dw}, s65')
            for b in range(4):
                for e in range(8):
                    src2 = '0' if p == 0 else f'v{QA+8*b+e}'
                    a(f'v_dot2_f32_bf16 v{QA+8*b+e}, v{PP+e}, v{XN+8*b+p}, {src2}')
        self.vstamp(232)
        for b in range(4):
            for e in range(4):
                v = QA + 8 * b + e
                a(f'v_add_f32_dpp v{v}, v{v}, v{v} row_ror:8 row_mask:0xf bank_mask:0x3')
                a(f'v_add_f32_dpp v{v}, v{v+4}, v{v+4} row_ror:8 row_mask:0xf bank_mask:0xc')
        for b in (0, 2):
            for e in range(4):
                a(f'v_permlane16_swap_b32 v{QA+8*b+e}, v{QA+8*b+8+e}')
        for b in (0, 2):
            for e in range(4):
                a(f'v_add_f32 v{QA+8*b+e}, v{QA+8*b+e}, v{QA+8*b+8+e}')
        for e in range(4):
            a(f'v_permlane32_swap_b32 v{QA+e}, v{QA+16+e}')
        for e in range(4):
            a(f'v_add_f32 v{QA+e}, v{QA+e}, v{QA+16+e}')
        a(f'ds_write_b128 v57, v[{QA}:{QA+3}] offset:{L_QP}')
        self.vstamp(234)

    def publish_q(self):
        a, lab = self.a, self.lab
        a('v_mov_b32 v58, 0')
        a('v_lshlrev_b32 v57, 4, v1')
        a('s_lshr_b32 s18, s4, 2')
        a('s_lshl_b32 s18, s18, 12')
        a('s_and_b32 s19, s4, 3')
        a('s_lshl_b32 s19, s19, 8')
        a('s_add_u32 s18, s18, s19')
        a('v_lshrrev_b32 v8, 4, v1')
        a('v_lshlrev_b32 v8, 10, v8')
        a('v_and_b32 v9, 7, v1')
        a('v_lshl_add_u32 v8, v9, 5, v8')
        a('v_bfe_u32 v9, v1, 3, 1')
        a('v_lshl_add_u32 v8, v9, 4, v8')
        a('v_add_u32 v8, s18, v8')
        a('v_mov_b32 v34, s6')
        a('v_mov_b32 v35, s6')
        a(f's_mov_b32 s19, {SPIN}')
        lab('L_hfw')
        a(f'ds_read_b128 v[12:15], v58 offset:{L_FLG}')
        for w in range(4):
            a(f'ds_read_b128 v[{16+4*w}:{19+4*w}], v57 offset:{L_QP+1024*w}')
        a('s_sub_u32 s19, s19, 1')
        a('s_cbranch_scc1 L_exit')
        a('s_waitcnt lgkmcnt(0)')
        self.flags4(12)
        a('s_cbranch_vccz L_hfw')
        a('v_pk_add_f32 v[16:17], v[16:17], v[20:21]')
        a('v_pk_add_f32 v[18:19], v[18:19], v[22:23]')
        a('v_pk_add_f32 v[24:25], v[24:25], v[28:29]')
        a('v_pk_add_f32 v[26:27], v[26:27], v[30:31]')
        a('v_pk_add_f32 v[16:17], v[16:17], v[24:25]')
        a('v_pk_add_f32 v[18:19], v[18:19], v[26:27]')
        a('v_cvt_pk_bf16_f32 v32, v16, v17')
        a('v_cvt_pk_bf16_f32 v33, v18, v19')
        a('global_store_dwordx4 v8, v[32:35], s[32:33] sc1')

    def helper(self):
        a, lab = self.a, self.lab
        opt = self.opt
        a('s_setprio 3')
        a('s_sub_u32 s34, s3, 4')
        a('v_and_b32 v1, 63, v0')
        a('s_cmp_eq_u32 s5, 0')
        a('s_cbranch_scc1 L_hnp')
        self.producer()
        a('s_branch L_hn1')
        lab('L_hnp')
        a('s_waitcnt lgkmcnt(0)')
        a('s_mov_b32 s35, s98')
        if opt['early']:
            a('s_cmp_eq_u32 s34, 0')
            a('s_cbranch_scc1 L_he0')
            a('s_cmp_eq_u32 s34, 1')
            a('s_cbranch_scc1 L_he1')
            self.mlp_loads()
            a('s_branch L_he1')
            lab('L_he0')
            self.wparams('L_he1')
            self.stage()
            lab('L_he1')
        a(f's_sleep {opt["hs0"]}')
        a('s_load_dword s6, s[30:31], 0')
        lab('L_hn1')
        for sec in (1, 2):
            a('s_waitcnt lgkmcnt(0)')
            self.fresh(35, 18, 19)
            a('s_cbranch_scc1 L_hnok')
            a('s_sleep 4')
            a(f's_load_dword s6, s[30:31], {64*sec}')
        a('s_waitcnt lgkmcnt(0)')
        self.fresh(35, 18, 19)
        a('s_cbranch_scc1 L_hnok')
        self.tag_slow('L_hnw', 'L_hnok', 35, 18, 19, 7, 58, 59)
        lab('L_hnok')
        self.vstamp(236)
        a('s_lshl_b32 s18, s34, 2')
        a('v_mov_b32 v58, s18')
        a('v_mov_b32 v59, s6')
        a(f'ds_write_b32 v58, v59 offset:{L_FLG}')
        a('s_and_b32 s35, s4, 15')
        a('s_lshl_b32 s35, s35, 2')
        a('s_lshr_b32 s7, s4, 4')
        a('s_add_u32 s35, s35, s7')
        a('s_lshl_b32 s35, s35, 10')
        a('s_lshl_b32 s7, s34, 8')
        a('s_add_u32 s35, s35, s7')
        a('s_add_u32 s100, s32, s35')
        a('s_addc_u32 s101, s33, 0')
        a('s_cmp_lg_u32 s34, 0')
        a('s_cbranch_scc1 L_hq')
        a('v_mov_b32 v58, 0')
        a(f'ds_write_b32 v58, v58 offset:{L_CNT}')
        a('s_cmp_eq_u32 s5, 0')
        a('s_cbranch_scc1 L_hq')
        self.publish_q()
        self.vstamp(240)
        lab('L_hq')
        a(f's_mov_b32 s19, {SPIN}')
        lab('L_hqw')
        for p in range(4):
            a(f's_load_dwordx16 s[{36+16*p}:{51+16*p}], s[100:101], {64*p} glc')
        a('s_sub_u32 s19, s19, 1')
        a('s_cbranch_scc1 L_exit')
        a('s_waitcnt lgkmcnt(0)')
        tags = [36 + 16 * p + 4 * g + 2 for p in range(4) for g in range(4)]
        a(f's_xor_b32 s7, s{tags[0]}, s6')
        for t in tags[1:]:
            a(f's_xor_b32 s18, s{t}, s6')
            a('s_or_b32 s7, s7, s18')
        a('s_cbranch_scc0 L_hqok')
        a(f's_sleep {opt["qsleep"]}')
        a('s_branch L_hqw')
        lab('L_hqok')
        for p in range(4):
            for g in range(4):
                for k in range(2):
                    a(f'v_writelane_b32 v8, s{36+16*p+4*g+k}, {8*p+2*g+k}')
        a('s_lshl_b32 s18, s34, 7')
        a('v_lshl_add_u32 v9, v1, 2, s18')
        a('s_mov_b32 exec_hi, 0')
        a(f'ds_write_b32 v9, v8 offset:{L_QL}')
        a('s_mov_b64 exec, -1')
        a('s_load_dword s74, s[26:27], 0')
        a('s_lshl_b32 s18, s34, 2')
        a('v_mov_b32 v9, s18')
        a('v_mov_b32 v8, s6')
        a('s_waitcnt lgkmcnt(0)')
        a(f'ds_write_b32 v9, v8 offset:{L_FL2}')
        self.vstamp(242)
        a('s_setprio 0')
        if opt['NST'] < 16:
            a('s_and_b32 s18, s2, 3')
            a('s_lshl2_add_u32 s18, s18, s34')
            a('s_cmp_lg_u32 s18, 1')
            a('s_cbranch_scc1 L_htk')
            a('s_lshl_b32 s18, s4, 8')
            a(f's_add_u32 s18, s18, {TK}')
            a('v_mov_b32 v10, s18')
            a('v_mov_b32 v8, 0')
            a('v_mov_b32 v9, s6')
            a('s_mov_b64 exec, 1')
            a('global_store_dwordx2 v10, v[8:9], s[32:33] sc1')
            a('s_mov_b64 exec, -1')
            lab('L_htk')
        a('s_cmp_lt_u32 s34, 2')
        a('s_cbranch_scc1 L_work')
        a('s_sub_u32 s18, s2, 4')
        a('s_mul_i32 s35, s18, 964')
        a('s_lshr_b32 s35, s35, 16')
        a('s_mul_i32 s19, s35, 68')
        a('s_cmp_eq_u32 s18, s19')
        a('s_cselect_b32 s35, s35, 4')
        a('s_cmp_eq_u32 s34, 3')
        a('s_cselect_b32 s35, s35, 4')
        a('s_cmp_ge_u32 s35, 4')
        a('s_cbranch_scc1 L_hw')
        a('s_lshl_b32 s18, s35, 11')
        a(f's_add_u32 s18, s18, {ACC}')
        a('v_lshl_add_u32 v4, v1, 4, s18')
        for i in range(4):
            a(f'v_mov_b32 v{8+i}, 0')
        for rp in range(opt['R']):
            a(f'v_add_u32 v{224+rp}, {8192*rp}, v4')
            a(f'global_store_dwordx4 v{224+rp}, v[8:11], s[32:33] sc1')
            a(f'global_store_dwordx4 v{224+rp}, v[8:11], s[32:33] offset:1024 sc1')
        a('s_lshl_b32 s18, s35, 2')
        a(f's_add_u32 s18, s18, {RDY}')
        a('v_mov_b32 v12, s18')
        a('v_mov_b32 v13, s6')
        a('s_waitcnt vmcnt(0)')
        a('s_mov_b64 exec, 1')
        a('global_store_dword v12, v13, s[32:33] sc1')
        a('s_mov_b64 exec, -1')
        lab('L_hw')
        W1, B1, C1P, W2P = self.W1, self.B1, self.C1P, self.W2P
        if opt['early']:
            a('s_cmp_eq_u32 s5, 0')
            a('s_cbranch_scc1 L_hw2')
        self.mlp_loads()
        lab('L_hw2')
        k2 = -2.0 * math.sqrt(2.0 / math.pi) * LOG2E
        a(f'v_mov_b32 v{C1P}, {f2u(k2):#x}')
        a(f'v_mov_b32 v{C1P+1}, {f2u(k2):#x}')
        a(f's_mov_b32 s72, {f2u(k2*0.044715):#x}')
        a('s_mov_b32 s73, s72')
        a('s_lshl_b32 s74, s74, 16')
        a('s_waitcnt vmcnt(0)')
        for i in range(14):
            self.unpack(W1 + 2 * i, W1 + 2 * i + 1, 160 + i)
            self.unpack(B1 + 2 * i, B1 + 2 * i + 1, 176 + i)
        a('s_lshl_b32 s40, s2, 2')
        a('s_lshl1_add_u32 s40, s34, s40')
        a('s_sub_u32 s40, s40, 4')
        a('s_add_u32 s50, s40, 2')
        lab('L_tb')
        a('s_mul_i32 s41, s40, 6')
        a(f's_cmp_ge_u32 s41, {NTH}')
        a(f's_mov_b32 s43, {E0 << 7}')
        a(f's_cselect_b32 s42, {0x8000 - NTH + (E0 << 7)}, s43')
        a('s_add_u32 s41, s41, s42')
        for n in range(6):
            a(f's_add_u32 s70, s41, {n}')
            a('s_lshl_b32 s70, s70, 16')
            a('s_mov_b32 s71, s70')
            a('s_call_b64 s[76:77], L_eval')
            a('s_nop 0')
            a(f'v_readfirstlane_b32 s{44+n}, v153')
        a('s_nop 0')
        for n in range(3):
            a(f's_pack_ll_b32_b16 s{44+n}, s{44+2*n}, s{45+2*n}')
        a('s_lshl_b32 s41, s40, 4')
        a(f's_add_u32 s41, s41, {TG}')
        a('v_mov_b32 v8, s44')
        a('v_mov_b32 v9, s45')
        a('v_mov_b32 v10, s46')
        a('v_mov_b32 v11, s6')
        a('v_mov_b32 v12, s41')
        a('s_mov_b64 exec, 1')
        a('global_store_dwordx4 v12, v[8:11], s[32:33] sc1')
        a('s_mov_b64 exec, -1')
        a('s_add_u32 s40, s40, 1')
        a('s_cmp_lt_u32 s40, s50')
        a('s_cbranch_scc1 L_tb')
        a('s_cmp_lt_u32 s35, 4')
        a('s_cbranch_scc1 L_cons')
        if opt['stamps']:
            a('s_cmp_lg_u32 s34, 2')
            a('s_cbranch_scc1 L_exit')
            self.stamp(24)
            self.flush_stamps([(15, 24)])
        a('s_endpgm')
        lab('L_work')
        self.worker()
        self.consumer()
        self.eval_sub()

    def wparams(self, idle):
        a = self.a
        a('s_lshr_b32 s40, s2, 3')
        a('s_and_b32 s41, s2, 3')
        a('s_sub_u32 s42, s40, s41')
        a('s_and_b32 s43, s42, 7')
        a('s_cmp_eq_u32 s43, 0')
        a(f's_cbranch_scc1 {idle}')
        a('s_add_u32 s42, s42, 7')
        a('s_lshr_b32 s42, s42, 3')
        a('s_sub_u32 s40, s40, s42')
        a('s_mul_i32 s41, s40, 37')
        a('s_lshr_b32 s41, s41, 8')
        a('s_mul_i32 s42, s41, 7')
        a('s_sub_u32 s42, s40, s42')
        a('s_and_b32 s40, s2, 7')
        a('s_lshl2_add_u32 s40, s40, s41')
        a('s_mul_i32 s43, s42, 293')
        a('s_lshr_b32 s43, s43, 6')

    def stage(self):
        a = self.a
        opt = self.opt
        W = opt['swin']
        a(f's_mul_i32 s44, s40, {128*896}')
        a('s_lshl_b32 s45, s42, 7')
        a('s_add_u32 s44, s44, s45')
        a('s_add_u32 s36, s16, s44')
        a('s_addc_u32 s37, s17, 0')
        a(f's_sub_u32 s38, {128*896}, s45')
        a('s_mov_b32 s39, 0x20000')
        a('v_lshrrev_b32 v2, 3, v1')
        a('v_and_b32 v3, 7, v1')
        a(f'v_mul_u32_u24 v8, {RS}, v2')
        a('v_lshl_add_u32 v8, v3, 4, v8')
        a('v_mul_u32_u24 v2, 896, v2')
        a('v_lshl_add_u32 v2, v3, 4, v2')
        a('s_mov_b32 s44, 0')
        for it in range(16):
            if it >= W:
                a(f's_waitcnt vmcnt({W-1})')
                a(f'ds_write_b128 v8, v[{160+4*(it-W)}:{163+4*(it-W)}] offset:{L_WOS+8*RS*(it-W)}')
            a(f'buffer_load_dwordx4 v[{160+4*it}:{163+4*it}], v2, s[36:39], s44 offen {opt["wof"]}')
            a('s_add_u32 s44, s44, 7168')
        a('v_lshlrev_b32 v3, 4, v1')
        for z in range(4):
            a(f'v_mov_b32 v{224+z}, 0')
        for z in range(3):
            a(f'ds_write_b128 v3, v[224:227] offset:{L_WOS+128*RS+1024*z}')
        for it in range(16 - W, 16):
            a(f's_waitcnt vmcnt({15-it})')
            a(f'ds_write_b128 v8, v[{160+4*it}:{163+4*it}] offset:{L_WOS+8*RS*it}')

    def mlp_loads(self):
        a = self.a
        a('v_lshlrev_b32 v2, 4, v1')
        a('v_lshlrev_b32 v3, 3, v1')
        W1, B1, C1P, W2P = self.W1, self.B1, self.C1P, self.W2P
        for base, sp in ((160, 20), (176, 22), (W2P, 24)):
            for r in range(3):
                a(f'global_load_dwordx4 v[{base+4*r}:{base+4*r+3}], v2, s[{sp}:{sp+1}] offset:{1024*r}')
            a(f'global_load_dwordx2 v[{base+12}:{base+13}], v3, s[{sp}:{sp+1}] offset:3072')

    def wait_lds(self, name, off, cmp, sleep):
        a, lab = self.a, self.lab
        a('v_mov_b32 v6, 0')
        a(f's_mov_b32 s19, {SPIN}')
        lab(name)
        a(f's_sleep {sleep}')
        a(f'ds_read_b32 v7, v6 offset:{off}')
        a('s_sub_u32 s19, s19, 1')
        a('s_cbranch_scc1 L_exit')
        a('s_waitcnt lgkmcnt(0)')
        a(cmp)
        a(f's_cbranch_vccnz {name}')

    def worker(self):
        a, lab = self.a, self.lab
        opt = self.opt
        self.wparams('L_wexit' if opt['stamps'] else 'L_exit')
        a('v_lshrrev_b32 v5, 4, v1')
        a('v_and_b32 v14, 15, v1')
        BF = 64
        for i in range(72):
            a(f'v_mov_b32 v{BF+i}, 0')
        a('s_cmp_lg_u32 s34, 0')
        a('s_cbranch_scc1 L_wst')
        if opt['early']:
            a('s_cmp_eq_u32 s5, 0')
            a('s_cbranch_scc1 L_wfl')
        self.stage()
        lab('L_wfl')
        a('v_mov_b32 v6, 0')
        a('v_mov_b32 v7, s6')
        a('s_waitcnt lgkmcnt(0)')
        a(f'ds_write_b32 v6, v7 offset:{L_WOF}')
        lab('L_wst')
        self.wait_lds('L_wsw', L_WOF, 'v_cmp_ne_u32 vcc, s6, v7', 8)
        a('s_mul_i32 s44, s34, 3')
        a('s_add_u32 s43, s43, s44')
        a('s_mul_i32 s44, s43, 14')
        a('s_lshl_b32 s45, s42, 6')
        a('s_sub_u32 s44, s44, s45')
        a(f'v_mul_u32_u24 v2, {6*RS}, v5')
        a('v_cmp_gt_u32 s[46:47], 14, v14')
        for t in range(3):
            u = self.u()
            a('v_add_u32 v3, s44, v14')
            a('v_cmp_gt_u32 vcc, 64, v3')
            a('v_lshl_add_u32 v3, v3, 1, v2')
            a(f's_and_b64 s[{48+2*t}:{49+2*t}], vcc, s[46:47]')
            a(f's_mov_b64 exec, s[{48+2*t}:{49+2*t}]')
            a(f's_cbranch_execz L_wb{u}')
            for kk in range(0, 6, 2):
                for q in range(2):
                    for e in range(6):
                        a(f'ds_read_u16 v{16+6*q+e}, v3 offset:{L_WOS+24*RS*(kk+q)+RS*e}')
                a('s_waitcnt lgkmcnt(0)')
                for q in range(2):
                    for uu in range(3):
                        a(f'v_lshl_or_b32 v{BF+12*(kk+q)+4*t+uu}, v{16+6*q+2*uu+1}, 16, v{16+6*q+2*uu}')
            lab(f'L_wb{u}')
            a('s_mov_b64 exec, -1')
            a('s_add_u32 s44, s44, 14')
        a('s_lshr_b32 s44, s40, 1')
        a('s_lshl_b32 s44, s44, 14')
        a('s_and_b32 s45, s40, 1')
        a('s_mul_i32 s46, s45, 384')
        a('s_add_u32 s44, s44, s46')
        a(f's_add_u32 s44, s44, {OG}')
        a('v_lshlrev_b32 v2, 10, v14')
        a('v_lshl_add_u32 v2, v5, 4, v2')
        a('v_add_u32 v2, s44, v2')
        a(f's_and_b32 s44, s40, {opt["R"]-1}')
        a('s_lshl_b32 s44, s44, 13')
        a('s_lshl_b32 s46, s43, 6')
        a('s_add_u32 s44, s44, s46')
        a(f's_add_u32 s44, s44, {ACC}')
        a('v_lshlrev_b32 v3, 11, v5')
        a('v_lshl_add_u32 v3, v14, 2, v3')
        a('v_add_u32 v3, s44, v3')
        a('v_cmp_eq_u32 vcc, 15, v14')
        a('v_lshlrev_b32 v8, 4, v5')
        a('v_add_u32 v8, 64, v8')
        a('v_cndmask_b32 v4, 0, 1.0, vcc')
        a('v_cmp_eq_u32 s[46:47], 1, v5')
        a(f'v_mov_b32 v9, {RDY}')
        a('v_lshl_add_u32 v9, v5, 2, v9')
        a(f's_mov_b32 s19, {SPIN}')
        lab('L_wr')
        a('global_load_dword v10, v9, s[32:33] sc1')
        a('s_sub_u32 s19, s19, 1')
        a('s_cbranch_scc1 L_exit')
        a('s_waitcnt vmcnt(0)')
        a('v_cmp_ne_u32 vcc, s6, v10')
        a('s_cbranch_vccz L_wr2')
        a('s_sleep 64')
        a('s_branch L_wr')
        lab('L_wr2')
        self.stamp(24)
        self.wait_lds('L_wd', L_CNT, 'v_cmp_gt_u32 vcc, 4, v7', 1)
        a('s_setprio 3')
        AF = 160
        a(f's_mov_b32 s19, {SPIN}')
        lab('L_wp')
        for kk in range(6):
            a(f'global_load_dwordx4 v[{AF+4*kk}:{AF+4*kk+3}], v2, s[32:33] offset:{64*kk} sc1')
        a('s_sub_u32 s19, s19, 1')
        a('s_cbranch_scc1 L_exit')
        for kk in range(6):
            a(f's_waitcnt vmcnt({5-kk})')
            if kk == 0:
                a(f'v_xor_b32 v9, s6, v{AF+3}')
            else:
                a(f'v_bitop3_b32 v9, v{AF+4*kk+3}, s6, v9 bitop3:0xbe')
        a('v_cmp_ne_u32 vcc, 0, v9')
        a('s_and_b64 exec, exec, vcc')
        if opt['psleep']:
            a('s_cbranch_execz L_wpx')
            a(f's_sleep {opt["psleep"]}')
            a('s_branch L_wp')
            lab('L_wpx')
        else:
            a('s_cbranch_execnz L_wp')
        a('s_mov_b64 exec, -1')
        self.stamp(26)
        D0 = 204
        LS = AF + 21

        def mf(kk):
            for t in range(3):
                d = D0 + 4 * t
                c = '0' if kk == 0 else f'v[{d}:{d+3}]'
                a(f'v_mfma_f32_16x16x32_bf16 v[{d}:{d+3}], v[{AF+4*kk}:{AF+4*kk+3}], v[{BF+12*kk+4*t}:{BF+12*kk+4*t+3}], {c}')
        a(f'v_mov_b32 v10, v{LS}')
        a(f'v_cndmask_b32 v{LS}, v{LS}, 0, s[46:47]')
        mf(0)
        a('v_max_f32_dpp v11, v10, v10 quad_perm:[1,0,3,2] row_mask:0xf bank_mask:0xf')
        mf(1)
        a('v_max_f32_dpp v11, v11, v11 quad_perm:[2,3,0,1] row_mask:0xf bank_mask:0xf')
        a('v_sub_f32 v10, v10, v11')
        a('v_exp_f32 v10, v10')
        mf(2)
        a('v_add_f32_dpp v11, v10, v10 quad_perm:[1,0,3,2] row_mask:0xf bank_mask:0xf')
        mf(3)
        a('v_add_f32_dpp v11, v11, v11 quad_perm:[2,3,0,1] row_mask:0xf bank_mask:0xf')
        a('v_rcp_f32 v11, v11')
        a('s_nop 0')
        a('v_mul_f32 v10, v10, v11')
        for r in range(4):
            a(f'ds_bpermute_b32 v{16+r}, v8, v10 offset:{4*r}')
        mf(4)
        mf(5)
        a('s_cmp_eq_u64 s[52:53], 0')
        a('s_waitcnt lgkmcnt(0)')
        self.nop(4)
        for t in range(3):
            a(f'v_fma_f32 v{20+t}, v16, v{D0+4*t}, v4')
            for r in range(1, 4):
                a(f'v_fmac_f32 v{20+t}, v{16+r}, v{D0+4*t+r}')
            if t == 2:
                a('s_cbranch_scc1 L_wend')
            a(f'global_atomic_add_f32 v3, v{20+t}, s[32:33] offset:{64*t}')
        lab('L_wend')
        if opt['stamps']:
            a('s_cmp_lg_u32 s34, 0')
            a('s_cbranch_scc1 L_exit')
            self.stamp(28)
            self.flush_stamps([(11, 24), (4, 26), (5, 28)])
            lab('L_wexit')
            a('s_cmp_lg_u32 s34, 0')
            a('s_cbranch_scc1 L_exit')
            for slot, v in ((9, 240), (10, 242), (17, 228), (19, 232), (20, 234), (21, 236)):
                self.unvstamp(v, 20)
                self.flush_stamps([(slot, 20)])
        a('s_endpgm')

    def consumer(self):
        a, lab = self.a, self.lab
        lab('L_cons')
        a('s_mov_b32 s36, s8')
        a('s_mov_b32 s37, s9')
        a('s_mov_b32 s38, 3584')
        a('s_mov_b32 s39, 0x20000')
        a('s_mov_b32 s40, s28')
        a('s_mov_b32 s41, s29')
        a('s_mov_b32 s42, 3584')
        a('s_mov_b32 s43, 0x20000')
        a('s_mul_i32 s44, s35, 896')
        a('v_lshrrev_b32 v6, 2, v1')
        a('v_and_b32 v3, 3, v1')
        a('v_mul_u32_u24 v2, 28, v6')
        a('v_lshl_add_u32 v2, v3, 3, v2')
        for r in range(2):
            for ep in range(2):
                a(f'buffer_load_dword v{8+2*r+ep}, v2, s[36:39], s44 offen offset:{448*r+4*ep}')
        a('s_mov_b32 s46, 0x88888888')
        a('s_mov_b32 s47, 0x88888888')
        a(f's_mov_b32 s62, {f2u(1.0/448):#x}')
        a(f's_mov_b32 s63, {f2u(1e-5):#x}')
        for r, m in ((0, 0x2210), (1, 0x0844)):
            a(f'v_lshrrev_b32 v{60+r}, v6, {m}' if False else f's_mov_b32 s48, {m}')
            a(f'v_lshrrev_b32 v{60+r}, v6, s48')
            a(f'v_and_b32 v{60+r}, 1, v{60+r}')
            a(f'v_add_u32 v{60+r}, 1, v{60+r}')
            a(f'v_mul_u32_u24 v{60+r}, {32 // self.opt["R"]}, v{60+r}')
            a(f'v_cvt_f32_u32 v{60+r}, v{60+r}')
        a('s_waitcnt vmcnt(0)')
        XF = 12
        for i in range(4):
            self.unpack(XF + 2 * i, XF + 2 * i + 1, 8 + i)
        a(f'v_lshlrev_b32 v7, 4, v1')
        a(f'v_add_u32 v62, {TG}, v7')
        a('v_mul_u32_u24 v3, 12, v1')
        a(f'v_add_u32 v3, {L_TBL}, v3')
        TF = 160
        a(f's_mov_b32 s19, {SPIN}')
        lab('L_ct')
        for it in range(16):
            if it % 4 == 0 and it:
                a('v_add_u32 v62, 4096, v62')
            a(f'global_load_dwordx4 v[{TF+4*it}:{TF+4*it+3}], v62, s[32:33] offset:{1024*(it%4)} sc1')
        a('v_subrev_u32 v62, 12288, v62')
        a('s_sub_u32 s19, s19, 1')
        a('s_cbranch_scc1 L_exit')
        a('s_waitcnt vmcnt(0)')
        a(f'v_xor_b32 v9, s6, v{TF+3}')
        for it in range(1, 16):
            a(f'v_bitop3_b32 v9, v{TF+4*it+3}, s6, v9 bitop3:0xbe')
        a('v_cmp_ne_u32 vcc, 0, v9')
        a('s_cbranch_vccz L_ct2')
        a(f's_sleep {self.opt["tsleep"]}')
        a('s_branch L_ct')
        lab('L_ct2')
        for it in range(16):
            a(f'ds_write2_b32 v3, v{TF+4*it}, v{TF+4*it+1} offset0:0 offset1:1')
            a(f'ds_write_b32 v3, v{TF+4*it+2} offset:8')
            a(f'v_add_u32 v3, {768 if it != 7 else 768 + 65536 - 2 * NTH}, v3')
        self.stamp(24)
        A, A2 = 20, 176
        Y = 168
        a(f's_mov_b32 s51, {E0 << 23:#x}')
        a(f's_mov_b32 s56, {(E0 + 24) << 23:#x}')
        for i in range(8):
            a(f'v_mov_b32 v{Y+i}, 0')
        self.wait_lds('L_cd', L_CNT, 'v_cmp_gt_u32 vcc, 4, v7', 1)
        a('s_setprio 3')
        a(f's_mov_b32 s19, {SPIN}')
        R = self.opt['R']
        AR = [A] + [A2 + 8 * i for i in range(R - 1)]
        lab('L_cp')
        for rp in range(R):
            a(f'global_load_dwordx4 v[{AR[rp]}:{AR[rp]+3}], v{224+rp}, s[32:33] sc1')
            a(f'global_load_dwordx4 v[{AR[rp]+4}:{AR[rp]+7}], v{224+rp}, s[32:33] offset:1024 sc1')
        a('s_sub_u32 s19, s19, 1')
        a('s_cbranch_scc1 L_exit')
        a('s_mov_b64 s[48:49], s[46:47]')
        for rp in range(R):
            a(f's_waitcnt vmcnt({2*(R-1-rp)})')
            a(f'v_cmp_eq_f32 vcc, v60, v{AR[rp]+3}')
            a(f'v_cmp_eq_f32 s[52:53], v61, v{AR[rp]+7}')
            if rp:
                for i in range(4):
                    a(f'v_pk_add_f32 v[{A+2*i}:{A+2*i+1}], v[{A+2*i}:{A+2*i+1}], v[{AR[rp]+2*i}:{AR[rp]+2*i+1}]')
            a('s_and_b64 s[48:49], s[48:49], vcc')
            a('s_and_b64 s[48:49], s[48:49], s[52:53]')
        a('s_cmp_eq_u64 s[48:49], s[46:47]')
        a('s_cbranch_scc0 L_cp')
        self.stamp(26)
        P, Hh, Dd = 28, 32, 40
        S1, S2, MO, RO = 48, 50, 54, 56
        for i in range(8):
            self.bf16r(A + i, A + i)
        for i in range(4):
            a(f'v_pk_add_f32 v[{A+2*i}:{A+2*i+1}], v[{A+2*i}:{A+2*i+1}], v[{XF+2*i}:{XF+2*i+1}]')
        for i in range(8):
            self.bf16r(Hh + i, A + i)

        def sums(src, piv):
            if piv:
                a(f'v_readfirstlane_b32 s50, v{src}')
                a('s_nop 1')
                for i in range(4):
                    a(f'v_pk_add_f32 v[{Dd+2*i}:{Dd+2*i+1}], v[{src+2*i}:{src+2*i+1}], s[50:51] op_sel_hi:[1,0] neg_lo:[0,1] neg_hi:[0,1]')
                s = Dd
            else:
                s = src
            for i in (2, 3, 6, 7):
                a(f'v_cndmask_b32 v{Dd+i}, v{s+i}, 0, s[46:47]')
            idx = [s, s + 4, Dd + 2, Dd + 6]
            pr = lambda r: f'v[{r}:{r+1}]'
            a(f'v_pk_add_f32 {pr(S1)}, {pr(idx[0])}, {pr(idx[1])}')
            a(f'v_pk_mul_f32 {pr(S2)}, {pr(idx[0])}, {pr(idx[0])}')
            a(f'v_pk_add_f32 {pr(S1)}, {pr(S1)}, {pr(idx[2])}')
            a(f'v_pk_fma_f32 {pr(S2)}, {pr(idx[1])}, {pr(idx[1])}, {pr(S2)}')
            a(f'v_pk_add_f32 {pr(S1)}, {pr(S1)}, {pr(idx[3])}')
            a(f'v_pk_fma_f32 {pr(S2)}, {pr(idx[2])}, {pr(idx[2])}, {pr(S2)}')
            a(f'v_add_f32 v{S1}, v{S1}, v{S1+1}')
            a(f'v_pk_fma_f32 {pr(S2)}, {pr(idx[3])}, {pr(idx[3])}, {pr(S2)}')
            a(f'v_add_f32 v{S2}, v{S2}, v{S2+1}')
            self.ladder64([S1, S2], [S1 + 1, S2 + 1])
            self.ln_stats(S1, S2, 's50' if piv else None, 58, 59, 62, 63, MO, RO)

        def norm(src, dst):
            for i in range(4):
                a(f'v_pk_add_f32 v[{dst+2*i}:{dst+2*i+1}], v[{src+2*i}:{src+2*i+1}], v[{MO}:{MO+1}] op_sel_hi:[1,0] neg_lo:[0,1] neg_hi:[0,1]')
            for i in range(8):
                self.bf16r(dst + i, dst + i)
            for i in range(4):
                a(f'v_pk_mul_f32 v[{dst+2*i}:{dst+2*i+1}], v[{dst+2*i}:{dst+2*i+1}], v[{RO}:{RO+1}] op_sel_hi:[1,0]')
            for i in range(8):
                self.bf16r(dst + i, dst + i)

        sums(Hh, True)
        norm(Hh, A)
        sums(A, False)
        norm(A, A)
        for i in range(8):
            a(f'v_lshrrev_b32 v{Dd+i}, 15, v{A+i}')
        for i in range(8):
            a(f'ds_read_u16_d16_hi v{Y+i}, v{Dd+i}')
        for i in (2, 3, 6, 7):
            a(f'v_cndmask_b32 v{A+i}, v{A+i}, 1.0, s[46:47]')
        a(f'v_min3_f32 v48, |v{A}|, |v{A+1}|, |v{A+2}|')
        a(f'v_max3_f32 v49, |v{A}|, |v{A+1}|, |v{A+2}|')
        a(f'v_min3_f32 v48, v48, |v{A+3}|, |v{A+4}|')
        a(f'v_max3_f32 v49, v49, |v{A+3}|, |v{A+4}|')
        a(f'v_min3_f32 v48, v48, |v{A+5}|, |v{A+6}|')
        a(f'v_max3_f32 v49, v49, |v{A+5}|, |v{A+6}|')
        a(f'v_min_f32 v48, v48, |v{A+7}|')
        a(f'v_max_f32 v49, v49, |v{A+7}|')
        a(f'v_mul_f32 v50, v{RO}, v{MO}')
        a('v_cmp_gt_f32 vcc, s51, v48')
        a('v_cmp_le_f32 s[52:53], s56, v49')
        a('v_cmp_u_f32 s[54:55], v50, v50')
        a('s_or_b64 vcc, vcc, s[52:53]')
        a('s_or_b64 vcc, vcc, s[54:55]')
        a('s_waitcnt lgkmcnt(0)')
        a('s_cbranch_vccnz L_cslow')
        lab('L_cfin')
        for i in range(4):
            a(f'v_pk_add_f32 v[{Y+2*i}:{Y+2*i+1}], v[{Y+2*i}:{Y+2*i+1}], v[{Hh+2*i}:{Hh+2*i+1}]')
        for i in range(4):
            a(f'v_cvt_pk_bf16_f32 v{P+i}, v{Y+2*i}, v{Y+2*i+1}')
        of = self.opt['outf']
        a(f'buffer_store_dword v{P}, v2, s[40:43], s44 offen {of}')
        a(f'buffer_store_dword v{P+2}, v2, s[40:43], s44 offen offset:448 {of}')
        a('s_andn2_b64 exec, exec, s[46:47]')
        a(f'buffer_store_dword v{P+1}, v2, s[40:43], s44 offen offset:4 {of}')
        a(f'buffer_store_dword v{P+3}, v2, s[40:43], s44 offen offset:452 {of}')
        self.stamp(28)
        if self.opt['fix']:
            a('s_and_b32 s96, s6, 0x3fff')
            a('s_lshr_b32 s97, s6, 2')
            a('s_and_b32 s97, s97, 0x0fffc000')
            a('s_or_b32 s96, s96, s97')
            lab('L_fix')
            a('s_memrealtime s[94:95]')
            a('s_waitcnt lgkmcnt(0)')
            a('s_sub_u32 s94, s94, s96')
            a('s_and_b32 s94, s94, 0x0fffffff')
            a(f's_cmp_lt_u32 s94, {self.opt["fix"]}')
            a('s_cbranch_scc1 L_fix')
        self.flush_stamps([(12, 24), (13, 26), (14, 28)])
        a('s_endpgm')
        lab('L_cslow')
        a(f's_mov_b32 s57, {E0 << 23:#x}')
        a(f's_mov_b32 s58, {24 << 23:#x}')
        for i in range(8):
            u = self.u()
            a(f'v_and_b32 v48, 0x7fffffff, v{A+i}')
            a('v_subrev_u32 v48, s57, v48')
            a('v_cmp_le_u32 s[52:53], s58, v48')
            lab(f'L_cs{u}')
            a('s_cmp_eq_u64 s[52:53], 0')
            a(f's_cbranch_scc1 L_ce{u}')
            a('s_ff1_i32_b64 s54, s[52:53]')
            a('s_bitset0_b64 s[52:53], s54')
            a(f'v_readlane_b32 s70, v{A+i}, s54')
            a('s_nop 0')
            a('s_mov_b32 s71, s70')
            a('s_nop 0')
            a('s_call_b64 s[76:77], L_eval')
            a('s_nop 0')
            a('v_readfirstlane_b32 s55, v153')
            a('s_mov_b32 m0, s54')
            a('s_lshl_b32 s55, s55, 16')
            a('s_nop 3')
            a(f'v_writelane_b32 v{Y+i}, s55, m0')
            a(f's_branch L_cs{u}')
            lab(f'L_ce{u}')
        a('s_branch L_cfin')

    def build(self):
        a, lab = self.a, self.lab
        o = self.o
        o.append(HEADER.rstrip('\n'))
        o.append(f'; @launch grid=(256,1,1) block=(512,1,1) lds={L_END}')
        o.append(DOC.rstrip('\n'))
        o.append('.amdgcn_target "amdgcn-amd-amdhsa--gfx950"')
        o.append('.text')
        o.append(f'.globl {KN}')
        o.append('.p2align 8')
        o.append(f'.type {KN},@function')
        lab(KN)
        a('s_cmp_ge_u32 s2, 256')
        a('s_cbranch_scc1 L_exit')
        a('s_memrealtime s[98:99]')
        a('s_load_dwordx16 s[8:23], s[0:1], 0')
        a('s_load_dwordx8 s[24:31], s[0:1], 64')
        a('s_load_dwordx2 s[32:33], s[0:1], 96')
        a('v_lshrrev_b32 v1, 6, v0')
        a('s_lshr_b32 s4, s2, 2')
        a('v_readfirstlane_b32 s3, v1')
        a('s_lshr_b32 s7, s2, 3')
        a('s_xor_b32 s7, s7, s2')
        a('s_and_b32 s7, s7, 3')
        a('s_cmp_eq_u32 s7, 0')
        a('s_cselect_b32 s5, 1, 0')
        a('s_cmp_ge_u32 s3, 4')
        a('s_cbranch_scc1 L_helper')
        self.streamer()
        lab('L_helper')
        self.helper()
        lab('L_exit')
        a('s_endpgm')
        o.append('.section .rodata,"a"')
        o.append('.p2align 6')
        o.append(f'.amdhsa_kernel {KN}')
        o.append('  .amdhsa_next_free_vgpr 256')
        o.append('  .amdhsa_next_free_sgpr 102')
        o.append('  .amdhsa_accum_offset 256')
        o.append('  .amdhsa_group_segment_fixed_size 0')
        o.append('  .amdhsa_kernarg_size 104')
        o.append('  .amdhsa_user_sgpr_count 2')
        o.append('  .amdhsa_user_sgpr_kernarg_segment_ptr 1')
        o.append('  .amdhsa_system_sgpr_workgroup_id_x 1')
        o.append('.end_amdhsa_kernel')
        return '\n'.join(o) + '\n'


if __name__ == '__main__':
    out = sys.argv[1]
    opt = eval(sys.argv[2]) if len(sys.argv) > 2 else {}
    open(out, 'w').write(G(**opt).build())
```

```python
import sys, struct, math

KN = 'sequential_preLN__mha_block_cached__mixer_token_mlp__decode_kernel'
HEADER = open('sequential_preLN__mha_block_cached__mixer_token_mlp__decode.s.ref').read().split('; Override launch')[0]


def f2u(x):
    return struct.unpack('<I', struct.pack('<f', x))[0]


QG, OG, TG, TK, RDY, ACC = 0x0, 0x10000, 0x50000, 0x54000, 0x58000, 0x60000
STAMP = 256 << 20
E0 = 108
NTH = 3072
L_FLG, L_CNT, L_WOF, L_HDR, L_QL, L_FL2 = 0, 16, 20, 32, 64, 576
L_XN, L_OW, L_QP = 2048, 6144, 10752
L_TBL = 2 * (E0 << 7)
L_WOS = 34048
L_END = L_TBL + 65536 + 2 * NTH
RS = 144
LOG2E = 1.4426950408889634
SPIN = 1 << 18
FRESH = 1500
GRACE = 200

DOC = '''; Single fused launch, 256 workgroups x 8 waves (one workgroup per CU).
'''


class G:
    def __init__(self, **opt):
        self.o = []
        self.opt = dict(stamps=False, wqf='nt', wof='nt', kvf='nt', vf=None, pace=12, LA=12, setC=True, NST=13, TP=8,
                        psleep=3, HALF=False, outf='', tsleep=127, fix=0, exp='', pdelay=True, hs0=16, qsleep=2, R=2, pbar=3, early=False, swin=16, ILV=True, NF=0, gmap=1, after=True, ptrs=False)
        self.opt.update(opt)
        self.uid = 0

    def a(self, s):
        self.o.append('  ' + s)

    def lab(self, s):
        self.o.append(s + ':')

    def u(self):
        self.uid += 1
        return self.uid

    def nop(self, n):
        if n > 0:
            self.a(f's_nop {n-1}')

    def stamp(self, sreg):
        if self.opt['stamps']:
            self.a(f's_memrealtime s[{sreg}:{sreg+1}]')

    def vstamp(self, v):
        if self.opt['stamps']:
            self.a('s_memrealtime s[18:19]')
            self.a('s_waitcnt lgkmcnt(0)')
            self.a(f'v_mov_b32 v{v}, s18')
            self.a(f'v_mov_b32 v{v+1}, s19')

    def unvstamp(self, v, sreg):
        if self.opt['stamps']:
            self.a(f'v_readfirstlane_b32 s{sreg}, v{v}')
            self.a(f'v_readfirstlane_b32 s{sreg+1}, v{v+1}')
            self.a('s_nop 1')

    def flush_stamps(self, pairs, vt=250):
        if not self.opt['stamps']:
            return
        a = self.a
        a('s_waitcnt lgkmcnt(0)')
        a('s_mov_b64 exec, 1')
        a('s_lshl_b32 s7, s2, 8')
        a(f's_add_u32 s7, s7, {STAMP}')
        a(f'v_mov_b32 v{vt+2}, s7')
        for slot, sreg in pairs:
            a(f'v_mov_b32 v{vt}, s{sreg}')
            a(f'v_mov_b32 v{vt+1}, s{sreg+1}')
            a(f'global_store_dwordx2 v{vt+2}, v[{vt}:{vt+1}], s[32:33] offset:{8*slot}')
            a('s_nop 1')

    def fresh(self, ts, t0, t1):
        a = self.a
        a(f's_and_b32 s{t0}, s6, 0x3fff')
        a(f's_lshr_b32 s{t1}, s6, 2')
        a(f's_and_b32 s{t1}, s{t1}, 0x0fffc000')
        a(f's_or_b32 s{t0}, s{t0}, s{t1}')
        a(f's_sub_u32 s{t0}, s{t0}, s{ts}')
        a(f's_add_u32 s{t0}, s{t0}, {FRESH}')
        a(f's_bfe_u32 s{t0}, s{t0}, 0x1001b')
        a(f's_bfe_u32 s{t1}, s6, 0x1000f')
        a(f's_cmp_gt_u32 s{t1}, s{t0}')

    def tag_slow(self, name, ok, ts, t0, t1, cnt, va, vb):
        a, lab = self.a, self.lab
        a(f's_mov_b32 s{cnt}, {SPIN}')
        a(f'v_mov_b32 v{va}, 0')
        lab(name)
        a(f'global_load_dword v{vb}, v{va}, s[30:31] sc1')
        a(f's_sub_u32 s{cnt}, s{cnt}, 1')
        a('s_cbranch_scc1 L_exit')
        a('s_waitcnt vmcnt(0)')
        a(f'v_readfirstlane_b32 s6, v{vb}')
        a('s_nop 0')
        self.fresh(ts, t0, t1)
        a(f's_cbranch_scc1 {ok}')
        a(f's_cmp_gt_u32 s{cnt}, {SPIN - GRACE}')
        a(f's_cbranch_scc1 {name}')
        a('s_cmp_eq_u32 s6, 0')
        a(f's_cbranch_scc1 {name}')
        a(f's_branch {ok}')

    def flags4(self, v):
        a = self.a
        a(f'v_xor_b32 v{v}, s6, v{v}')
        for i in (1, 2, 3):
            a(f'v_bitop3_b32 v{v}, v{v+i}, s6, v{v} bitop3:0xbe')
        a(f'v_cmp_eq_u32 vcc, 0, v{v}')

    def bf16r(self, dst, src):
        self.a(f'v_cvt_pk_bf16_f32 v{dst}, 0, v{src}')

    def unpack(self, lo, hi, p):
        self.a(f'v_lshlrev_b32 v{lo}, 16, v{p}')
        self.a(f'v_and_b32 v{hi}, 0xffff0000, v{p}')

    def ladder64(self, regs, tmps, op='v_add_f32'):
        a = self.a
        n = len(regs)
        for ror in (8, 4, 2, 1):
            self.nop(max(0, 2 - (n - 1)))
            for r in regs:
                a(f'{op}_dpp v{r}, v{r}, v{r} row_ror:{ror} row_mask:0xf bank_mask:0xf')
        for sw in ('v_permlane16_swap_b32', 'v_permlane32_swap_b32'):
            for r, t in zip(regs, tmps):
                a(f'v_mov_b32 v{t}, v{r}')
            self.nop(max(0, 2 - (n - 1)))
            for r, t in zip(regs, tmps):
                a(f'{sw} v{r}, v{t}')
            for r, t in zip(regs, tmps):
                a(f'{op} v{r}, v{r}, v{t}')

    def ln_stats(self, s1, s2, piv, t0, t1, sinv, seps, mout, rout):
        a = self.a
        a(f'v_mul_f32 v{s1}, s{sinv}, v{s1}')
        a(f'v_mul_f32 v{t0}, v{s1}, v{s1}')
        a(f'v_fma_f32 v{s2}, v{s2}, s{sinv}, -v{t0}')
        if piv is not None:
            a(f'v_add_f32 v{s1}, {piv}, v{s1}')
        a(f'v_max_f32 v{s2}, 0, v{s2}')
        self.bf16r(t1, s2)
        self.bf16r(mout, s1)
        a(f'v_add_f32 v{t1}, s{seps}, v{t1}')
        self.bf16r(t1, t1)
        a(f'v_sqrt_f32 v{t1}, v{t1}')
        a('s_nop 0')
        self.bf16r(t1, t1)
        a(f'v_rcp_f32 v{rout}, v{t1}')
        a('s_nop 0')

    def member(self, dst, tmp):
        a = self.a
        if self.opt['gmap'] == 0:
            a(f's_and_b32 s{dst}, s2, 3')
        elif self.opt['gmap'] == 1:
            a(f's_bfe_u32 s{tmp}, s2, 0x10002')
            a(f's_and_b32 s{dst}, s2, 1')
            a(f's_lshl1_add_u32 s{dst}, s{tmp}, s{dst}')
        else:
            a(f's_bfe_u32 s{tmp}, s2, 0x10002')
            a(f's_and_b32 s{dst}, s2, 1')
            a(f's_lshl1_add_u32 s{dst}, s{tmp}, s{dst}')

    def cstep(self):
        return 0x20000 if self.opt['ILV'] else 0x8000

    def ld(self, R, n, sreg):
        j = n & 7
        srd = 's[36:39]' if n < 8 else 's[40:43]'
        fl = self.opt['kvf'] if (n < 8 or self.opt['vf'] is None) else self.opt['vf']
        self.a(f'buffer_load_dwordx4 v[{R+4*n}:{R+4*n+3}], v{2+j}, {srd}, s{sreg} offen {fl}')

    def chunk(self, R, issue, wait):
        a = self.a
        LA, NST, TP, HALF = self.opt['LA'], self.opt['NST'], self.opt['TP'], self.opt['HALF']
        pool0 = 4 * NST * 0x8000
        npool = (16 - NST) * 16 * (2 if HALF else 1) - (self.opt['NF'] if HALF else 0)

        def hooks(n):
            if NST < 16 and n == (16 - LA - TP) % 16:
                u = self.u()
                wrap = 16 - LA - TP < 0
                a(f's_cmp_gt_u32 s45, {2 if wrap else 1}')
                a(f's_cbranch_scc1 L_nt{u}')
                if wrap:
                    a('s_cmp_ge_u32 s44, 0x200000')
                    a(f's_cbranch_scc1 L_nt{u}')
                a('s_mov_b32 s50, 1')
                a('s_mov_b32 s51, 0')
                a('s_atomic_add_x2 s[50:51], s[52:53], 0x0 glc')
                self.lab(f'L_nt{u}')
            if n == 16 - LA:
                u = self.u()
                a(f's_add_u32 s44, s47, {self.cstep():#x}')
                a('s_cmp_gt_u32 s45, 1')
                a(f's_cbranch_scc1 L_st{u}')
                if NST < 16:
                    a('s_waitcnt lgkmcnt(0)')
                    a('s_cmp_lg_u32 s51, s6')
                    a('s_cbranch_scc1 L_tkretry')
                    self.lab('L_tkok')
                    NF = self.opt['NF']
                    if HALF and NF:
                        a('s_lshr_b32 s48, s50, 2')
                        a(f's_min_u32 s49, s48, {NF // 4}')
                        a('s_add_u32 s48, s48, s49')
                        a('s_lshl_b32 s48, s48, 14')
                        a(f's_add_u32 s38, s48, {pool0 + 0x4000}')
                        a('s_min_u32 s38, s38, 0x200000')
                        a(f's_cmp_lt_u32 s50, {NF}')
                        a('s_cselect_b32 s38, 0x200000, s38')
                        a('s_cselect_b32 s62, 0, 0xffff0000')
                    else:
                        a('s_lshr_b32 s48, s50, 2')
                        a(f's_lshl_b32 s48, s48, {14 if HALF else 15}')
                        if HALF:
                            a(f's_add_u32 s38, s48, {pool0 + 0x4000}')
                            a('s_min_u32 s38, s38, 0x200000')
                            a('s_mov_b32 s62, 0xffff0000')
                    a('s_and_b32 s49, s50, 3')
                    a('s_lshl_b32 s49, s49, 10')
                    a('s_add_u32 s48, s48, s49')
                    a('s_add_u32 s48, s48, s54')
                    a(f's_cmp_lt_u32 s50, {npool}')
                    a('s_cselect_b32 s44, s48, 0x200000')
                    if self.opt['stamps']:
                        u2 = self.u()
                        a(f's_cbranch_scc0 L_dg{u2}')
                        a('s_memrealtime s[94:95]')
                        a('s_add_u32 s96, s96, 1')
                        a('s_waitcnt lgkmcnt(0)')
                        self.lab(f'L_dg{u2}')
                else:
                    a('s_mov_b32 s44, 0x200000')
                self.lab(f'L_st{u}')
            if HALF and n == (24 - LA) % 16:
                a('s_mov_b32 s42, s38')

        def iss(n):
            if issue:
                hooks(n)
                t = n + LA
                if t < 16:
                    self.ld(R, t, 47)
                else:
                    self.ld(R, t - 16, 44)

        Q, AC, S = 10, 14, 22
        X, C, C2, MN, AL, E, E1, PA0, PB0, PA1, PB1 = 30, 31, 32, 33, 34, 35, 36, 37, 38, 39, 42
        M, L = 40, 41
        SU, SU2 = 43, 44
        for j in range(8):
            if wait:
                a(f's_waitcnt vmcnt({LA-1})')
            k = R + 4 * j
            a(f'v_dot2_f32_bf16 v{S+j}, v{k}, v{Q}, 0')
            for i in range(1, 4):
                a(f'v_dot2_f32_bf16 v{S+j}, v{k+i}, v{Q+i}, v{S+j}')
            iss(j)
        for p in range(4):
            a(f'v_add_f32_dpp v{S+2*p}, v{S+2*p}, v{S+2*p} row_ror:8 row_mask:0xf bank_mask:0x3')
            a(f'v_add_f32_dpp v{S+2*p}, v{S+2*p+1}, v{S+2*p+1} row_ror:8 row_mask:0xf bank_mask:0xc')
        for p in (0, 4):
            a(f'v_add_f32_dpp v{S+p}, v{S+p}, v{S+p} row_half_mirror row_mask:0xf bank_mask:0x5')
            a(f'v_add_f32_dpp v{S+p}, v{S+p+2}, v{S+p+2} row_half_mirror row_mask:0xf bank_mask:0xa')
        self.nop(2)
        a(f'v_permlane16_swap_b32 v{S}, v{S+4}')
        a(f'v_add_f32 v{S}, v{S}, v{S+4}')
        self.nop(2)
        a(f'v_add_f32_dpp v{S}, v{S}, v{S} quad_perm:[1,0,3,2] row_mask:0xf bank_mask:0xf')
        self.nop(2)
        a(f'v_add_f32_dpp v{S}, v{S}, v{S} quad_perm:[2,3,0,1] row_mask:0xf bank_mask:0xf')
        self.bf16r(X, S)
        if HALF and issue:
            a(f'v_cndmask_b32 v{X}, v{X}, v254, s[56:57]')
        self.nop(2)
        a(f'v_max_f32_dpp v{C}, v{X}, v{X} row_ror:8 row_mask:0xf bank_mask:0xf')
        self.nop(2)
        a(f'v_max_f32_dpp v{C}, v{C}, v{C} row_half_mirror row_mask:0xf bank_mask:0xf')
        for sw in ('v_permlane16_swap_b32', 'v_permlane32_swap_b32'):
            a(f'v_mov_b32 v{C2}, v{C}')
            self.nop(2)
            a(f'{sw} v{C}, v{C2}')
            a(f'v_max_f32 v{C}, v{C}, v{C2}')
        a(f'v_mul_f32 v{C}, s46, v{C}')
        a(f'v_max_f32 v{MN}, v{M}, v{C}')
        a(f'v_fma_f32 v{E}, v{X}, s46, -v{MN}')
        a(f'v_sub_f32 v{AL}, v{M}, v{MN}')
        a(f'v_exp_f32 v{E}, v{E}')
        a(f'v_exp_f32 v{AL}, v{AL}')
        a(f'v_mov_b32 v{M}, v{MN}')
        a(f'v_mov_b32 v{E1}, v{E}')
        for i in range(2):
            a(f'v_mul_f32 v{AC+i}, v{AC+i}, v{AL}')
        a(f'v_permlane16_swap_b32 v{E}, v{E1}')
        for i in range(2, 8):
            a(f'v_mul_f32 v{AC+i}, v{AC+i}, v{AL}')
        a(f'v_cvt_pk_bf16_f32 v{PA0}, v{E}, 0')
        a(f'v_cvt_pk_bf16_f32 v{PB0}, 0, v{E}')
        a(f'v_cvt_pk_bf16_f32 v{PA1}, v{E1}, 0')
        a(f'v_cvt_pk_bf16_f32 v{PB1}, 0, v{E1}')
        a(f'v_add_f32 v{SU}, v{E}, v{E1}')
        a(f'v_mul_f32 v{L}, v{L}, v{AL}')
        extra = [
            [f'v_add_f32_dpp v{SU}, v{SU}, v{SU} row_ror:8 row_mask:0xf bank_mask:0xf'],
            [f'v_add_f32_dpp v{SU}, v{SU}, v{SU} row_half_mirror row_mask:0xf bank_mask:0xf'],
            [f'v_mov_b32 v{SU2}, v{SU}'],
            [f'v_permlane32_swap_b32 v{SU}, v{SU2}', f'v_add_f32 v{L}, v{L}, v{SU}', f'v_add_f32 v{L}, v{L}, v{SU2}'],
        ]
        for j in range(8):
            if wait:
                a(f's_waitcnt vmcnt({LA-1})')
            v = R + 32 + 4 * j
            pa, pb = (PA0, PB0) if j < 4 else (PA1, PB1)
            n = 8 * (j & 1) + 4 * ((j >> 1) & 1)
            for i in range(4):
                a(f'v_dot2c_f32_bf16_dpp v{AC+2*i}, v{pa}, v{v+i} row_newbcast:{n} row_mask:0xf bank_mask:0xf')
                a(f'v_dot2c_f32_bf16_dpp v{AC+2*i+1}, v{pb}, v{v+i} row_newbcast:{n} row_mask:0xf bank_mask:0xf')
            iss(8 + j)
            if j < len(extra):
                for s in extra[j]:
                    a(s)

    def issue_set(self, R, done=0, cnt=16):
        for n in range(cnt):
            if self.opt['pace'] and done + n >= self.opt['pace']:
                self.a(f's_waitcnt vmcnt({self.opt["pace"]-1})')
            self.ld(R, n, 44)

    def streamer(self):
        a, lab = self.a, self.lab
        opt = self.opt
        RA, RB, RC = 48, 112, 176
        NST, setC = opt['NST'], opt['setC']
        a('v_lshlrev_b32 v2, 4, v0')
        for j in range(1, 8):
            a(f'v_add_u32 v{2+j}, {4096*j}, v2')
        a('s_lshl_b32 s7, s4, 21')
        a('s_mov_b32 s38, 0x200000')
        a('s_mov_b32 s39, 0x20000')
        a('s_mov_b32 s42, 0x200000')
        a('s_mov_b32 s43, 0x20000')
        self.member(44, 45)
        a(f's_mul_i32 s44, s44, {0x8000 if opt["ILV"] else NST*0x8000}')
        a('s_or_b32 s47, s2, s3')
        a('v_lshlrev_b32 v11, 6, v0')
        a('s_waitcnt lgkmcnt(0)')
        a('s_cmp_lg_u32 s47, 0')
        a('s_cbranch_scc1 L_sn0')
        a('s_and_b32 s49, s98, 0x3fff')
        a('s_lshl_b32 s48, s98, 2')
        a('s_and_b32 s48, s48, 0x3fff0000')
        a('s_or_b32 s48, s48, s49')
        a('s_or_b32 s48, s48, 0x8000')
        a('v_mov_b32 v10, s48')
        a('s_mov_b64 exec, 15')
        a('global_store_dword v11, v10, s[30:31] sc1')
        if opt['ptrs']:
            a('s_mov_b64 exec, 1')
            a('v_mov_b32 v12, 0')
            for i, r in enumerate((8, 10, 12, 14, 16, 28, 30, 32, 11, 13, 33)):
                a(f'v_mov_b32 v13, s{r}')
                a(f'global_store_dword v12, v13, s[30:31] offset:{16+4*i}')
                a('s_nop 1')
        a('s_mov_b64 exec, -1')
        lab('L_sn0')
        a('s_add_u32 s36, s10, s7')
        a('s_addc_u32 s37, s11, 0')
        a('s_add_u32 s40, s12, s7')
        a('s_addc_u32 s41, s13, 0')
        if opt['pdelay']:
            a('s_cmp_eq_u32 s5, 0')
            a('s_cbranch_scc1 L_spd')
            a('s_barrier')
            lab('L_spd')
        self.issue_set(RB)
        done = 16
        if setC:
            a(f's_add_u32 s44, s44, {self.cstep():#x}')
            self.issue_set(RC, done)
            done += 16
        a(f's_add_u32 s44, s44, {self.cstep():#x}')
        a('s_load_dword s6, s[30:31], 192')
        self.issue_set(RA, done, opt['LA'])
        a('s_mov_b32 s47, s44')
        a('s_lshl_b32 s48, s4, 8')
        a(f's_add_u32 s48, s48, {TK}')
        a('s_add_u32 s52, s32, s48')
        a('s_addc_u32 s53, s33, 0')
        a('s_lshl_b32 s54, s3, 10')
        a(f's_sub_u32 s54, {4*NST*0x8000}, s54')
        a('s_setprio 2')
        for i in range(8):
            a(f'v_mov_b32 v{14+i}, 0')
        a('v_mov_b32 v40, 0xff800000')
        a('v_mov_b32 v41, 0')
        a(f's_mov_b32 s46, {f2u(LOG2E/16.0):#x}')
        niter = NST - (2 if setC else 1)
        a(f's_mov_b32 s45, {niter}')
        a('s_mov_b64 s[56:57], 0')
        a('s_mov_b32 s62, 0')
        a('v_mov_b32 v254, 0xff800000')
        a('v_and_b32 v253, 63, v0')
        a('v_cmp_le_u32 vcc, 24, v253')
        a('v_and_b32 v45, 31, v0')
        a('v_lshlrev_b32 v247, 4, v45')
        a('v_cndmask_b32 v30, 0, 24, vcc')
        a('v_sub_u32 v30, v253, v30')
        a('v_mul_u32_u24 v249, 24, v30')
        a('v_cndmask_b32 v31, 0, 1, vcc')
        a('v_lshl_add_u32 v249, v31, 9, v249')
        a('v_cmp_eq_u32 s[58:59], 21, v30')
        a('v_cmp_gt_u32 s[60:61], 21, v30')
        a('v_cmp_gt_u32 s[64:65], 22, v30')
        a('v_lshlrev_b32 v46, 5, v45')
        a('v_bfe_u32 v30, v0, 5, 1')
        a('v_lshl_add_u32 v46, v30, 4, v46')
        a('s_lshl_b32 s7, s3, 10')
        a('v_add_u32 v46, s7, v46')
        a('s_lshl_b32 s7, s3, 3')
        a('v_mov_b32 v45, s7')
        a('s_and_b32 s48, s4, 15')
        a('s_lshl_b32 s48, s48, 4')
        a('s_lshr_b32 s49, s4, 4')
        a('s_lshl2_add_u32 s48, s49, s48')
        self.member(49, 7)
        a('s_add_u32 s48, s48, s49')
        a('s_lshl_b32 s48, s48, 10')
        a(f's_add_u32 s48, s48, {OG}')
        a('v_lshl_add_u32 v248, v253, 4, s48')
        a('v_mov_b32 v30, 0')
        self.stamp(80)
        a('s_waitcnt lgkmcnt(0)')
        self.fresh(98, 48, 49)
        a('s_cbranch_scc0 L_snw')
        lab('L_snok')
        a(f's_mov_b32 s48, {SPIN}')
        a('v_mov_b32 v47, s6')
        a('s_branch L_sqw')
        lab('L_sqs')
        a('s_sleep 1')
        lab('L_sqw')
        a(f'ds_read_b128 v[32:35], v30 offset:{L_FL2}')
        a(f'ds_read_b128 v[10:13], v247 offset:{L_QL}')
        a('s_sub_u32 s48, s48, 1')
        a('s_cbranch_scc1 L_exit')
        a('s_waitcnt lgkmcnt(0)')
        self.flags4(32)
        a('s_cbranch_vccz L_sqs')
        self.stamp(82)
        if opt['stamps']:
            a('s_memtime s[90:91]')
            a('s_mov_b32 s96, 0')
            a('s_mov_b32 s97, 0')
            a('s_mov_b64 s[94:95], s[98:99]')
        lab('L_sloop')
        self.chunk(RA, True, True)
        a('s_mov_b32 s47, s44')
        if opt['HALF']:
            a('s_mov_b32 s56, s62')
            a('s_mov_b32 s57, s62')
        a(f's_cmp_eq_u32 s45, {niter}')
        a('s_cbranch_scc1 L_sB')
        if setC:
            a(f's_cmp_eq_u32 s45, {niter-1}')
            a('s_cbranch_scc1 L_sC')
        lab('L_sback')
        a('s_sub_u32 s45, s45, 1')
        a('s_max_i32 s45, s45, 1')
        a('s_cmp_lt_u32 s47, 0x200000')
        a('s_cbranch_scc1 L_sloop')
        self.stamp(84)
        if opt['stamps']:
            a('s_memtime s[92:93]')
        AC = 14
        a('s_waitcnt lgkmcnt(0)')
        a('v_mov_b32 v31, 0')
        a('v_mov_b32 v32, 1')
        for i in range(4):
            a(f'v_permlane32_swap_b32 v{AC+i}, v{AC+4+i}')
        for i in range(4):
            a(f'v_add_f32 v{AC+i}, v{AC+i}, v{AC+4+i}')
        a(f'ds_write_b128 v46, v[{AC}:{AC+3}] offset:{L_OW}')
        a(f'ds_write_b64 v45, v[40:41] offset:{L_HDR}')
        a('s_mov_b64 exec, 1')
        a(f'ds_add_rtn_u32 v33, v31, v32 offset:{L_CNT}')
        a('s_mov_b64 exec, -1')
        H, D = 236, 212
        a(f'ds_read_b128 v[{H}:{H+3}], v31 offset:{L_HDR}')
        a(f'ds_read_b128 v[{H+4}:{H+7}], v31 offset:{L_HDR+16}')
        for w in range(4):
            for e in range(3):
                a(f'ds_read_b64 v[{D+6*w+2*e}:{D+6*w+2*e+1}], v249 offset:{L_OW+1024*w+8*e}')
        a('s_waitcnt lgkmcnt(14)')
        a('v_readfirstlane_b32 s7, v33')
        a('s_nop 0')
        a('s_cmp_lg_u32 s7, 3')
        a('s_cbranch_scc1 L_sexit' if opt['stamps'] else 's_cbranch_scc1 L_exit')
        a('s_waitcnt lgkmcnt(12)')
        a(f'v_max3_f32 v30, v{H}, v{H+2}, v{H+4}')
        a(f'v_max_f32 v30, v30, v{H+6}')
        for w in range(4):
            a(f'v_sub_f32 v{H+2*w}, v{H+2*w}, v30')
        for w in range(4):
            a(f'v_exp_f32 v{H+2*w}, v{H+2*w}')
        a('s_nop 0')
        a(f'v_mul_f32 v31, v{H}, v{H+1}')
        for w in range(1, 4):
            a(f'v_fmac_f32 v31, v{H+2*w}, v{H+2*w+1}')
        a('v_rcp_f32 v32, v31')
        a('v_log_f32 v33, v31')
        a('s_waitcnt lgkmcnt(0)')
        for e in range(0, 6, 2):
            a(f'v_pk_mul_f32 v[{22+e}:{23+e}], v[{D+e}:{D+e+1}], v[{H}:{H+1}] op_sel_hi:[1,0]')
        for w in range(1, 4):
            for e in range(0, 6, 2):
                a(f'v_pk_fma_f32 v[{22+e}:{23+e}], v[{D+6*w+e}:{D+6*w+e+1}], v[{H+2*w}:{H+2*w+1}], v[{22+e}:{23+e}] op_sel_hi:[1,0,1]')
        a('v_add_f32 v33, v33, v30')
        for e in range(0, 6, 2):
            a(f'v_pk_mul_f32 v[{22+e}:{23+e}], v[{22+e}:{23+e}], v[32:33] op_sel_hi:[1,0]')
        a('v_cvt_pk_bf16_f32 v44, v22, v23')
        a('v_cvt_pk_bf16_f32 v45, v24, v25')
        a('v_cvt_pk_bf16_f32 v46, v26, v27')
        a('v_cndmask_b32 v44, 0, v44, s[64:65]')
        a('v_cndmask_b32 v45, 0, v45, s[60:61]')
        a('v_cndmask_b32 v46, 0, v46, s[60:61]')
        a('v_cndmask_b32 v45, v45, v33, s[58:59]')
        a('s_mov_b32 exec_hi, 0xffff')
        a('global_store_dwordx4 v248, v[44:47], s[32:33] sc1')
        if opt['after']:
            a('v_mov_b32 v30, 0')
            a('v_mov_b32 v31, 5')
            a(f'ds_write_b32 v30, v31 offset:{L_CNT}')
        self.stamp(86)
        if opt['stamps']:
            self.flush_stamps([(3, 86)])
            lab('L_sexit')
            a('s_mov_b64 exec, 1')
            a('s_lshl_b32 s7, s2, 8')
            a(f's_add_u32 s7, s7, {STAMP}')
            a('s_lshl3_add_u32 s7, s3, s7')
            a('v_mov_b32 v252, s7')
            for slot, sr in ((22, 84), (26, 94)):
                a(f'v_mov_b32 v250, s{sr}')
                a(f'v_mov_b32 v251, s{sr+1}')
                a(f'global_store_dwordx2 v252, v[250:251], s[32:33] offset:{8*slot}')
                a('s_nop 1')
            a('s_cmp_lg_u32 s3, 0')
            a('s_cbranch_scc1 L_exit')
            a('v_mov_b32 v250, s96')
            a('v_mov_b32 v251, s97')
            a(f'global_store_dwordx2 v252, v[250:251], s[32:33] offset:{8*30}')
            a('s_cmp_lg_u32 s3, 0')
            a('s_cbranch_scc1 L_exit')
            a('s_getreg_b32 s88, hwreg(HW_REG_XCC_ID)')
            a('s_and_b32 s88, s88, 15')
            a('s_mov_b32 s89, 0')
            a('s_sub_u32 s90, s92, s90')
            a('s_mov_b32 s91, 0')
            self.flush_stamps([(0, 98), (1, 80), (2, 82), (8, 84), (6, 88), (7, 90)])
        a('s_endpgm')
        if NST < 16:
            lab('L_tkretry')
            a(f's_mov_b32 s48, {SPIN}')
            lab('L_tkr2')
            a('s_sleep 8')
            a('s_mov_b32 s50, 1')
            a('s_mov_b32 s51, 0')
            a('s_atomic_add_x2 s[50:51], s[52:53], 0x0 glc')
            a('s_sub_u32 s48, s48, 1')
            a('s_cbranch_scc1 L_exit')
            a('s_waitcnt lgkmcnt(0)')
            a('s_cmp_lg_u32 s51, s6')
            a('s_cbranch_scc1 L_tkr2')
            a('s_branch L_tkok')
        lab('L_snw')
        self.tag_slow('L_snw2', 'L_snok', 98, 48, 49, 50, 30, 31)
        lab('L_sB')
        self.chunk(RB, False, False)
        a('s_branch L_sback')
        if setC:
            lab('L_sC')
            self.chunk(RC, False, False)
            a('s_branch L_sback')

    W1, B1, W2P, C1P, ET, EA = 64, 92, 120, 134, 136, 152

    def eval_sub(self):
        a = self.a
        W1, B1, W2P, C1P, ET, EA = self.W1, self.B1, self.W2P, self.C1P, self.ET, self.EA
        self.lab('L_eval')
        a(f'v_mov_b32 v{EA}, 0')
        for base in range(0, 14, 2):
            prs = [(base, ET), (base + 1, ET + 6)]
            for p, t in prs:
                a(f'v_pk_mul_f32 v[{t}:{t+1}], v[{W1+2*p}:{W1+2*p+1}], s[70:71]')
            for p, t in prs:
                self.bf16r(t, t)
                self.bf16r(t + 1, t + 1)
            for p, t in prs:
                a(f'v_pk_add_f32 v[{t}:{t+1}], v[{t}:{t+1}], v[{B1+2*p}:{B1+2*p+1}]')
            for p, t in prs:
                self.bf16r(t, t)
                self.bf16r(t + 1, t + 1)
            for p, t in prs:
                a(f'v_pk_mul_f32 v[{t+2}:{t+3}], v[{t}:{t+1}], v[{t}:{t+1}]')
            for p, t in prs:
                a(f'v_pk_fma_f32 v[{t+2}:{t+3}], v[{t+2}:{t+3}], s[72:73], v[{C1P}:{C1P+1}]')
            for p, t in prs:
                a(f'v_pk_mul_f32 v[{t+2}:{t+3}], v[{t+2}:{t+3}], v[{t}:{t+1}]')
            for p, t in prs:
                a(f'v_exp_f32 v{t+2}, v{t+2}')
                a(f'v_exp_f32 v{t+3}, v{t+3}')
            a('s_nop 0')
            for p, t in prs:
                a(f'v_add_f32 v{t+2}, 1.0, v{t+2}')
                a(f'v_add_f32 v{t+3}, 1.0, v{t+3}')
            for p, t in prs:
                a(f'v_rcp_f32 v{t+2}, v{t+2}')
                a(f'v_rcp_f32 v{t+3}, v{t+3}')
            a('s_nop 0')
            for p, t in prs:
                a(f'v_pk_mul_f32 v[{t}:{t+1}], v[{t}:{t+1}], v[{t+2}:{t+3}]')
            for p, t in prs:
                a(f'v_cvt_pk_bf16_f32 v{t+4}, v{t}, v{t+1}')
            for p, t in prs:
                a(f'v_dot2c_f32_bf16 v{EA}, v{t+4}, v{W2P+p}')
        self.nop(2)
        self.ladder64([EA], [ET])
        self.bf16r(EA, EA)
        a(f'v_add_f32 v{EA}, s74, v{EA}')
        a(f'v_cvt_pk_bf16_f32 v153, v{EA}, 0')
        a('s_setpc_b64 s[76:77]')

    def producer(self):
        a, lab = self.a, self.lab
        opt = self.opt
        a('v_lshrrev_b32 v2, 4, v1')
        a('v_and_b32 v3, 15, v1')
        a('v_mul_u32_u24 v4, 896, v2')
        a('v_lshl_add_u32 v4, v3, 4, v4')
        a('v_cmp_gt_u32 s[60:61], 14, v3')
        a('v_bfrev_b32 v7, 1')
        a('v_lshrrev_b32 v5, 3, v1')
        a('v_and_b32 v6, 7, v1')
        a('v_cndmask_b32 v4, v7, v4, s[60:61]')
        a(f's_mov_b32 s7, {14*8192}')
        a('v_mul_lo_u32 v56, s7, v5')
        a('v_lshl_add_u32 v56, v6, 4, v56')
        for r in range(4):
            a(f's_add_u32 s{40+r}, s34, {r}')
            a(f's_and_b32 s{40+r}, s{40+r}, 3')
            a(f's_mul_i32 s{40+r}, s{40+r}, 224')
        a(f's_mul_i32 s48, s34, {112*8192}')
        a('s_lshl_b32 s49, s4, 7')
        a('s_add_u32 s48, s48, s49')
        a('s_mov_b32 s38, 3584')
        a('s_mov_b32 s39, 0x20000')
        a('s_mov_b32 s46, 3670016')
        a('s_mov_b32 s47, 0x20000')
        a('s_waitcnt lgkmcnt(0)')
        a('s_mov_b32 s35, s98')
        a('s_mov_b32 s36, s8')
        a('s_mov_b32 s37, s9')
        a('s_mov_b32 s44, s14')
        a('s_mov_b32 s45, s15')
        for r in range(4):
            a(f'buffer_load_dwordx4 v[{8+4*r}:{11+4*r}], v4, s[36:39], s{40+r} offen')
        WR = 100
        for it in range(14):
            a(f'buffer_load_dwordx4 v[{WR+4*it}:{WR+4*it+3}], v56, s[44:47], s48 offen {opt["wqf"]}')
            if it < 13:
                a('s_add_u32 s48, s48, 8192')
        if opt['pdelay'] and opt['pbar'] < 0:
            a('s_barrier')
        a(f's_mov_b32 s62, {f2u(1.0/448):#x}')
        a(f's_mov_b32 s63, {f2u(1e-5):#x}')
        a('s_mov_b32 s64, 0x05040100')
        a('s_mov_b32 s65, 0x07060302')
        a('s_lshl_b32 s18, s34, 10')
        a('v_lshl_add_u32 v57, v1, 4, s18')
        a('v_mul_u32_u24 v58, 28, v5')
        a('v_add_u32 v58, s18, v58')
        a('s_waitcnt vmcnt(14)')
        self.vstamp(228)
        XF = 24
        for i in range(16):
            self.unpack(XF + 2 * i, XF + 2 * i + 1, 8 + i)
        PV, S1, S2, DT = 76, 78, 80, 82
        a('s_nop 0')
        a(f'v_mov_b32_dpp v{PV}, v{XF} row_newbcast:0 row_mask:0xf bank_mask:0xf')
        for i in range(16):
            d = DT + 2 * (i & 1)
            a(f'v_pk_add_f32 v[{d}:{d+1}], v[{XF+2*i}:{XF+2*i+1}], v[{PV}:{PV+1}] op_sel_hi:[1,0] neg_lo:[0,1] neg_hi:[0,1]')
            if i == 0:
                a(f'v_pk_mul_f32 v[{S2}:{S2+1}], v[{d}:{d+1}], v[{d}:{d+1}]')
                a(f'v_mov_b32 v{S1}, v{d}')
                a(f'v_mov_b32 v{S1+1}, v{d+1}')
            else:
                a(f'v_pk_fma_f32 v[{S2}:{S2+1}], v[{d}:{d+1}], v[{d}:{d+1}], v[{S2}:{S2+1}]')
                a(f'v_pk_add_f32 v[{S1}:{S1+1}], v[{S1}:{S1+1}], v[{d}:{d+1}]')
        a(f'v_add_f32 v{S1}, v{S1}, v{S1+1}')
        a(f'v_add_f32 v{S2}, v{S2}, v{S2+1}')
        a(f'v_cndmask_b32 v{S1}, 0, v{S1}, s[60:61]')
        a(f'v_cndmask_b32 v{S2}, 0, v{S2}, s[60:61]')
        for ror in (8, 4, 2, 1):
            a('s_nop 0')
            a(f'v_add_f32_dpp v{S1}, v{S1}, v{S1} row_ror:{ror} row_mask:0xf bank_mask:0xf')
            a(f'v_add_f32_dpp v{S2}, v{S2}, v{S2} row_ror:{ror} row_mask:0xf bank_mask:0xf')
        MO, RO = 86, 88
        self.ln_stats(S1, S2, f'v{PV}', 84, 85, 62, 63, MO, RO)
        for i in range(4):
            a(f'v_pk_add_f32 v[{XF+2*i}:{XF+2*i+1}], v[{XF+2*i}:{XF+2*i+1}], v[{MO}:{MO+1}] op_sel_hi:[1,0] neg_lo:[0,1] neg_hi:[0,1]')
        for i in range(8):
            self.bf16r(XF + i, XF + i)
        for i in range(4):
            a(f'v_pk_mul_f32 v[{XF+2*i}:{XF+2*i+1}], v[{XF+2*i}:{XF+2*i+1}], v[{RO}:{RO+1}] op_sel_hi:[1,0]')
        for i in range(4):
            a(f'v_cvt_pk_bf16_f32 v{8+i}, v{XF+2*i}, v{XF+2*i+1}')
        a(f'ds_write_b128 v57, v[8:11] offset:{L_XN}')
        a(f'v_add_u32 v58, {L_XN}, v58')
        a('s_waitcnt lgkmcnt(0)')
        XN = 8
        for b in range(4):
            for p in range(0, 6, 2):
                a(f'ds_read2_b32 v[{XN+8*b+p}:{XN+8*b+p+1}], v58 offset0:{64*b+p} offset1:{64*b+p+1}')
            a(f'ds_read_b32 v{XN+8*b+6}, v58 offset:{256*b+24}')
            if b == 2:
                a('s_waitcnt lgkmcnt(8)')
        a('s_waitcnt lgkmcnt(0)')
        a('s_load_dword s6, s[30:31], 0')
        PP, QA = 40, 60
        for p in range(7):
            a(f's_waitcnt vmcnt({12-2*p})')
            if opt['pdelay'] and opt['pbar'] == p:
                a('s_barrier')
            r0, r1 = WR + 8 * p, WR + 8 * p + 4
            for dw in range(4):
                a(f'v_perm_b32 v{PP+2*dw}, v{r1+dw}, v{r0+dw}, s64')
                a(f'v_perm_b32 v{PP+2*dw+1}, v{r1+dw}, v{r0+dw}, s65')
            for b in range(4):
                for e in range(8):
                    src2 = '0' if p == 0 else f'v{QA+8*b+e}'
                    a(f'v_dot2_f32_bf16 v{QA+8*b+e}, v{PP+e}, v{XN+8*b+p}, {src2}')
        self.vstamp(232)
        for b in range(4):
            for e in range(4):
                v = QA + 8 * b + e
                a(f'v_add_f32_dpp v{v}, v{v}, v{v} row_ror:8 row_mask:0xf bank_mask:0x3')
                a(f'v_add_f32_dpp v{v}, v{v+4}, v{v+4} row_ror:8 row_mask:0xf bank_mask:0xc')
        for b in (0, 2):
            for e in range(4):
                a(f'v_permlane16_swap_b32 v{QA+8*b+e}, v{QA+8*b+8+e}')
        for b in (0, 2):
            for e in range(4):
                a(f'v_add_f32 v{QA+8*b+e}, v{QA+8*b+e}, v{QA+8*b+8+e}')
        for e in range(4):
            a(f'v_permlane32_swap_b32 v{QA+e}, v{QA+16+e}')
        for e in range(4):
            a(f'v_add_f32 v{QA+e}, v{QA+e}, v{QA+16+e}')
        a(f'ds_write_b128 v57, v[{QA}:{QA+3}] offset:{L_QP}')
        self.vstamp(234)

    def publish_q(self):
        a, lab = self.a, self.lab
        a('v_mov_b32 v58, 0')
        a('v_lshlrev_b32 v57, 4, v1')
        a('s_lshr_b32 s18, s4, 2')
        a('s_lshl_b32 s18, s18, 12')
        a('s_and_b32 s19, s4, 3')
        a('s_lshl_b32 s19, s19, 8')
        a('s_add_u32 s18, s18, s19')
        a('v_lshrrev_b32 v8, 4, v1')
        a('v_lshlrev_b32 v8, 10, v8')
        a('v_and_b32 v9, 7, v1')
        a('v_lshl_add_u32 v8, v9, 5, v8')
        a('v_bfe_u32 v9, v1, 3, 1')
        a('v_lshl_add_u32 v8, v9, 4, v8')
        a('v_add_u32 v8, s18, v8')
        a('v_mov_b32 v34, s6')
        a('v_mov_b32 v35, s6')
        a(f's_mov_b32 s19, {SPIN}')
        lab('L_hfw')
        a(f'ds_read_b128 v[12:15], v58 offset:{L_FLG}')
        for w in range(4):
            a(f'ds_read_b128 v[{16+4*w}:{19+4*w}], v57 offset:{L_QP+1024*w}')
        a('s_sub_u32 s19, s19, 1')
        a('s_cbranch_scc1 L_exit')
        a('s_waitcnt lgkmcnt(0)')
        self.flags4(12)
        a('s_cbranch_vccz L_hfw')
        a('v_pk_add_f32 v[16:17], v[16:17], v[20:21]')
        a('v_pk_add_f32 v[18:19], v[18:19], v[22:23]')
        a('v_pk_add_f32 v[24:25], v[24:25], v[28:29]')
        a('v_pk_add_f32 v[26:27], v[26:27], v[30:31]')
        a('v_pk_add_f32 v[16:17], v[16:17], v[24:25]')
        a('v_pk_add_f32 v[18:19], v[18:19], v[26:27]')
        a('v_cvt_pk_bf16_f32 v32, v16, v17')
        a('v_cvt_pk_bf16_f32 v33, v18, v19')
        a('global_store_dwordx4 v8, v[32:35], s[32:33] sc1')

    def helper(self):
        a, lab = self.a, self.lab
        opt = self.opt
        a('s_setprio 3')
        a('s_sub_u32 s34, s3, 4')
        a('v_and_b32 v1, 63, v0')
        a('s_cmp_eq_u32 s5, 0')
        a('s_cbranch_scc1 L_hnp')
        self.producer()
        a('s_branch L_hn1')
        lab('L_hnp')
        a('s_waitcnt lgkmcnt(0)')
        a('s_mov_b32 s35, s98')
        if opt['early']:
            a('s_cmp_eq_u32 s34, 0')
            a('s_cbranch_scc1 L_he0')
            a('s_cmp_eq_u32 s34, 1')
            a('s_cbranch_scc1 L_he1')
            self.mlp_loads()
            a('s_branch L_he1')
            lab('L_he0')
            self.wparams('L_he1')
            self.stage()
            lab('L_he1')
        a(f's_sleep {opt["hs0"]}')
        a('s_load_dword s6, s[30:31], 0')
        lab('L_hn1')
        for sec in (1, 2):
            a('s_waitcnt lgkmcnt(0)')
            self.fresh(35, 18, 19)
            a('s_cbranch_scc1 L_hnok')
            a('s_sleep 4')
            a(f's_load_dword s6, s[30:31], {64*sec}')
        a('s_waitcnt lgkmcnt(0)')
        self.fresh(35, 18, 19)
        a('s_cbranch_scc1 L_hnok')
        self.tag_slow('L_hnw', 'L_hnok', 35, 18, 19, 7, 58, 59)
        lab('L_hnok')
        self.vstamp(236)
        a('s_lshl_b32 s18, s34, 2')
        a('v_mov_b32 v58, s18')
        a('v_mov_b32 v59, s6')
        a(f'ds_write_b32 v58, v59 offset:{L_FLG}')
        a('s_and_b32 s35, s4, 15')
        a('s_lshl_b32 s35, s35, 2')
        a('s_lshr_b32 s7, s4, 4')
        a('s_add_u32 s35, s35, s7')
        a('s_lshl_b32 s35, s35, 10')
        a('s_lshl_b32 s7, s34, 8')
        a('s_add_u32 s35, s35, s7')
        a('s_add_u32 s100, s32, s35')
        a('s_addc_u32 s101, s33, 0')
        a('s_cmp_lg_u32 s34, 0')
        a('s_cbranch_scc1 L_hq')
        a('v_mov_b32 v58, 0')
        a(f'ds_write_b32 v58, v58 offset:{L_CNT}')
        a('s_cmp_eq_u32 s5, 0')
        a('s_cbranch_scc1 L_hq')
        self.publish_q()
        self.vstamp(240)
        lab('L_hq')
        a(f's_mov_b32 s19, {SPIN}')
        lab('L_hqw')
        for p in range(4):
            a(f's_load_dwordx16 s[{36+16*p}:{51+16*p}], s[100:101], {64*p} glc')
        a('s_sub_u32 s19, s19, 1')
        a('s_cbranch_scc1 L_exit')
        a('s_waitcnt lgkmcnt(0)')
        tags = [36 + 16 * p + 4 * g + 2 for p in range(4) for g in range(4)]
        a(f's_xor_b32 s7, s{tags[0]}, s6')
        for t in tags[1:]:
            a(f's_xor_b32 s18, s{t}, s6')
            a('s_or_b32 s7, s7, s18')
        a('s_cbranch_scc0 L_hqok')
        a(f's_sleep {opt["qsleep"]}')
        a('s_branch L_hqw')
        lab('L_hqok')
        for p in range(4):
            for g in range(4):
                for k in range(2):
                    a(f'v_writelane_b32 v8, s{36+16*p+4*g+k}, {8*p+2*g+k}')
        a('s_lshl_b32 s18, s34, 7')
        a('v_lshl_add_u32 v9, v1, 2, s18')
        a('s_mov_b32 exec_hi, 0')
        a(f'ds_write_b32 v9, v8 offset:{L_QL}')
        a('s_mov_b64 exec, -1')
        a('s_load_dword s74, s[26:27], 0')
        a('s_lshl_b32 s18, s34, 2')
        a('v_mov_b32 v9, s18')
        a('v_mov_b32 v8, s6')
        a('s_waitcnt lgkmcnt(0)')
        a(f'ds_write_b32 v9, v8 offset:{L_FL2}')
        self.vstamp(242)
        a('s_setprio 0')
        if opt['NST'] < 16:
            self.member(18, 19)
            a('s_lshl2_add_u32 s18, s18, s34')
            a('s_cmp_lg_u32 s18, 1')
            a('s_cbranch_scc1 L_htk')
            a('s_lshl_b32 s18, s4, 8')
            a(f's_add_u32 s18, s18, {TK}')
            a('v_mov_b32 v10, s18')
            a('v_mov_b32 v8, 0')
            a('v_mov_b32 v9, s6')
            a('s_mov_b64 exec, 1')
            a('global_store_dwordx2 v10, v[8:9], s[32:33] sc1')
            a('s_mov_b64 exec, -1')
            lab('L_htk')
        a('s_cmp_lt_u32 s34, 2')
        a('s_cbranch_scc1 L_work')
        a('s_sub_u32 s18, s2, 4')
        a('s_mul_i32 s35, s18, 964')
        a('s_lshr_b32 s35, s35, 16')
        a('s_mul_i32 s19, s35, 68')
        a('s_cmp_eq_u32 s18, s19')
        a('s_cselect_b32 s35, s35, 4')
        a('s_cmp_eq_u32 s34, 3')
        a('s_cselect_b32 s35, s35, 4')
        a('s_cmp_ge_u32 s35, 4')
        a('s_cbranch_scc1 L_hw')
        a('s_lshl_b32 s18, s35, 11')
        a(f's_add_u32 s18, s18, {ACC}')
        a('v_lshl_add_u32 v4, v1, 4, s18')
        for i in range(4):
            a(f'v_mov_b32 v{8+i}, 0')
        for rp in range(opt['R']):
            a(f'v_add_u32 v{224+rp}, {8192*rp}, v4')
            a(f'global_store_dwordx4 v{224+rp}, v[8:11], s[32:33] sc1')
            a(f'global_store_dwordx4 v{224+rp}, v[8:11], s[32:33] offset:1024 sc1')
        a('s_lshl_b32 s18, s35, 2')
        a(f's_add_u32 s18, s18, {RDY}')
        a('v_mov_b32 v12, s18')
        a('v_mov_b32 v13, s6')
        a('s_waitcnt vmcnt(0)')
        a('s_mov_b64 exec, 1')
        a('global_store_dword v12, v13, s[32:33] sc1')
        a('s_mov_b64 exec, -1')
        lab('L_hw')
        W1, B1, C1P, W2P = self.W1, self.B1, self.C1P, self.W2P
        if opt['early']:
            a('s_cmp_eq_u32 s5, 0')
            a('s_cbranch_scc1 L_hw2')
        self.mlp_loads()
        lab('L_hw2')
        k2 = -2.0 * math.sqrt(2.0 / math.pi) * LOG2E
        a(f'v_mov_b32 v{C1P}, {f2u(k2):#x}')
        a(f'v_mov_b32 v{C1P+1}, {f2u(k2):#x}')
        a(f's_mov_b32 s72, {f2u(k2*0.044715):#x}')
        a('s_mov_b32 s73, s72')
        a('s_lshl_b32 s74, s74, 16')
        a('s_waitcnt vmcnt(0)')
        for i in range(14):
            self.unpack(W1 + 2 * i, W1 + 2 * i + 1, 160 + i)
            self.unpack(B1 + 2 * i, B1 + 2 * i + 1, 176 + i)
        a('s_lshl_b32 s40, s2, 2')
        a('s_lshl1_add_u32 s40, s34, s40')
        a('s_sub_u32 s40, s40, 4')
        a('s_add_u32 s50, s40, 2')
        lab('L_tb')
        a('s_mul_i32 s41, s40, 6')
        a(f's_cmp_ge_u32 s41, {NTH}')
        a(f's_mov_b32 s43, {E0 << 7}')
        a(f's_cselect_b32 s42, {0x8000 - NTH + (E0 << 7)}, s43')
        a('s_add_u32 s41, s41, s42')
        for n in range(6):
            a(f's_add_u32 s70, s41, {n}')
            a('s_lshl_b32 s70, s70, 16')
            a('s_mov_b32 s71, s70')
            a('s_call_b64 s[76:77], L_eval')
            a('s_nop 0')
            a(f'v_readfirstlane_b32 s{44+n}, v153')
        a('s_nop 0')
        for n in range(3):
            a(f's_pack_ll_b32_b16 s{44+n}, s{44+2*n}, s{45+2*n}')
        a('s_lshl_b32 s41, s40, 4')
        a(f's_add_u32 s41, s41, {TG}')
        a('v_mov_b32 v8, s44')
        a('v_mov_b32 v9, s45')
        a('v_mov_b32 v10, s46')
        a('v_mov_b32 v11, s6')
        a('v_mov_b32 v12, s41')
        a('s_mov_b64 exec, 1')
        a('global_store_dwordx4 v12, v[8:11], s[32:33] sc1')
        a('s_mov_b64 exec, -1')
        a('s_add_u32 s40, s40, 1')
        a('s_cmp_lt_u32 s40, s50')
        a('s_cbranch_scc1 L_tb')
        a('s_cmp_lt_u32 s35, 4')
        a('s_cbranch_scc1 L_cons')
        if opt['stamps']:
            a('s_cmp_lg_u32 s34, 2')
            a('s_cbranch_scc1 L_exit')
            self.stamp(24)
            self.flush_stamps([(15, 24)])
        a('s_endpgm')
        lab('L_work')
        self.worker()
        self.consumer()
        self.eval_sub()

    def wparams(self, idle):
        a = self.a
        a('s_lshr_b32 s40, s2, 3')
        self.member(41, 42)
        a('s_sub_u32 s42, s40, s41')
        a('s_and_b32 s43, s42, 7')
        a('s_cmp_eq_u32 s43, 0')
        a(f's_cbranch_scc1 {idle}')
        a('s_add_u32 s42, s42, 7')
        a('s_lshr_b32 s42, s42, 3')
        a('s_sub_u32 s40, s40, s42')
        a('s_mul_i32 s41, s40, 37')
        a('s_lshr_b32 s41, s41, 8')
        a('s_mul_i32 s42, s41, 7')
        a('s_sub_u32 s42, s40, s42')
        a('s_and_b32 s40, s2, 7')
        a('s_lshl2_add_u32 s40, s40, s41')
        a('s_mul_i32 s43, s42, 293')
        a('s_lshr_b32 s43, s43, 6')

    def stage(self):
        a = self.a
        opt = self.opt
        W = opt['swin']
        a(f's_mul_i32 s44, s40, {128*896}')
        a('s_lshl_b32 s45, s42, 7')
        a('s_add_u32 s44, s44, s45')
        a('s_add_u32 s36, s16, s44')
        a('s_addc_u32 s37, s17, 0')
        a(f's_sub_u32 s38, {128*896}, s45')
        a('s_mov_b32 s39, 0x20000')
        a('v_lshrrev_b32 v2, 3, v1')
        a('v_and_b32 v3, 7, v1')
        a(f'v_mul_u32_u24 v8, {RS}, v2')
        a('v_lshl_add_u32 v8, v3, 4, v8')
        a('v_mul_u32_u24 v2, 896, v2')
        a('v_lshl_add_u32 v2, v3, 4, v2')
        a('s_mov_b32 s44, 0')
        for it in range(16):
            if it >= W:
                a(f's_waitcnt vmcnt({W-1})')
                a(f'ds_write_b128 v8, v[{160+4*(it-W)}:{163+4*(it-W)}] offset:{L_WOS+8*RS*(it-W)}')
            a(f'buffer_load_dwordx4 v[{160+4*it}:{163+4*it}], v2, s[36:39], s44 offen {opt["wof"]}')
            a('s_add_u32 s44, s44, 7168')
        a('v_lshlrev_b32 v3, 4, v1')
        for z in range(4):
            a(f'v_mov_b32 v{224+z}, 0')
        for z in range(3):
            a(f'ds_write_b128 v3, v[224:227] offset:{L_WOS+128*RS+1024*z}')
        for it in range(16 - W, 16):
            a(f's_waitcnt vmcnt({15-it})')
            a(f'ds_write_b128 v8, v[{160+4*it}:{163+4*it}] offset:{L_WOS+8*RS*it}')

    def mlp_loads(self):
        a = self.a
        a('v_lshlrev_b32 v2, 4, v1')
        a('v_lshlrev_b32 v3, 3, v1')
        W1, B1, C1P, W2P = self.W1, self.B1, self.C1P, self.W2P
        for base, sp in ((160, 20), (176, 22), (W2P, 24)):
            for r in range(3):
                a(f'global_load_dwordx4 v[{base+4*r}:{base+4*r+3}], v2, s[{sp}:{sp+1}] offset:{1024*r}')
            a(f'global_load_dwordx2 v[{base+12}:{base+13}], v3, s[{sp}:{sp+1}] offset:3072')

    def wait_lds(self, name, off, cmp, sleep):
        a, lab = self.a, self.lab
        a('v_mov_b32 v6, 0')
        a(f's_mov_b32 s19, {SPIN}')
        lab(name)
        a(f's_sleep {sleep}')
        a(f'ds_read_b32 v7, v6 offset:{off}')
        a('s_sub_u32 s19, s19, 1')
        a('s_cbranch_scc1 L_exit')
        a('s_waitcnt lgkmcnt(0)')
        a(cmp)
        a(f's_cbranch_vccnz {name}')

    def worker(self):
        a, lab = self.a, self.lab
        opt = self.opt
        self.wparams('L_wexit' if opt['stamps'] else 'L_exit')
        a('v_lshrrev_b32 v5, 4, v1')
        a('v_and_b32 v14, 15, v1')
        BF = 64
        for i in range(72):
            a(f'v_mov_b32 v{BF+i}, 0')
        a('s_cmp_lg_u32 s34, 0')
        a('s_cbranch_scc1 L_wst')
        if opt['early']:
            a('s_cmp_eq_u32 s5, 0')
            a('s_cbranch_scc1 L_wfl')
        self.stage()
        lab('L_wfl')
        a('v_mov_b32 v6, 0')
        a('v_mov_b32 v7, s6')
        a('s_waitcnt lgkmcnt(0)')
        a(f'ds_write_b32 v6, v7 offset:{L_WOF}')
        lab('L_wst')
        self.wait_lds('L_wsw', L_WOF, 'v_cmp_ne_u32 vcc, s6, v7', 8)
        a('s_mul_i32 s44, s34, 3')
        a('s_add_u32 s43, s43, s44')
        a('s_mul_i32 s44, s43, 14')
        a('s_lshl_b32 s45, s42, 6')
        a('s_sub_u32 s44, s44, s45')
        a(f'v_mul_u32_u24 v2, {6*RS}, v5')
        a('v_cmp_gt_u32 s[46:47], 14, v14')
        for t in range(3):
            u = self.u()
            a('v_add_u32 v3, s44, v14')
            a('v_cmp_gt_u32 vcc, 64, v3')
            a('v_lshl_add_u32 v3, v3, 1, v2')
            a(f's_and_b64 s[{48+2*t}:{49+2*t}], vcc, s[46:47]')
            a(f's_mov_b64 exec, s[{48+2*t}:{49+2*t}]')
            a(f's_cbranch_execz L_wb{u}')
            for kk in range(0, 6, 2):
                for q in range(2):
                    for e in range(6):
                        a(f'ds_read_u16 v{16+6*q+e}, v3 offset:{L_WOS+24*RS*(kk+q)+RS*e}')
                a('s_waitcnt lgkmcnt(0)')
                for q in range(2):
                    for uu in range(3):
                        a(f'v_lshl_or_b32 v{BF+12*(kk+q)+4*t+uu}, v{16+6*q+2*uu+1}, 16, v{16+6*q+2*uu}')
            lab(f'L_wb{u}')
            a('s_mov_b64 exec, -1')
            a('s_add_u32 s44, s44, 14')
        a('s_lshr_b32 s44, s40, 1')
        a('s_lshl_b32 s44, s44, 14')
        a('s_and_b32 s45, s40, 1')
        a('s_mul_i32 s46, s45, 384')
        a('s_add_u32 s44, s44, s46')
        a(f's_add_u32 s44, s44, {OG}')
        a('v_lshlrev_b32 v2, 10, v14')
        a('v_lshl_add_u32 v2, v5, 4, v2')
        a('v_add_u32 v2, s44, v2')
        a(f's_and_b32 s44, s40, {opt["R"]-1}')
        a('s_lshl_b32 s44, s44, 13')
        a('s_lshl_b32 s46, s43, 6')
        a('s_add_u32 s44, s44, s46')
        a(f's_add_u32 s44, s44, {ACC}')
        a('v_lshlrev_b32 v3, 11, v5')
        a('v_lshl_add_u32 v3, v14, 2, v3')
        a('v_add_u32 v3, s44, v3')
        a('v_cmp_eq_u32 vcc, 15, v14')
        a('v_lshlrev_b32 v8, 4, v5')
        a('v_add_u32 v8, 64, v8')
        a('v_cndmask_b32 v4, 0, 1.0, vcc')
        a('v_cmp_eq_u32 s[46:47], 1, v5')
        a(f'v_mov_b32 v9, {RDY}')
        a('v_lshl_add_u32 v9, v5, 2, v9')
        a(f's_mov_b32 s19, {SPIN}')
        lab('L_wr')
        a('global_load_dword v10, v9, s[32:33] sc1')
        a('s_sub_u32 s19, s19, 1')
        a('s_cbranch_scc1 L_exit')
        a('s_waitcnt vmcnt(0)')
        a('v_cmp_ne_u32 vcc, s6, v10')
        a('s_cbranch_vccz L_wr2')
        a('s_sleep 64')
        a('s_branch L_wr')
        lab('L_wr2')
        self.stamp(24)
        self.wait_lds('L_wd', L_CNT, f'v_cmp_gt_u32 vcc, {5 if self.opt["after"] else 4}, v7', 1)
        a('s_setprio 3')
        AF = 160
        a(f's_mov_b32 s19, {SPIN}')
        lab('L_wp')
        for kk in range(6):
            a(f'global_load_dwordx4 v[{AF+4*kk}:{AF+4*kk+3}], v2, s[32:33] offset:{64*kk} sc1')
        a('s_sub_u32 s19, s19, 1')
        a('s_cbranch_scc1 L_exit')
        for kk in range(6):
            a(f's_waitcnt vmcnt({5-kk})')
            if kk == 0:
                a(f'v_xor_b32 v9, s6, v{AF+3}')
            else:
                a(f'v_bitop3_b32 v9, v{AF+4*kk+3}, s6, v9 bitop3:0xbe')
        a('v_cmp_ne_u32 vcc, 0, v9')
        a('s_and_b64 exec, exec, vcc')
        if opt['psleep']:
            a('s_cbranch_execz L_wpx')
            a(f's_sleep {opt["psleep"]}')
            a('s_branch L_wp')
            lab('L_wpx')
        else:
            a('s_cbranch_execnz L_wp')
        a('s_mov_b64 exec, -1')
        self.stamp(26)
        D0 = 204
        LS = AF + 21

        def mf(kk):
            for t in range(3):
                d = D0 + 4 * t
                c = '0' if kk == 0 else f'v[{d}:{d+3}]'
                a(f'v_mfma_f32_16x16x32_bf16 v[{d}:{d+3}], v[{AF+4*kk}:{AF+4*kk+3}], v[{BF+12*kk+4*t}:{BF+12*kk+4*t+3}], {c}')
        a(f'v_mov_b32 v10, v{LS}')
        a(f'v_cndmask_b32 v{LS}, v{LS}, 0, s[46:47]')
        mf(0)
        a('v_max_f32_dpp v11, v10, v10 quad_perm:[1,0,3,2] row_mask:0xf bank_mask:0xf')
        mf(1)
        a('v_max_f32_dpp v11, v11, v11 quad_perm:[2,3,0,1] row_mask:0xf bank_mask:0xf')
        a('v_sub_f32 v10, v10, v11')
        a('v_exp_f32 v10, v10')
        mf(2)
        a('v_add_f32_dpp v11, v10, v10 quad_perm:[1,0,3,2] row_mask:0xf bank_mask:0xf')
        mf(3)
        a('v_add_f32_dpp v11, v11, v11 quad_perm:[2,3,0,1] row_mask:0xf bank_mask:0xf')
        a('v_rcp_f32 v11, v11')
        a('s_nop 0')
        a('v_mul_f32 v10, v10, v11')
        for r in range(4):
            a(f'ds_bpermute_b32 v{16+r}, v8, v10 offset:{4*r}')
        mf(4)
        mf(5)
        a('s_cmp_eq_u64 s[52:53], 0')
        a('s_waitcnt lgkmcnt(0)')
        self.nop(4)
        for t in range(3):
            a(f'v_fma_f32 v{20+t}, v16, v{D0+4*t}, v4')
            for r in range(1, 4):
                a(f'v_fmac_f32 v{20+t}, v{16+r}, v{D0+4*t+r}')
            if t == 2:
                a('s_cbranch_scc1 L_wend')
            a(f'global_atomic_add_f32 v3, v{20+t}, s[32:33] offset:{64*t}')
        lab('L_wend')
        if opt['stamps']:
            a('s_cmp_lg_u32 s34, 0')
            a('s_cbranch_scc1 L_exit')
            self.stamp(28)
            self.flush_stamps([(11, 24), (4, 26), (5, 28)])
            lab('L_wexit')
            a('s_cmp_lg_u32 s34, 0')
            a('s_cbranch_scc1 L_exit')
            for slot, v in ((9, 240), (10, 242), (17, 228), (19, 232), (20, 234), (21, 236)):
                self.unvstamp(v, 20)
                self.flush_stamps([(slot, 20)])
        a('s_endpgm')

    def consumer(self):
        a, lab = self.a, self.lab
        lab('L_cons')
        a('s_mov_b32 s36, s8')
        a('s_mov_b32 s37, s9')
        a('s_mov_b32 s38, 3584')
        a('s_mov_b32 s39, 0x20000')
        a('s_mov_b32 s40, s28')
        a('s_mov_b32 s41, s29')
        a('s_mov_b32 s42, 3584')
        a('s_mov_b32 s43, 0x20000')
        a('s_mul_i32 s44, s35, 896')
        a('s_lshl_b32 s18, s35, 11')
        a(f's_add_u32 s18, s18, {ACC}')
        a('v_lshl_add_u32 v224, v1, 4, s18')
        for rp in range(1, self.opt['R']):
            a(f'v_add_u32 v{224+rp}, {8192*rp}, v224')
        a('v_lshrrev_b32 v6, 2, v1')
        a('v_and_b32 v3, 3, v1')
        a('v_mul_u32_u24 v2, 28, v6')
        a('v_lshl_add_u32 v2, v3, 3, v2')
        for r in range(2):
            for ep in range(2):
                a(f'buffer_load_dword v{8+2*r+ep}, v2, s[36:39], s44 offen offset:{448*r+4*ep}')
        a('s_mov_b32 s46, 0x88888888')
        a('s_mov_b32 s47, 0x88888888')
        a(f's_mov_b32 s62, {f2u(1.0/448):#x}')
        a(f's_mov_b32 s63, {f2u(1e-5):#x}')
        for r, m in ((0, 0x2210), (1, 0x0844)):
            a(f'v_lshrrev_b32 v{60+r}, v6, {m}' if False else f's_mov_b32 s48, {m}')
            a(f'v_lshrrev_b32 v{60+r}, v6, s48')
            a(f'v_and_b32 v{60+r}, 1, v{60+r}')
            a(f'v_add_u32 v{60+r}, 1, v{60+r}')
            a(f'v_mul_u32_u24 v{60+r}, {32 // self.opt["R"]}, v{60+r}')
            a(f'v_cvt_f32_u32 v{60+r}, v{60+r}')
        a('s_waitcnt vmcnt(0)')
        XF = 12
        for i in range(4):
            self.unpack(XF + 2 * i, XF + 2 * i + 1, 8 + i)
        a(f'v_lshlrev_b32 v7, 4, v1')
        a(f'v_add_u32 v62, {TG}, v7')
        a('v_mul_u32_u24 v3, 12, v1')
        a(f'v_add_u32 v3, {L_TBL}, v3')
        TF = 160
        a(f's_mov_b32 s19, {SPIN}')
        lab('L_ct')
        for it in range(16):
            if it % 4 == 0 and it:
                a('v_add_u32 v62, 4096, v62')
            a(f'global_load_dwordx4 v[{TF+4*it}:{TF+4*it+3}], v62, s[32:33] offset:{1024*(it%4)} sc1')
        a('v_subrev_u32 v62, 12288, v62')
        a('s_sub_u32 s19, s19, 1')
        a('s_cbranch_scc1 L_exit')
        a('s_waitcnt vmcnt(0)')
        a(f'v_xor_b32 v9, s6, v{TF+3}')
        for it in range(1, 16):
            a(f'v_bitop3_b32 v9, v{TF+4*it+3}, s6, v9 bitop3:0xbe')
        a('v_cmp_ne_u32 vcc, 0, v9')
        a('s_cbranch_vccz L_ct2')
        a(f's_sleep {self.opt["tsleep"]}')
        a('s_branch L_ct')
        lab('L_ct2')
        for it in range(16):
            a(f'ds_write2_b32 v3, v{TF+4*it}, v{TF+4*it+1} offset0:0 offset1:1')
            a(f'ds_write_b32 v3, v{TF+4*it+2} offset:8')
            a(f'v_add_u32 v3, {768 if it != 7 else 768 + 65536 - 2 * NTH}, v3')
        self.stamp(24)
        A, A2 = 20, 176
        Y = 168
        a(f's_mov_b32 s51, {E0 << 23:#x}')
        a(f's_mov_b32 s56, {(E0 + 24) << 23:#x}')
        for i in range(8):
            a(f'v_mov_b32 v{Y+i}, 0')
        self.wait_lds('L_cd', L_CNT, f'v_cmp_gt_u32 vcc, {5 if self.opt["after"] else 4}, v7', 1)
        a('s_setprio 3')
        a(f's_mov_b32 s19, {SPIN}')
        R = self.opt['R']
        AR = [A] + [A2 + 8 * i for i in range(R - 1)]
        lab('L_cp')
        for rp in range(R):
            a(f'global_load_dwordx4 v[{AR[rp]}:{AR[rp]+3}], v{224+rp}, s[32:33] sc1')
            a(f'global_load_dwordx4 v[{AR[rp]+4}:{AR[rp]+7}], v{224+rp}, s[32:33] offset:1024 sc1')
        a('s_sub_u32 s19, s19, 1')
        a('s_cbranch_scc1 L_exit')
        a('s_mov_b64 s[48:49], s[46:47]')
        for rp in range(R):
            a(f's_waitcnt vmcnt({2*(R-1-rp)})')
            a(f'v_cmp_eq_f32 vcc, v60, v{AR[rp]+3}')
            a(f'v_cmp_eq_f32 s[52:53], v61, v{AR[rp]+7}')
            if rp:
                for i in range(4):
                    a(f'v_pk_add_f32 v[{A+2*i}:{A+2*i+1}], v[{A+2*i}:{A+2*i+1}], v[{AR[rp]+2*i}:{AR[rp]+2*i+1}]')
            a('s_and_b64 s[48:49], s[48:49], vcc')
            a('s_and_b64 s[48:49], s[48:49], s[52:53]')
        a('s_cmp_eq_u64 s[48:49], s[46:47]')
        a('s_cbranch_scc0 L_cp')
        self.stamp(26)
        P, Hh, Dd = 28, 32, 40
        S1, S2, MO, RO = 48, 50, 54, 56
        for i in range(8):
            self.bf16r(A + i, A + i)
        for i in range(4):
            a(f'v_pk_add_f32 v[{A+2*i}:{A+2*i+1}], v[{A+2*i}:{A+2*i+1}], v[{XF+2*i}:{XF+2*i+1}]')
        for i in range(8):
            self.bf16r(Hh + i, A + i)

        def sums(src, piv):
            if piv:
                a(f'v_readfirstlane_b32 s50, v{src}')
                a('s_nop 1')
                for i in range(4):
                    a(f'v_pk_add_f32 v[{Dd+2*i}:{Dd+2*i+1}], v[{src+2*i}:{src+2*i+1}], s[50:51] op_sel_hi:[1,0] neg_lo:[0,1] neg_hi:[0,1]')
                s = Dd
            else:
                s = src
            for i in (2, 3, 6, 7):
                a(f'v_cndmask_b32 v{Dd+i}, v{s+i}, 0, s[46:47]')
            idx = [s, s + 4, Dd + 2, Dd + 6]
            pr = lambda r: f'v[{r}:{r+1}]'
            a(f'v_pk_add_f32 {pr(S1)}, {pr(idx[0])}, {pr(idx[1])}')
            a(f'v_pk_mul_f32 {pr(S2)}, {pr(idx[0])}, {pr(idx[0])}')
            a(f'v_pk_add_f32 {pr(S1)}, {pr(S1)}, {pr(idx[2])}')
            a(f'v_pk_fma_f32 {pr(S2)}, {pr(idx[1])}, {pr(idx[1])}, {pr(S2)}')
            a(f'v_pk_add_f32 {pr(S1)}, {pr(S1)}, {pr(idx[3])}')
            a(f'v_pk_fma_f32 {pr(S2)}, {pr(idx[2])}, {pr(idx[2])}, {pr(S2)}')
            a(f'v_add_f32 v{S1}, v{S1}, v{S1+1}')
            a(f'v_pk_fma_f32 {pr(S2)}, {pr(idx[3])}, {pr(idx[3])}, {pr(S2)}')
            a(f'v_add_f32 v{S2}, v{S2}, v{S2+1}')
            self.ladder64([S1, S2], [S1 + 1, S2 + 1])
            self.ln_stats(S1, S2, 's50' if piv else None, 58, 59, 62, 63, MO, RO)

        def norm(src, dst):
            for i in range(4):
                a(f'v_pk_add_f32 v[{dst+2*i}:{dst+2*i+1}], v[{src+2*i}:{src+2*i+1}], v[{MO}:{MO+1}] op_sel_hi:[1,0] neg_lo:[0,1] neg_hi:[0,1]')
            for i in range(8):
                self.bf16r(dst + i, dst + i)
            for i in range(4):
                a(f'v_pk_mul_f32 v[{dst+2*i}:{dst+2*i+1}], v[{dst+2*i}:{dst+2*i+1}], v[{RO}:{RO+1}] op_sel_hi:[1,0]')
            for i in range(8):
                self.bf16r(dst + i, dst + i)

        sums(Hh, True)
        norm(Hh, A)
        sums(A, False)
        norm(A, A)
        for i in range(8):
            a(f'v_lshrrev_b32 v{Dd+i}, 15, v{A+i}')
        for i in range(8):
            a(f'ds_read_u16_d16_hi v{Y+i}, v{Dd+i}')
        for i in (2, 3, 6, 7):
            a(f'v_cndmask_b32 v{A+i}, v{A+i}, 1.0, s[46:47]')
        a(f'v_min3_f32 v48, |v{A}|, |v{A+1}|, |v{A+2}|')
        a(f'v_max3_f32 v49, |v{A}|, |v{A+1}|, |v{A+2}|')
        a(f'v_min3_f32 v48, v48, |v{A+3}|, |v{A+4}|')
        a(f'v_max3_f32 v49, v49, |v{A+3}|, |v{A+4}|')
        a(f'v_min3_f32 v48, v48, |v{A+5}|, |v{A+6}|')
        a(f'v_max3_f32 v49, v49, |v{A+5}|, |v{A+6}|')
        a(f'v_min_f32 v48, v48, |v{A+7}|')
        a(f'v_max_f32 v49, v49, |v{A+7}|')
        a(f'v_mul_f32 v50, v{RO}, v{MO}')
        a('v_cmp_gt_f32 vcc, s51, v48')
        a('v_cmp_le_f32 s[52:53], s56, v49')
        a('v_cmp_u_f32 s[54:55], v50, v50')
        a('s_or_b64 vcc, vcc, s[52:53]')
        a('s_or_b64 vcc, vcc, s[54:55]')
        a('s_waitcnt lgkmcnt(0)')
        a('s_cbranch_vccnz L_cslow')
        lab('L_cfin')
        for i in range(4):
            a(f'v_pk_add_f32 v[{Y+2*i}:{Y+2*i+1}], v[{Y+2*i}:{Y+2*i+1}], v[{Hh+2*i}:{Hh+2*i+1}]')
        for i in range(4):
            a(f'v_cvt_pk_bf16_f32 v{P+i}, v{Y+2*i}, v{Y+2*i+1}')
        of = self.opt['outf']
        a(f'buffer_store_dword v{P}, v2, s[40:43], s44 offen {of}')
        a(f'buffer_store_dword v{P+2}, v2, s[40:43], s44 offen offset:448 {of}')
        a('s_andn2_b64 exec, exec, s[46:47]')
        a(f'buffer_store_dword v{P+1}, v2, s[40:43], s44 offen offset:4 {of}')
        a(f'buffer_store_dword v{P+3}, v2, s[40:43], s44 offen offset:452 {of}')
        self.stamp(28)
        if self.opt['fix']:
            a('s_and_b32 s96, s6, 0x3fff')
            a('s_lshr_b32 s97, s6, 2')
            a('s_and_b32 s97, s97, 0x0fffc000')
            a('s_or_b32 s96, s96, s97')
            lab('L_fix')
            a('s_memrealtime s[94:95]')
            a('s_waitcnt lgkmcnt(0)')
            a('s_sub_u32 s94, s94, s96')
            a('s_and_b32 s94, s94, 0x0fffffff')
            a(f's_cmp_lt_u32 s94, {self.opt["fix"]}')
            a('s_cbranch_scc1 L_fix')
        self.flush_stamps([(12, 24), (13, 26), (14, 28)])
        a('s_endpgm')
        lab('L_cslow')
        a(f's_mov_b32 s57, {E0 << 23:#x}')
        a(f's_mov_b32 s58, {24 << 23:#x}')
        for i in range(8):
            u = self.u()
            a(f'v_and_b32 v48, 0x7fffffff, v{A+i}')
            a('v_subrev_u32 v48, s57, v48')
            a('v_cmp_le_u32 s[52:53], s58, v48')
            lab(f'L_cs{u}')
            a('s_cmp_eq_u64 s[52:53], 0')
            a(f's_cbranch_scc1 L_ce{u}')
            a('s_ff1_i32_b64 s54, s[52:53]')
            a('s_bitset0_b64 s[52:53], s54')
            a(f'v_readlane_b32 s70, v{A+i}, s54')
            a('s_nop 0')
            a('s_mov_b32 s71, s70')
            a('s_nop 0')
            a('s_call_b64 s[76:77], L_eval')
            a('s_nop 0')
            a('v_readfirstlane_b32 s55, v153')
            a('s_mov_b32 m0, s54')
            a('s_lshl_b32 s55, s55, 16')
            a('s_nop 3')
            a(f'v_writelane_b32 v{Y+i}, s55, m0')
            a(f's_branch L_cs{u}')
            lab(f'L_ce{u}')
        a('s_branch L_cfin')

    def build(self):
        a, lab = self.a, self.lab
        o = self.o
        o.append(HEADER.rstrip('\n'))
        o.append(f'; @launch grid=(256,1,1) block=(512,1,1) lds={L_END}')
        o.append(DOC.rstrip('\n'))
        o.append('.amdgcn_target "amdgcn-amd-amdhsa--gfx950"')
        o.append('.text')
        o.append(f'.globl {KN}')
        o.append('.p2align 8')
        o.append(f'.type {KN},@function')
        lab(KN)
        a('s_cmp_ge_u32 s2, 256')
        a('s_cbranch_scc1 L_exit')
        a('s_memrealtime s[98:99]')
        a('s_load_dwordx16 s[8:23], s[0:1], 0')
        a('s_load_dwordx8 s[24:31], s[0:1], 64')
        a('s_load_dwordx2 s[32:33], s[0:1], 96')
        a('v_lshrrev_b32 v1, 6, v0')
        a('s_lshr_b32 s7, s2, 3')
        a('v_readfirstlane_b32 s3, v1')
        if self.opt['gmap'] == 0:
            a('s_lshr_b32 s4, s2, 2')
        elif self.opt['gmap'] == 1:
            a('s_bfe_u32 s4, s2, 0x10001')
            a('s_lshl1_add_u32 s4, s7, s4')
        else:
            a('s_lshr_b32 s4, s2, 1')
            a('s_xor_b32 s4, s4, s2')
            a('s_and_b32 s4, s4, 1')
            a('s_lshl1_add_u32 s4, s7, s4')
        self.member(5, 6)
        a('s_xor_b32 s7, s7, s5')
        a('s_and_b32 s7, s7, 3')
        a('s_cmp_eq_u32 s7, 0')
        a('s_cselect_b32 s5, 1, 0')
        a('s_cmp_ge_u32 s3, 4')
        a('s_cbranch_scc1 L_helper')
        self.streamer()
        lab('L_helper')
        self.helper()
        lab('L_exit')
        a('s_endpgm')
        o.append('.section .rodata,"a"')
        o.append('.p2align 6')
        o.append(f'.amdhsa_kernel {KN}')
        o.append('  .amdhsa_next_free_vgpr 256')
        o.append('  .amdhsa_next_free_sgpr 102')
        o.append('  .amdhsa_accum_offset 256')
        o.append('  .amdhsa_group_segment_fixed_size 0')
        o.append('  .amdhsa_kernarg_size 104')
        o.append('  .amdhsa_user_sgpr_count 2')
        o.append('  .amdhsa_user_sgpr_kernarg_segment_ptr 1')
        o.append('  .amdhsa_system_sgpr_workgroup_id_x 1')
        o.append('.end_amdhsa_kernel')
        return '\n'.join(o) + '\n'


if __name__ == '__main__':
    out = sys.argv[1]
    opt = eval(sys.argv[2]) if len(sys.argv) > 2 else {}
    open(out, 'w').write(G(**opt).build())
```

```python
import sys, struct, math

KN = 'sequential_preLN__mha_block_cached__mixer_token_mlp__decode_kernel'
HEADER = open('sequential_preLN__mha_block_cached__mixer_token_mlp__decode.s.ref').read().split('; Override launch')[0]


def f2u(x):
    return struct.unpack('<I', struct.pack('<f', x))[0]


QG, OG, TG, TK, RDY, ACC = 0x0, 0x10000, 0x50000, 0x54000, 0x58000, 0x60000
STAMP = 256 << 20
E0 = 108
NTH = 3072
L_FLG, L_CNT, L_WOF, L_HDR, L_QL, L_FL2 = 0, 16, 20, 32, 64, 576
L_XN, L_OW, L_QP = 2048, 6144, 10752
L_TBL = 2 * (E0 << 7)
L_WOS = 34048
L_END = L_TBL + 65536 + 2 * NTH
RS = 144
LOG2E = 1.4426950408889634
SPIN = 1 << 18
FRESH = 1500
GRACE = 200

DOC = '''; Single fused launch, 256 workgroups x 8 waves (one workgroup per CU).
'''


class G:
    def __init__(self, **opt):
        self.o = []
        self.opt = dict(stamps=False, wqf='nt', wof='nt', kvf='nt', vf=None, pace=12, LA=12, setC=True, NST=13, TP=8,
                        psleep=3, HALF=False, outf='', tsleep=127, fix=0, exp='', pdelay=True, hs0=16, qsleep=2, R=2, pbar=3, early=False, swin=16, ILV=True, NF=0, gmap=1, after=True, ptrs=False, probe=0, P16=False)
        self.opt.update(opt)
        self.uid = 0

    def a(self, s):
        self.o.append('  ' + s)

    def lab(self, s):
        self.o.append(s + ':')

    def u(self):
        self.uid += 1
        return self.uid

    def nop(self, n):
        if n > 0:
            self.a(f's_nop {n-1}')

    def stamp(self, sreg):
        if self.opt['stamps']:
            self.a(f's_memrealtime s[{sreg}:{sreg+1}]')

    def vstamp(self, v):
        if self.opt['stamps']:
            self.a('s_memrealtime s[18:19]')
            self.a('s_waitcnt lgkmcnt(0)')
            self.a(f'v_mov_b32 v{v}, s18')
            self.a(f'v_mov_b32 v{v+1}, s19')

    def unvstamp(self, v, sreg):
        if self.opt['stamps']:
            self.a(f'v_readfirstlane_b32 s{sreg}, v{v}')
            self.a(f'v_readfirstlane_b32 s{sreg+1}, v{v+1}')
            self.a('s_nop 1')

    def flush_stamps(self, pairs, vt=250):
        if not self.opt['stamps']:
            return
        a = self.a
        a('s_waitcnt lgkmcnt(0)')
        a('s_mov_b64 exec, 1')
        a('s_lshl_b32 s7, s2, 8')
        a(f's_add_u32 s7, s7, {STAMP}')
        a(f'v_mov_b32 v{vt+2}, s7')
        for slot, sreg in pairs:
            a(f'v_mov_b32 v{vt}, s{sreg}')
            a(f'v_mov_b32 v{vt+1}, s{sreg+1}')
            a(f'global_store_dwordx2 v{vt+2}, v[{vt}:{vt+1}], s[32:33] offset:{8*slot}')
            a('s_nop 1')

    def fresh(self, ts, t0, t1):
        a = self.a
        a(f's_and_b32 s{t0}, s6, 0x3fff')
        a(f's_lshr_b32 s{t1}, s6, 2')
        a(f's_and_b32 s{t1}, s{t1}, 0x0fffc000')
        a(f's_or_b32 s{t0}, s{t0}, s{t1}')
        a(f's_sub_u32 s{t0}, s{t0}, s{ts}')
        a(f's_add_u32 s{t0}, s{t0}, {FRESH}')
        a(f's_bfe_u32 s{t0}, s{t0}, 0x1001b')
        a(f's_bfe_u32 s{t1}, s6, 0x1000f')
        a(f's_cmp_gt_u32 s{t1}, s{t0}')

    def tag_slow(self, name, ok, ts, t0, t1, cnt, va, vb):
        a, lab = self.a, self.lab
        a(f's_mov_b32 s{cnt}, {SPIN}')
        a(f'v_mov_b32 v{va}, 0')
        lab(name)
        a(f'global_load_dword v{vb}, v{va}, s[30:31] sc1')
        a(f's_sub_u32 s{cnt}, s{cnt}, 1')
        a('s_cbranch_scc1 L_exit')
        a('s_waitcnt vmcnt(0)')
        a(f'v_readfirstlane_b32 s6, v{vb}')
        a('s_nop 0')
        self.fresh(ts, t0, t1)
        a(f's_cbranch_scc1 {ok}')
        a(f's_cmp_gt_u32 s{cnt}, {SPIN - GRACE}')
        a(f's_cbranch_scc1 {name}')
        a('s_cmp_eq_u32 s6, 0')
        a(f's_cbranch_scc1 {name}')
        a(f's_branch {ok}')

    def flags4(self, v):
        a = self.a
        a(f'v_xor_b32 v{v}, s6, v{v}')
        for i in (1, 2, 3):
            a(f'v_bitop3_b32 v{v}, v{v+i}, s6, v{v} bitop3:0xbe')
        a(f'v_cmp_eq_u32 vcc, 0, v{v}')

    def bf16r(self, dst, src):
        self.a(f'v_cvt_pk_bf16_f32 v{dst}, 0, v{src}')

    def unpack(self, lo, hi, p):
        self.a(f'v_lshlrev_b32 v{lo}, 16, v{p}')
        self.a(f'v_and_b32 v{hi}, 0xffff0000, v{p}')

    def ladder64(self, regs, tmps, op='v_add_f32'):
        a = self.a
        n = len(regs)
        for ror in (8, 4, 2, 1):
            self.nop(max(0, 2 - (n - 1)))
            for r in regs:
                a(f'{op}_dpp v{r}, v{r}, v{r} row_ror:{ror} row_mask:0xf bank_mask:0xf')
        for sw in ('v_permlane16_swap_b32', 'v_permlane32_swap_b32'):
            for r, t in zip(regs, tmps):
                a(f'v_mov_b32 v{t}, v{r}')
            self.nop(max(0, 2 - (n - 1)))
            for r, t in zip(regs, tmps):
                a(f'{sw} v{r}, v{t}')
            for r, t in zip(regs, tmps):
                a(f'{op} v{r}, v{r}, v{t}')

    def ln_stats(self, s1, s2, piv, t0, t1, sinv, seps, mout, rout):
        a = self.a
        a(f'v_mul_f32 v{s1}, s{sinv}, v{s1}')
        a(f'v_mul_f32 v{t0}, v{s1}, v{s1}')
        a(f'v_fma_f32 v{s2}, v{s2}, s{sinv}, -v{t0}')
        if piv is not None:
            a(f'v_add_f32 v{s1}, {piv}, v{s1}')
        a(f'v_max_f32 v{s2}, 0, v{s2}')
        self.bf16r(t1, s2)
        self.bf16r(mout, s1)
        a(f'v_add_f32 v{t1}, s{seps}, v{t1}')
        self.bf16r(t1, t1)
        a(f'v_sqrt_f32 v{t1}, v{t1}')
        a('s_nop 0')
        self.bf16r(t1, t1)
        a(f'v_rcp_f32 v{rout}, v{t1}')
        a('s_nop 0')

    def member(self, dst, tmp):
        a = self.a
        if self.opt['gmap'] == 0:
            a(f's_and_b32 s{dst}, s2, 3')
        elif self.opt['gmap'] == 1:
            a(f's_bfe_u32 s{tmp}, s2, 0x10002')
            a(f's_and_b32 s{dst}, s2, 1')
            a(f's_lshl1_add_u32 s{dst}, s{tmp}, s{dst}')
        else:
            a(f's_bfe_u32 s{tmp}, s2, 0x10002')
            a(f's_and_b32 s{dst}, s2, 1')
            a(f's_lshl1_add_u32 s{dst}, s{tmp}, s{dst}')

    def cstep(self):
        return 0x20000 if self.opt['ILV'] else 0x8000

    def ld(self, R, n, sreg):
        j = n & 7
        srd = 's[36:39]' if n < 8 else 's[40:43]'
        fl = self.opt['kvf'] if (n < 8 or self.opt['vf'] is None) else self.opt['vf']
        self.a(f'buffer_load_dwordx4 v[{R+4*n}:{R+4*n+3}], v{2+j}, {srd}, s{sreg} offen {fl}')

    def chunk(self, R, issue, wait):
        a = self.a
        LA, NST, TP, HALF = self.opt['LA'], self.opt['NST'], self.opt['TP'], self.opt['HALF']
        pool0 = 4 * NST * 0x8000
        npool = (16 - NST) * 16 * (2 if HALF else 1) - (self.opt['NF'] if HALF else 0)

        def hooks(n):
            if NST < 16 and n == (16 - LA - TP) % 16:
                u = self.u()
                wrap = 16 - LA - TP < 0
                a(f's_cmp_gt_u32 s45, {2 if wrap else 1}')
                a(f's_cbranch_scc1 L_nt{u}')
                if wrap:
                    a('s_cmp_ge_u32 s44, 0x200000')
                    a(f's_cbranch_scc1 L_nt{u}')
                a('s_mov_b32 s50, 1')
                a('s_mov_b32 s51, 0')
                a('s_atomic_add_x2 s[50:51], s[52:53], 0x0 glc')
                self.lab(f'L_nt{u}')
            if n == 16 - LA:
                u = self.u()
                a(f's_add_u32 s44, s47, {self.cstep():#x}')
                a('s_cmp_gt_u32 s45, 1')
                a(f's_cbranch_scc1 L_st{u}')
                if NST < 16:
                    a('s_waitcnt lgkmcnt(0)')
                    a('s_cmp_lg_u32 s51, s6')
                    a('s_cbranch_scc1 L_tkretry')
                    self.lab('L_tkok')
                    NF = self.opt['NF']
                    if HALF and NF:
                        a('s_lshr_b32 s48, s50, 2')
                        a(f's_min_u32 s49, s48, {NF // 4}')
                        a('s_add_u32 s48, s48, s49')
                        a('s_lshl_b32 s48, s48, 14')
                        a(f's_add_u32 s38, s48, {pool0 + 0x4000}')
                        a('s_min_u32 s38, s38, 0x200000')
                        a(f's_cmp_lt_u32 s50, {NF}')
                        a('s_cselect_b32 s38, 0x200000, s38')
                        a('s_cselect_b32 s62, 0, 0xffff0000')
                    elif self.opt['P16']:
                        a('s_lshr_b32 s48, s50, 4')
                        a('s_lshl_b32 s48, s48, 17')
                        a('s_bfe_u32 s49, s50, 0x20002')
                        a('s_lshl_b32 s49, s49, 14')
                        a('s_add_u32 s48, s48, s49')
                    else:
                        a('s_lshr_b32 s48, s50, 2')
                        a(f's_lshl_b32 s48, s48, {14 if HALF else 15}')
                        if HALF:
                            a(f's_add_u32 s38, s48, {pool0 + 0x4000}')
                            a('s_min_u32 s38, s38, 0x200000')
                            a('s_mov_b32 s62, 0xffff0000')
                    a('s_and_b32 s49, s50, 3')
                    a('s_lshl_b32 s49, s49, 10')
                    a('s_add_u32 s48, s48, s49')
                    a('s_add_u32 s48, s48, s54')
                    a(f's_cmp_lt_u32 s50, {npool}')
                    a('s_cselect_b32 s44, s48, 0x200000')
                    if self.opt['stamps']:
                        u2 = self.u()
                        a(f's_cbranch_scc0 L_dg{u2}')
                        a('s_memrealtime s[94:95]')
                        a('s_add_u32 s96, s96, 1')
                        a('s_waitcnt lgkmcnt(0)')
                        self.lab(f'L_dg{u2}')
                else:
                    a('s_mov_b32 s44, 0x200000')
                self.lab(f'L_st{u}')
            if HALF and n == (24 - LA) % 16:
                a('s_mov_b32 s42, s38')

        def iss(n):
            if issue:
                hooks(n)
                t = n + LA
                if t < 16:
                    self.ld(R, t, 47)
                else:
                    self.ld(R, t - 16, 44)

        Q, AC, S = 10, 14, 22
        X, C, C2, MN, AL, E, E1, PA0, PB0, PA1, PB1 = 30, 31, 32, 33, 34, 35, 36, 37, 38, 39, 42
        M, L = 40, 41
        SU, SU2 = 43, 44
        for j in range(8):
            if wait:
                a(f's_waitcnt vmcnt({LA-1})')
            k = R + 4 * j
            a(f'v_dot2_f32_bf16 v{S+j}, v{k}, v{Q}, 0')
            for i in range(1, 4):
                a(f'v_dot2_f32_bf16 v{S+j}, v{k+i}, v{Q+i}, v{S+j}')
            iss(j)
        for p in range(4):
            a(f'v_add_f32_dpp v{S+2*p}, v{S+2*p}, v{S+2*p} row_ror:8 row_mask:0xf bank_mask:0x3')
            a(f'v_add_f32_dpp v{S+2*p}, v{S+2*p+1}, v{S+2*p+1} row_ror:8 row_mask:0xf bank_mask:0xc')
        for p in (0, 4):
            a(f'v_add_f32_dpp v{S+p}, v{S+p}, v{S+p} row_half_mirror row_mask:0xf bank_mask:0x5')
            a(f'v_add_f32_dpp v{S+p}, v{S+p+2}, v{S+p+2} row_half_mirror row_mask:0xf bank_mask:0xa')
        self.nop(2)
        a(f'v_permlane16_swap_b32 v{S}, v{S+4}')
        a(f'v_add_f32 v{S}, v{S}, v{S+4}')
        self.nop(2)
        a(f'v_add_f32_dpp v{S}, v{S}, v{S} quad_perm:[1,0,3,2] row_mask:0xf bank_mask:0xf')
        self.nop(2)
        a(f'v_add_f32_dpp v{S}, v{S}, v{S} quad_perm:[2,3,0,1] row_mask:0xf bank_mask:0xf')
        self.bf16r(X, S)
        if HALF and issue:
            a(f'v_cndmask_b32 v{X}, v{X}, v254, s[56:57]')
        self.nop(2)
        a(f'v_max_f32_dpp v{C}, v{X}, v{X} row_ror:8 row_mask:0xf bank_mask:0xf')
        self.nop(2)
        a(f'v_max_f32_dpp v{C}, v{C}, v{C} row_half_mirror row_mask:0xf bank_mask:0xf')
        for sw in ('v_permlane16_swap_b32', 'v_permlane32_swap_b32'):
            a(f'v_mov_b32 v{C2}, v{C}')
            self.nop(2)
            a(f'{sw} v{C}, v{C2}')
            a(f'v_max_f32 v{C}, v{C}, v{C2}')
        a(f'v_mul_f32 v{C}, s46, v{C}')
        a(f'v_max_f32 v{MN}, v{M}, v{C}')
        a(f'v_fma_f32 v{E}, v{X}, s46, -v{MN}')
        a(f'v_sub_f32 v{AL}, v{M}, v{MN}')
        a(f'v_exp_f32 v{E}, v{E}')
        a(f'v_exp_f32 v{AL}, v{AL}')
        a(f'v_mov_b32 v{M}, v{MN}')
        a(f'v_mov_b32 v{E1}, v{E}')
        for i in range(2):
            a(f'v_mul_f32 v{AC+i}, v{AC+i}, v{AL}')
        a(f'v_permlane16_swap_b32 v{E}, v{E1}')
        for i in range(2, 8):
            a(f'v_mul_f32 v{AC+i}, v{AC+i}, v{AL}')
        a(f'v_cvt_pk_bf16_f32 v{PA0}, v{E}, 0')
        a(f'v_cvt_pk_bf16_f32 v{PB0}, 0, v{E}')
        a(f'v_cvt_pk_bf16_f32 v{PA1}, v{E1}, 0')
        a(f'v_cvt_pk_bf16_f32 v{PB1}, 0, v{E1}')
        a(f'v_add_f32 v{SU}, v{E}, v{E1}')
        a(f'v_mul_f32 v{L}, v{L}, v{AL}')
        extra = [
            [f'v_add_f32_dpp v{SU}, v{SU}, v{SU} row_ror:8 row_mask:0xf bank_mask:0xf'],
            [f'v_add_f32_dpp v{SU}, v{SU}, v{SU} row_half_mirror row_mask:0xf bank_mask:0xf'],
            [f'v_mov_b32 v{SU2}, v{SU}'],
            [f'v_permlane32_swap_b32 v{SU}, v{SU2}', f'v_add_f32 v{L}, v{L}, v{SU}', f'v_add_f32 v{L}, v{L}, v{SU2}'],
        ]
        for j in range(8):
            if wait:
                a(f's_waitcnt vmcnt({LA-1})')
            v = R + 32 + 4 * j
            pa, pb = (PA0, PB0) if j < 4 else (PA1, PB1)
            n = 8 * (j & 1) + 4 * ((j >> 1) & 1)
            for i in range(4):
                a(f'v_dot2c_f32_bf16_dpp v{AC+2*i}, v{pa}, v{v+i} row_newbcast:{n} row_mask:0xf bank_mask:0xf')
                a(f'v_dot2c_f32_bf16_dpp v{AC+2*i+1}, v{pb}, v{v+i} row_newbcast:{n} row_mask:0xf bank_mask:0xf')
            iss(8 + j)
            if j < len(extra):
                for s in extra[j]:
                    a(s)

    def issue_set(self, R, done=0, cnt=16):
        for n in range(cnt):
            if self.opt['pace'] and done + n >= self.opt['pace']:
                self.a(f's_waitcnt vmcnt({self.opt["pace"]-1})')
            self.ld(R, n, 44)

    def streamer(self):
        a, lab = self.a, self.lab
        opt = self.opt
        RA, RB, RC = 48, 112, 176
        NST, setC = opt['NST'], opt['setC']
        a('v_lshlrev_b32 v2, 4, v0')
        for j in range(1, 8):
            a(f'v_add_u32 v{2+j}, {(j & 3) * 4096 + (j >> 2) * 65536 if opt["P16"] else 4096 * j}, v2')
        a('s_lshl_b32 s7, s4, 21')
        a('s_mov_b32 s38, 0x200000')
        a('s_mov_b32 s39, 0x20000')
        a('s_mov_b32 s42, 0x200000')
        a('s_mov_b32 s43, 0x20000')
        self.member(44, 45)
        a(f's_mul_i32 s44, s44, {0x4000 if opt["P16"] else 0x8000 if opt["ILV"] else NST*0x8000}')
        a('s_or_b32 s47, s2, s3')
        a('v_lshlrev_b32 v11, 6, v0')
        a('s_waitcnt lgkmcnt(0)')
        a('s_cmp_lg_u32 s47, 0')
        a('s_cbranch_scc1 L_sn0')
        a('s_and_b32 s49, s98, 0x3fff')
        a('s_lshl_b32 s48, s98, 2')
        a('s_and_b32 s48, s48, 0x3fff0000')
        a('s_or_b32 s48, s48, s49')
        a('s_or_b32 s48, s48, 0x8000')
        a('v_mov_b32 v10, s48')
        a('s_mov_b64 exec, 15')
        a('global_store_dword v11, v10, s[30:31] sc1')
        if opt['ptrs']:
            a('s_mov_b64 exec, 1')
            a('v_mov_b32 v12, 0')
            for i, r in enumerate((8, 10, 12, 14, 16, 28, 30, 32, 11, 13, 33)):
                a(f'v_mov_b32 v13, s{r}')
                a(f'global_store_dword v12, v13, s[30:31] offset:{16+4*i}')
                a('s_nop 1')
        a('s_mov_b64 exec, -1')
        lab('L_sn0')
        a('s_add_u32 s36, s10, s7')
        a('s_addc_u32 s37, s11, 0')
        a('s_add_u32 s40, s12, s7')
        a('s_addc_u32 s41, s13, 0')
        if opt['pdelay']:
            a('s_cmp_eq_u32 s5, 0')
            a('s_cbranch_scc1 L_spd')
            a('s_barrier')
            lab('L_spd')
        self.issue_set(RB)
        done = 16
        if setC:
            a(f's_add_u32 s44, s44, {self.cstep():#x}')
            self.issue_set(RC, done)
            done += 16
        a(f's_add_u32 s44, s44, {self.cstep():#x}')
        a('s_load_dword s6, s[30:31], 192')
        self.issue_set(RA, done, opt['LA'])
        a('s_mov_b32 s47, s44')
        a('s_lshl_b32 s48, s4, 8')
        a(f's_add_u32 s48, s48, {TK}')
        a('s_add_u32 s52, s32, s48')
        a('s_addc_u32 s53, s33, 0')
        a('s_lshl_b32 s54, s3, 10')
        a(f's_sub_u32 s54, {4*NST*0x8000}, s54')
        a('s_setprio 2')
        for i in range(8):
            a(f'v_mov_b32 v{14+i}, 0')
        a('v_mov_b32 v40, 0xff800000')
        a('v_mov_b32 v41, 0')
        a(f's_mov_b32 s46, {f2u(LOG2E/16.0):#x}')
        niter = NST - (2 if setC else 1)
        a(f's_mov_b32 s45, {niter}')
        a('s_mov_b64 s[56:57], 0')
        a('s_mov_b32 s62, 0')
        a('v_mov_b32 v254, 0xff800000')
        a('v_and_b32 v253, 63, v0')
        a('v_cmp_le_u32 vcc, 24, v253')
        a('v_and_b32 v45, 31, v0')
        a('v_lshlrev_b32 v247, 4, v45')
        a('v_cndmask_b32 v30, 0, 24, vcc')
        a('v_sub_u32 v30, v253, v30')
        a('v_mul_u32_u24 v249, 24, v30')
        a('v_cndmask_b32 v31, 0, 1, vcc')
        a('v_lshl_add_u32 v249, v31, 9, v249')
        a('v_cmp_eq_u32 s[58:59], 21, v30')
        a('v_cmp_gt_u32 s[60:61], 21, v30')
        a('v_cmp_gt_u32 s[64:65], 22, v30')
        a('v_lshlrev_b32 v46, 5, v45')
        a('v_bfe_u32 v30, v0, 5, 1')
        a('v_lshl_add_u32 v46, v30, 4, v46')
        a('s_lshl_b32 s7, s3, 10')
        a('v_add_u32 v46, s7, v46')
        a('s_lshl_b32 s7, s3, 3')
        a('v_mov_b32 v45, s7')
        a('s_and_b32 s48, s4, 15')
        a('s_lshl_b32 s48, s48, 4')
        a('s_lshr_b32 s49, s4, 4')
        a('s_lshl2_add_u32 s48, s49, s48')
        self.member(49, 7)
        a('s_add_u32 s48, s48, s49')
        a('s_lshl_b32 s48, s48, 10')
        a(f's_add_u32 s48, s48, {OG}')
        a('v_lshl_add_u32 v248, v253, 4, s48')
        a('v_mov_b32 v30, 0')
        self.stamp(80)
        a('s_waitcnt lgkmcnt(0)')
        self.fresh(98, 48, 49)
        a('s_cbranch_scc0 L_snw')
        lab('L_snok')
        a(f's_mov_b32 s48, {SPIN}')
        a('v_mov_b32 v47, s6')
        a('s_branch L_sqw')
        lab('L_sqs')
        a('s_sleep 1')
        lab('L_sqw')
        a(f'ds_read_b128 v[32:35], v30 offset:{L_FL2}')
        a(f'ds_read_b128 v[10:13], v247 offset:{L_QL}')
        a('s_sub_u32 s48, s48, 1')
        a('s_cbranch_scc1 L_exit')
        a('s_waitcnt lgkmcnt(0)')
        self.flags4(32)
        a('s_cbranch_vccz L_sqs')
        self.stamp(82)
        if opt['stamps']:
            a('s_memtime s[90:91]')
            a('s_mov_b32 s96, 0')
            a('s_mov_b32 s97, 0')
            a('s_mov_b64 s[94:95], s[98:99]')
        lab('L_sloop')
        self.chunk(RA, True, True)
        a('s_mov_b32 s47, s44')
        if opt['HALF']:
            a('s_mov_b32 s56, s62')
            a('s_mov_b32 s57, s62')
        a(f's_cmp_eq_u32 s45, {niter}')
        a('s_cbranch_scc1 L_sB')
        if setC:
            a(f's_cmp_eq_u32 s45, {niter-1}')
            a('s_cbranch_scc1 L_sC')
        lab('L_sback')
        a('s_sub_u32 s45, s45, 1')
        a('s_max_i32 s45, s45, 1')
        a('s_cmp_lt_u32 s47, 0x200000')
        a('s_cbranch_scc1 L_sloop')
        self.stamp(84)
        if opt['stamps']:
            a('s_memtime s[92:93]')
        AC = 14
        a('s_waitcnt lgkmcnt(0)')
        a('v_mov_b32 v31, 0')
        a('v_mov_b32 v32, 1')
        for i in range(4):
            a(f'v_permlane32_swap_b32 v{AC+i}, v{AC+4+i}')
        for i in range(4):
            a(f'v_add_f32 v{AC+i}, v{AC+i}, v{AC+4+i}')
        a(f'ds_write_b128 v46, v[{AC}:{AC+3}] offset:{L_OW}')
        a(f'ds_write_b64 v45, v[40:41] offset:{L_HDR}')
        a('s_mov_b64 exec, 1')
        a(f'ds_add_rtn_u32 v33, v31, v32 offset:{L_CNT}')
        a('s_mov_b64 exec, -1')
        H, D = 236, 212
        a(f'ds_read_b128 v[{H}:{H+3}], v31 offset:{L_HDR}')
        a(f'ds_read_b128 v[{H+4}:{H+7}], v31 offset:{L_HDR+16}')
        for w in range(4):
            for e in range(3):
                a(f'ds_read_b64 v[{D+6*w+2*e}:{D+6*w+2*e+1}], v249 offset:{L_OW+1024*w+8*e}')
        a('s_waitcnt lgkmcnt(14)')
        a('v_readfirstlane_b32 s7, v33')
        a('s_nop 0')
        a('s_cmp_lg_u32 s7, 3')
        a('s_cbranch_scc1 L_sexit' if opt['stamps'] else 's_cbranch_scc1 L_exit')
        a('s_waitcnt lgkmcnt(12)')
        a(f'v_max3_f32 v30, v{H}, v{H+2}, v{H+4}')
        a(f'v_max_f32 v30, v30, v{H+6}')
        for w in range(4):
            a(f'v_sub_f32 v{H+2*w}, v{H+2*w}, v30')
        for w in range(4):
            a(f'v_exp_f32 v{H+2*w}, v{H+2*w}')
        a('s_nop 0')
        a(f'v_mul_f32 v31, v{H}, v{H+1}')
        for w in range(1, 4):
            a(f'v_fmac_f32 v31, v{H+2*w}, v{H+2*w+1}')
        a('v_rcp_f32 v32, v31')
        a('v_log_f32 v33, v31')
        a('s_waitcnt lgkmcnt(0)')
        for e in range(0, 6, 2):
            a(f'v_pk_mul_f32 v[{22+e}:{23+e}], v[{D+e}:{D+e+1}], v[{H}:{H+1}] op_sel_hi:[1,0]')
        for w in range(1, 4):
            for e in range(0, 6, 2):
                a(f'v_pk_fma_f32 v[{22+e}:{23+e}], v[{D+6*w+e}:{D+6*w+e+1}], v[{H+2*w}:{H+2*w+1}], v[{22+e}:{23+e}] op_sel_hi:[1,0,1]')
        a('v_add_f32 v33, v33, v30')
        for e in range(0, 6, 2):
            a(f'v_pk_mul_f32 v[{22+e}:{23+e}], v[{22+e}:{23+e}], v[32:33] op_sel_hi:[1,0]')
        a('v_cvt_pk_bf16_f32 v44, v22, v23')
        a('v_cvt_pk_bf16_f32 v45, v24, v25')
        a('v_cvt_pk_bf16_f32 v46, v26, v27')
        a('v_cndmask_b32 v44, 0, v44, s[64:65]')
        a('v_cndmask_b32 v45, 0, v45, s[60:61]')
        a('v_cndmask_b32 v46, 0, v46, s[60:61]')
        a('v_cndmask_b32 v45, v45, v33, s[58:59]')
        a('s_mov_b32 exec_hi, 0xffff')
        a('global_store_dwordx4 v248, v[44:47], s[32:33] sc1')
        if opt['after']:
            a('v_mov_b32 v30, 0')
            a('v_mov_b32 v31, 5')
            a(f'ds_write_b32 v30, v31 offset:{L_CNT}')
        self.stamp(86)
        if opt['stamps']:
            self.flush_stamps([(3, 86)])
            lab('L_sexit')
            a('s_mov_b64 exec, 1')
            a('s_lshl_b32 s7, s2, 8')
            a(f's_add_u32 s7, s7, {STAMP}')
            a('s_lshl3_add_u32 s7, s3, s7')
            a('v_mov_b32 v252, s7')
            for slot, sr in ((22, 84), (26, 94)):
                a(f'v_mov_b32 v250, s{sr}')
                a(f'v_mov_b32 v251, s{sr+1}')
                a(f'global_store_dwordx2 v252, v[250:251], s[32:33] offset:{8*slot}')
                a('s_nop 1')
            a('s_cmp_lg_u32 s3, 0')
            a('s_cbranch_scc1 L_exit')
            a('v_mov_b32 v250, s96')
            a('v_mov_b32 v251, s97')
            if not opt['probe']:
                a(f'global_store_dwordx2 v252, v[250:251], s[32:33] offset:{8*30}')
            a('s_cmp_lg_u32 s3, 0')
            a('s_cbranch_scc1 L_exit')
            a('s_getreg_b32 s88, hwreg(HW_REG_XCC_ID)')
            a('s_and_b32 s88, s88, 15')
            a('s_mov_b32 s89, 0')
            a('s_sub_u32 s90, s92, s90')
            a('s_mov_b32 s91, 0')
            self.flush_stamps([(0, 98), (1, 80), (2, 82), (8, 84), (6, 88), (7, 90)])
        a('s_endpgm')
        if NST < 16:
            lab('L_tkretry')
            a(f's_mov_b32 s48, {SPIN}')
            lab('L_tkr2')
            a('s_sleep 8')
            a('s_mov_b32 s50, 1')
            a('s_mov_b32 s51, 0')
            a('s_atomic_add_x2 s[50:51], s[52:53], 0x0 glc')
            a('s_sub_u32 s48, s48, 1')
            a('s_cbranch_scc1 L_exit')
            a('s_waitcnt lgkmcnt(0)')
            a('s_cmp_lg_u32 s51, s6')
            a('s_cbranch_scc1 L_tkr2')
            a('s_branch L_tkok')
        lab('L_snw')
        self.tag_slow('L_snw2', 'L_snok', 98, 48, 49, 50, 30, 31)
        lab('L_sB')
        self.chunk(RB, False, False)
        a('s_branch L_sback')
        if setC:
            lab('L_sC')
            self.chunk(RC, False, False)
            a('s_branch L_sback')

    W1, B1, W2P, C1P, ET, EA = 64, 92, 120, 134, 136, 152

    def eval_sub(self):
        a = self.a
        W1, B1, W2P, C1P, ET, EA = self.W1, self.B1, self.W2P, self.C1P, self.ET, self.EA
        self.lab('L_eval')
        a(f'v_mov_b32 v{EA}, 0')
        for base in range(0, 14, 2):
            prs = [(base, ET), (base + 1, ET + 6)]
            for p, t in prs:
                a(f'v_pk_mul_f32 v[{t}:{t+1}], v[{W1+2*p}:{W1+2*p+1}], s[70:71]')
            for p, t in prs:
                self.bf16r(t, t)
                self.bf16r(t + 1, t + 1)
            for p, t in prs:
                a(f'v_pk_add_f32 v[{t}:{t+1}], v[{t}:{t+1}], v[{B1+2*p}:{B1+2*p+1}]')
            for p, t in prs:
                self.bf16r(t, t)
                self.bf16r(t + 1, t + 1)
            for p, t in prs:
                a(f'v_pk_mul_f32 v[{t+2}:{t+3}], v[{t}:{t+1}], v[{t}:{t+1}]')
            for p, t in prs:
                a(f'v_pk_fma_f32 v[{t+2}:{t+3}], v[{t+2}:{t+3}], s[72:73], v[{C1P}:{C1P+1}]')
            for p, t in prs:
                a(f'v_pk_mul_f32 v[{t+2}:{t+3}], v[{t+2}:{t+3}], v[{t}:{t+1}]')
            for p, t in prs:
                a(f'v_exp_f32 v{t+2}, v{t+2}')
                a(f'v_exp_f32 v{t+3}, v{t+3}')
            a('s_nop 0')
            for p, t in prs:
                a(f'v_add_f32 v{t+2}, 1.0, v{t+2}')
                a(f'v_add_f32 v{t+3}, 1.0, v{t+3}')
            for p, t in prs:
                a(f'v_rcp_f32 v{t+2}, v{t+2}')
                a(f'v_rcp_f32 v{t+3}, v{t+3}')
            a('s_nop 0')
            for p, t in prs:
                a(f'v_pk_mul_f32 v[{t}:{t+1}], v[{t}:{t+1}], v[{t+2}:{t+3}]')
            for p, t in prs:
                a(f'v_cvt_pk_bf16_f32 v{t+4}, v{t}, v{t+1}')
            for p, t in prs:
                a(f'v_dot2c_f32_bf16 v{EA}, v{t+4}, v{W2P+p}')
        self.nop(2)
        self.ladder64([EA], [ET])
        self.bf16r(EA, EA)
        a(f'v_add_f32 v{EA}, s74, v{EA}')
        a(f'v_cvt_pk_bf16_f32 v153, v{EA}, 0')
        a('s_setpc_b64 s[76:77]')

    def producer(self):
        a, lab = self.a, self.lab
        opt = self.opt
        a('v_lshrrev_b32 v2, 4, v1')
        a('v_and_b32 v3, 15, v1')
        a('v_mul_u32_u24 v4, 896, v2')
        a('v_lshl_add_u32 v4, v3, 4, v4')
        a('v_cmp_gt_u32 s[60:61], 14, v3')
        a('v_bfrev_b32 v7, 1')
        a('v_lshrrev_b32 v5, 3, v1')
        a('v_and_b32 v6, 7, v1')
        a('v_cndmask_b32 v4, v7, v4, s[60:61]')
        a(f's_mov_b32 s7, {14*8192}')
        a('v_mul_lo_u32 v56, s7, v5')
        a('v_lshl_add_u32 v56, v6, 4, v56')
        for r in range(4):
            a(f's_add_u32 s{40+r}, s34, {r}')
            a(f's_and_b32 s{40+r}, s{40+r}, 3')
            a(f's_mul_i32 s{40+r}, s{40+r}, 224')
        a(f's_mul_i32 s48, s34, {112*8192}')
        a('s_lshl_b32 s49, s4, 7')
        a('s_add_u32 s48, s48, s49')
        a('s_mov_b32 s38, 3584')
        a('s_mov_b32 s39, 0x20000')
        a(f's_mov_b32 s46, {0 if "nowq" in opt["exp"] else 3670016}')
        a('s_mov_b32 s47, 0x20000')
        a('s_waitcnt lgkmcnt(0)')
        a('s_mov_b32 s35, s98')
        a('s_mov_b32 s36, s8')
        a('s_mov_b32 s37, s9')
        a('s_mov_b32 s44, s14')
        a('s_mov_b32 s45, s15')
        for r in range(4):
            a(f'buffer_load_dwordx4 v[{8+4*r}:{11+4*r}], v4, s[36:39], s{40+r} offen')
        WR = 100
        for it in range(14):
            a(f'buffer_load_dwordx4 v[{WR+4*it}:{WR+4*it+3}], v56, s[44:47], s48 offen {opt["wqf"]}')
            if it < 13:
                a('s_add_u32 s48, s48, 8192')
        if opt['pdelay'] and opt['pbar'] < 0:
            a('s_barrier')
        a(f's_mov_b32 s62, {f2u(1.0/448):#x}')
        a(f's_mov_b32 s63, {f2u(1e-5):#x}')
        a('s_mov_b32 s64, 0x05040100')
        a('s_mov_b32 s65, 0x07060302')
        a('s_lshl_b32 s18, s34, 10')
        a('v_lshl_add_u32 v57, v1, 4, s18')
        a('v_mul_u32_u24 v58, 28, v5')
        a('v_add_u32 v58, s18, v58')
        a('s_waitcnt vmcnt(14)')
        self.vstamp(228)
        XF = 24
        for i in range(16):
            self.unpack(XF + 2 * i, XF + 2 * i + 1, 8 + i)
        PV, S1, S2, DT = 76, 78, 80, 82
        a('s_nop 0')
        a(f'v_mov_b32_dpp v{PV}, v{XF} row_newbcast:0 row_mask:0xf bank_mask:0xf')
        for i in range(16):
            d = DT + 2 * (i & 1)
            a(f'v_pk_add_f32 v[{d}:{d+1}], v[{XF+2*i}:{XF+2*i+1}], v[{PV}:{PV+1}] op_sel_hi:[1,0] neg_lo:[0,1] neg_hi:[0,1]')
            if i == 0:
                a(f'v_pk_mul_f32 v[{S2}:{S2+1}], v[{d}:{d+1}], v[{d}:{d+1}]')
                a(f'v_mov_b32 v{S1}, v{d}')
                a(f'v_mov_b32 v{S1+1}, v{d+1}')
            else:
                a(f'v_pk_fma_f32 v[{S2}:{S2+1}], v[{d}:{d+1}], v[{d}:{d+1}], v[{S2}:{S2+1}]')
                a(f'v_pk_add_f32 v[{S1}:{S1+1}], v[{S1}:{S1+1}], v[{d}:{d+1}]')
        a(f'v_add_f32 v{S1}, v{S1}, v{S1+1}')
        a(f'v_add_f32 v{S2}, v{S2}, v{S2+1}')
        a(f'v_cndmask_b32 v{S1}, 0, v{S1}, s[60:61]')
        a(f'v_cndmask_b32 v{S2}, 0, v{S2}, s[60:61]')
        for ror in (8, 4, 2, 1):
            a('s_nop 0')
            a(f'v_add_f32_dpp v{S1}, v{S1}, v{S1} row_ror:{ror} row_mask:0xf bank_mask:0xf')
            a(f'v_add_f32_dpp v{S2}, v{S2}, v{S2} row_ror:{ror} row_mask:0xf bank_mask:0xf')
        MO, RO = 86, 88
        self.ln_stats(S1, S2, f'v{PV}', 84, 85, 62, 63, MO, RO)
        for i in range(4):
            a(f'v_pk_add_f32 v[{XF+2*i}:{XF+2*i+1}], v[{XF+2*i}:{XF+2*i+1}], v[{MO}:{MO+1}] op_sel_hi:[1,0] neg_lo:[0,1] neg_hi:[0,1]')
        for i in range(8):
            self.bf16r(XF + i, XF + i)
        for i in range(4):
            a(f'v_pk_mul_f32 v[{XF+2*i}:{XF+2*i+1}], v[{XF+2*i}:{XF+2*i+1}], v[{RO}:{RO+1}] op_sel_hi:[1,0]')
        for i in range(4):
            a(f'v_cvt_pk_bf16_f32 v{8+i}, v{XF+2*i}, v{XF+2*i+1}')
        a(f'ds_write_b128 v57, v[8:11] offset:{L_XN}')
        a(f'v_add_u32 v58, {L_XN}, v58')
        a('s_waitcnt lgkmcnt(0)')
        XN = 8
        for b in range(4):
            for p in range(0, 6, 2):
                a(f'ds_read2_b32 v[{XN+8*b+p}:{XN+8*b+p+1}], v58 offset0:{64*b+p} offset1:{64*b+p+1}')
            a(f'ds_read_b32 v{XN+8*b+6}, v58 offset:{256*b+24}')
            if b == 2:
                a('s_waitcnt lgkmcnt(8)')
        a('s_waitcnt lgkmcnt(0)')
        a('s_load_dword s6, s[30:31], 0')
        PP, QA = 40, 60
        for p in range(7):
            a(f's_waitcnt vmcnt({12-2*p})')
            if opt['pdelay'] and opt['pbar'] == p:
                a('s_barrier')
            r0, r1 = WR + 8 * p, WR + 8 * p + 4
            for dw in range(4):
                a(f'v_perm_b32 v{PP+2*dw}, v{r1+dw}, v{r0+dw}, s64')
                a(f'v_perm_b32 v{PP+2*dw+1}, v{r1+dw}, v{r0+dw}, s65')
            for b in range(4):
                for e in range(8):
                    src2 = '0' if p == 0 else f'v{QA+8*b+e}'
                    a(f'v_dot2_f32_bf16 v{QA+8*b+e}, v{PP+e}, v{XN+8*b+p}, {src2}')
        self.vstamp(232)
        for b in range(4):
            for e in range(4):
                v = QA + 8 * b + e
                a(f'v_add_f32_dpp v{v}, v{v}, v{v} row_ror:8 row_mask:0xf bank_mask:0x3')
                a(f'v_add_f32_dpp v{v}, v{v+4}, v{v+4} row_ror:8 row_mask:0xf bank_mask:0xc')
        for b in (0, 2):
            for e in range(4):
                a(f'v_permlane16_swap_b32 v{QA+8*b+e}, v{QA+8*b+8+e}')
        for b in (0, 2):
            for e in range(4):
                a(f'v_add_f32 v{QA+8*b+e}, v{QA+8*b+e}, v{QA+8*b+8+e}')
        for e in range(4):
            a(f'v_permlane32_swap_b32 v{QA+e}, v{QA+16+e}')
        for e in range(4):
            a(f'v_add_f32 v{QA+e}, v{QA+e}, v{QA+16+e}')
        a(f'ds_write_b128 v57, v[{QA}:{QA+3}] offset:{L_QP}')
        self.vstamp(234)

    def publish_q(self):
        a, lab = self.a, self.lab
        a('v_mov_b32 v58, 0')
        a('v_lshlrev_b32 v57, 4, v1')
        a('s_lshr_b32 s18, s4, 2')
        a('s_lshl_b32 s18, s18, 12')
        a('s_and_b32 s19, s4, 3')
        a('s_lshl_b32 s19, s19, 8')
        a('s_add_u32 s18, s18, s19')
        a('v_lshrrev_b32 v8, 4, v1')
        a('v_lshlrev_b32 v8, 10, v8')
        a('v_and_b32 v9, 7, v1')
        a('v_lshl_add_u32 v8, v9, 5, v8')
        a('v_bfe_u32 v9, v1, 3, 1')
        a('v_lshl_add_u32 v8, v9, 4, v8')
        a('v_add_u32 v8, s18, v8')
        a('v_mov_b32 v34, s6')
        a('v_mov_b32 v35, s6')
        a(f's_mov_b32 s19, {SPIN}')
        lab('L_hfw')
        a(f'ds_read_b128 v[12:15], v58 offset:{L_FLG}')
        for w in range(4):
            a(f'ds_read_b128 v[{16+4*w}:{19+4*w}], v57 offset:{L_QP+1024*w}')
        a('s_sub_u32 s19, s19, 1')
        a('s_cbranch_scc1 L_exit')
        a('s_waitcnt lgkmcnt(0)')
        self.flags4(12)
        a('s_cbranch_vccz L_hfw')
        a('v_pk_add_f32 v[16:17], v[16:17], v[20:21]')
        a('v_pk_add_f32 v[18:19], v[18:19], v[22:23]')
        a('v_pk_add_f32 v[24:25], v[24:25], v[28:29]')
        a('v_pk_add_f32 v[26:27], v[26:27], v[30:31]')
        a('v_pk_add_f32 v[16:17], v[16:17], v[24:25]')
        a('v_pk_add_f32 v[18:19], v[18:19], v[26:27]')
        a('v_cvt_pk_bf16_f32 v32, v16, v17')
        a('v_cvt_pk_bf16_f32 v33, v18, v19')
        a('global_store_dwordx4 v8, v[32:35], s[32:33] sc1')

    def helper(self):
        a, lab = self.a, self.lab
        opt = self.opt
        a('s_setprio 3')
        a('s_sub_u32 s34, s3, 4')
        a('v_and_b32 v1, 63, v0')
        a('s_cmp_eq_u32 s5, 0')
        a('s_cbranch_scc1 L_hnp')
        self.producer()
        a('s_branch L_hn1')
        lab('L_hnp')
        a('s_waitcnt lgkmcnt(0)')
        a('s_mov_b32 s35, s98')
        if opt['early']:
            a('s_cmp_eq_u32 s34, 0')
            a('s_cbranch_scc1 L_he0')
            a('s_cmp_eq_u32 s34, 1')
            a('s_cbranch_scc1 L_he1')
            self.mlp_loads()
            a('s_branch L_he1')
            lab('L_he0')
            self.wparams('L_he1')
            self.stage()
            lab('L_he1')
        if opt['probe']:
            a('s_cmp_lt_u32 s34, 2')
            a('s_cbranch_scc1 L_pr1')
            a('s_lshl_b32 s40, s4, 21')
            a('s_and_b32 s41, s34, 1')
            a('s_lshl_b32 s41, s41, 13')
            a('s_add_u32 s40, s40, s41')
            a('s_add_u32 s40, s40, 0x1fc000')
            for base, res in ((10, 50), (12, 52)):
                a(f's_add_u32 s42, s{base}, s40')
                a(f's_addc_u32 s43, s{base+1}, 0')
                a(f's_mov_b32 s{res}, -1')
                a(f's_mov_b32 s{res+1}, 0')
                for rep in range(opt['probe']):
                    a('s_memtime s[44:45]')
                    a('s_waitcnt lgkmcnt(0)')
                    a(f's_load_dword s48, s[42:43], 0 glc')
                    a('s_waitcnt lgkmcnt(0)')
                    a('s_memtime s[46:47]')
                    a('s_waitcnt lgkmcnt(0)')
                    a('s_sub_u32 s49, s46, s44')
                    a(f's_min_u32 s{res}, s{res}, s49')
                a(f's_memrealtime s[{res+4}:{res+5}]')
                a('s_waitcnt lgkmcnt(0)')
            a('s_mov_b64 exec, 1')
            a('s_lshl_b32 s7, s2, 8')
            a(f's_add_u32 s7, s7, {STAMP}')
            a('s_and_b32 s41, s34, 1')
            a('s_lshl3_add_u32 s7, s41, s7')
            a('v_mov_b32 v252, s7')
            for slot, sr in ((16, 50), (18, 52), (30, 54)):
                a(f'v_mov_b32 v250, s{sr}')
                a(f'v_mov_b32 v251, s{sr+1}')
                a(f'global_store_dwordx2 v252, v[250:251], s[32:33] offset:{8*slot}')
                a('s_nop 1')
            a('s_mov_b64 exec, -1')
            lab('L_pr1')
        a(f's_sleep {opt["hs0"]}')
        a('s_load_dword s6, s[30:31], 0')
        lab('L_hn1')
        for sec in (1, 2):
            a('s_waitcnt lgkmcnt(0)')
            self.fresh(35, 18, 19)
            a('s_cbranch_scc1 L_hnok')
            a('s_sleep 4')
            a(f's_load_dword s6, s[30:31], {64*sec}')
        a('s_waitcnt lgkmcnt(0)')
        self.fresh(35, 18, 19)
        a('s_cbranch_scc1 L_hnok')
        self.tag_slow('L_hnw', 'L_hnok', 35, 18, 19, 7, 58, 59)
        lab('L_hnok')
        self.vstamp(236)
        a('s_lshl_b32 s18, s34, 2')
        a('v_mov_b32 v58, s18')
        a('v_mov_b32 v59, s6')
        a(f'ds_write_b32 v58, v59 offset:{L_FLG}')
        a('s_and_b32 s35, s4, 15')
        a('s_lshl_b32 s35, s35, 2')
        a('s_lshr_b32 s7, s4, 4')
        a('s_add_u32 s35, s35, s7')
        a('s_lshl_b32 s35, s35, 10')
        a('s_lshl_b32 s7, s34, 8')
        a('s_add_u32 s35, s35, s7')
        a('s_add_u32 s100, s32, s35')
        a('s_addc_u32 s101, s33, 0')
        a('s_cmp_lg_u32 s34, 0')
        a('s_cbranch_scc1 L_hq')
        a('v_mov_b32 v58, 0')
        a(f'ds_write_b32 v58, v58 offset:{L_CNT}')
        a('s_cmp_eq_u32 s5, 0')
        a('s_cbranch_scc1 L_hq')
        self.publish_q()
        self.vstamp(240)
        lab('L_hq')
        a(f's_mov_b32 s19, {SPIN}')
        lab('L_hqw')
        for p in range(4):
            a(f's_load_dwordx16 s[{36+16*p}:{51+16*p}], s[100:101], {64*p} glc')
        a('s_sub_u32 s19, s19, 1')
        a('s_cbranch_scc1 L_exit')
        a('s_waitcnt lgkmcnt(0)')
        tags = [36 + 16 * p + 4 * g + 2 for p in range(4) for g in range(4)]
        a(f's_xor_b32 s7, s{tags[0]}, s6')
        for t in tags[1:]:
            a(f's_xor_b32 s18, s{t}, s6')
            a('s_or_b32 s7, s7, s18')
        a('s_cbranch_scc0 L_hqok')
        a(f's_sleep {opt["qsleep"]}')
        a('s_branch L_hqw')
        lab('L_hqok')
        for p in range(4):
            for g in range(4):
                for k in range(2):
                    a(f'v_writelane_b32 v8, s{36+16*p+4*g+k}, {8*p+2*g+k}')
        a('s_lshl_b32 s18, s34, 7')
        a('v_lshl_add_u32 v9, v1, 2, s18')
        a('s_mov_b32 exec_hi, 0')
        a(f'ds_write_b32 v9, v8 offset:{L_QL}')
        a('s_mov_b64 exec, -1')
        a('s_load_dword s74, s[26:27], 0')
        a('s_lshl_b32 s18, s34, 2')
        a('v_mov_b32 v9, s18')
        a('v_mov_b32 v8, s6')
        a('s_waitcnt lgkmcnt(0)')
        a(f'ds_write_b32 v9, v8 offset:{L_FL2}')
        self.vstamp(242)
        a('s_setprio 0')
        if opt['NST'] < 16:
            self.member(18, 19)
            a('s_lshl2_add_u32 s18, s18, s34')
            a('s_cmp_lg_u32 s18, 1')
            a('s_cbranch_scc1 L_htk')
            a('s_lshl_b32 s18, s4, 8')
            a(f's_add_u32 s18, s18, {TK}')
            a('v_mov_b32 v10, s18')
            a('v_mov_b32 v8, 0')
            a('v_mov_b32 v9, s6')
            a('s_mov_b64 exec, 1')
            a('global_store_dwordx2 v10, v[8:9], s[32:33] sc1')
            a('s_mov_b64 exec, -1')
            lab('L_htk')
        a('s_cmp_lt_u32 s34, 2')
        a('s_cbranch_scc1 L_work')
        a('s_sub_u32 s18, s2, 4')
        a('s_mul_i32 s35, s18, 964')
        a('s_lshr_b32 s35, s35, 16')
        a('s_mul_i32 s19, s35, 68')
        a('s_cmp_eq_u32 s18, s19')
        a('s_cselect_b32 s35, s35, 4')
        a('s_cmp_eq_u32 s34, 3')
        a('s_cselect_b32 s35, s35, 4')
        a('s_cmp_ge_u32 s35, 4')
        a('s_cbranch_scc1 L_hw')
        a('s_lshl_b32 s18, s35, 11')
        a(f's_add_u32 s18, s18, {ACC}')
        a('v_lshl_add_u32 v4, v1, 4, s18')
        for i in range(4):
            a(f'v_mov_b32 v{8+i}, 0')
        for rp in range(opt['R']):
            a(f'v_add_u32 v{224+rp}, {8192*rp}, v4')
            a(f'global_store_dwordx4 v{224+rp}, v[8:11], s[32:33] sc1')
            a(f'global_store_dwordx4 v{224+rp}, v[8:11], s[32:33] offset:1024 sc1')
        a('s_lshl_b32 s18, s35, 2')
        a(f's_add_u32 s18, s18, {RDY}')
        a('v_mov_b32 v12, s18')
        a('v_mov_b32 v13, s6')
        a('s_waitcnt vmcnt(0)')
        a('s_mov_b64 exec, 1')
        a('global_store_dword v12, v13, s[32:33] sc1')
        a('s_mov_b64 exec, -1')
        lab('L_hw')
        W1, B1, C1P, W2P = self.W1, self.B1, self.C1P, self.W2P
        if opt['early']:
            a('s_cmp_eq_u32 s5, 0')
            a('s_cbranch_scc1 L_hw2')
        self.mlp_loads()
        lab('L_hw2')
        k2 = -2.0 * math.sqrt(2.0 / math.pi) * LOG2E
        a(f'v_mov_b32 v{C1P}, {f2u(k2):#x}')
        a(f'v_mov_b32 v{C1P+1}, {f2u(k2):#x}')
        a(f's_mov_b32 s72, {f2u(k2*0.044715):#x}')
        a('s_mov_b32 s73, s72')
        a('s_lshl_b32 s74, s74, 16')
        a('s_waitcnt vmcnt(0)')
        for i in range(14):
            self.unpack(W1 + 2 * i, W1 + 2 * i + 1, 160 + i)
            self.unpack(B1 + 2 * i, B1 + 2 * i + 1, 176 + i)
        a('s_lshl_b32 s40, s2, 2')
        a('s_lshl1_add_u32 s40, s34, s40')
        a('s_sub_u32 s40, s40, 4')
        a('s_add_u32 s50, s40, 2')
        lab('L_tb')
        a('s_mul_i32 s41, s40, 6')
        a(f's_cmp_ge_u32 s41, {NTH}')
        a(f's_mov_b32 s43, {E0 << 7}')
        a(f's_cselect_b32 s42, {0x8000 - NTH + (E0 << 7)}, s43')
        a('s_add_u32 s41, s41, s42')
        for n in range(6):
            a(f's_add_u32 s70, s41, {n}')
            a('s_lshl_b32 s70, s70, 16')
            a('s_mov_b32 s71, s70')
            if 'noeval' not in opt['exp']:
                a('s_call_b64 s[76:77], L_eval')
            a('s_nop 0')
            a(f'v_readfirstlane_b32 s{44+n}, v153')
        a('s_nop 0')
        for n in range(3):
            a(f's_pack_ll_b32_b16 s{44+n}, s{44+2*n}, s{45+2*n}')
        a('s_lshl_b32 s41, s40, 4')
        a(f's_add_u32 s41, s41, {TG}')
        a('v_mov_b32 v8, s44')
        a('v_mov_b32 v9, s45')
        a('v_mov_b32 v10, s46')
        a('v_mov_b32 v11, s6')
        a('v_mov_b32 v12, s41')
        a('s_mov_b64 exec, 1')
        a('global_store_dwordx4 v12, v[8:11], s[32:33] sc1')
        a('s_mov_b64 exec, -1')
        a('s_add_u32 s40, s40, 1')
        a('s_cmp_lt_u32 s40, s50')
        a('s_cbranch_scc1 L_tb')
        a('s_cmp_lt_u32 s35, 4')
        a('s_cbranch_scc1 L_cons')
        if opt['stamps']:
            a('s_cmp_lg_u32 s34, 2')
            a('s_cbranch_scc1 L_exit')
            self.stamp(24)
            self.flush_stamps([(15, 24)])
        a('s_endpgm')
        lab('L_work')
        self.worker()
        self.consumer()
        self.eval_sub()

    def wparams(self, idle):
        a = self.a
        a('s_lshr_b32 s40, s2, 3')
        self.member(41, 42)
        a('s_sub_u32 s42, s40, s41')
        a('s_and_b32 s43, s42, 7')
        a('s_cmp_eq_u32 s43, 0')
        a(f's_cbranch_scc1 {idle}')
        a('s_add_u32 s42, s42, 7')
        a('s_lshr_b32 s42, s42, 3')
        a('s_sub_u32 s40, s40, s42')
        a('s_mul_i32 s41, s40, 37')
        a('s_lshr_b32 s41, s41, 8')
        a('s_mul_i32 s42, s41, 7')
        a('s_sub_u32 s42, s40, s42')
        a('s_and_b32 s40, s2, 7')
        a('s_lshl2_add_u32 s40, s40, s41')
        a('s_mul_i32 s43, s42, 293')
        a('s_lshr_b32 s43, s43, 6')

    def stage(self):
        a = self.a
        opt = self.opt
        W = opt['swin']
        a(f's_mul_i32 s44, s40, {128*896}')
        a('s_lshl_b32 s45, s42, 7')
        a('s_add_u32 s44, s44, s45')
        a('s_add_u32 s36, s16, s44')
        a('s_addc_u32 s37, s17, 0')
        a(f's_sub_u32 s38, {128*896}, s45')
        if 'nowo' in opt['exp']:
            a('s_mov_b32 s38, 0')
        a('s_mov_b32 s39, 0x20000')
        a('v_lshrrev_b32 v2, 3, v1')
        a('v_and_b32 v3, 7, v1')
        a(f'v_mul_u32_u24 v8, {RS}, v2')
        a('v_lshl_add_u32 v8, v3, 4, v8')
        a('v_mul_u32_u24 v2, 896, v2')
        a('v_lshl_add_u32 v2, v3, 4, v2')
        a('s_mov_b32 s44, 0')
        for it in range(16):
            if it >= W:
                a(f's_waitcnt vmcnt({W-1})')
                a(f'ds_write_b128 v8, v[{160+4*(it-W)}:{163+4*(it-W)}] offset:{L_WOS+8*RS*(it-W)}')
            a(f'buffer_load_dwordx4 v[{160+4*it}:{163+4*it}], v2, s[36:39], s44 offen {opt["wof"]}')
            a('s_add_u32 s44, s44, 7168')
        a('v_lshlrev_b32 v3, 4, v1')
        for z in range(4):
            a(f'v_mov_b32 v{224+z}, 0')
        for z in range(3):
            a(f'ds_write_b128 v3, v[224:227] offset:{L_WOS+128*RS+1024*z}')
        for it in range(16 - W, 16):
            a(f's_waitcnt vmcnt({15-it})')
            a(f'ds_write_b128 v8, v[{160+4*it}:{163+4*it}] offset:{L_WOS+8*RS*it}')

    def mlp_loads(self):
        a = self.a
        a('v_lshlrev_b32 v2, 4, v1')
        a('v_lshlrev_b32 v3, 3, v1')
        W1, B1, C1P, W2P = self.W1, self.B1, self.C1P, self.W2P
        for base, sp in ((160, 20), (176, 22), (W2P, 24)) if 'nomlp' not in self.opt['exp'] else ():
            for r in range(3):
                a(f'global_load_dwordx4 v[{base+4*r}:{base+4*r+3}], v2, s[{sp}:{sp+1}] offset:{1024*r}')
            a(f'global_load_dwordx2 v[{base+12}:{base+13}], v3, s[{sp}:{sp+1}] offset:3072')

    def wait_lds(self, name, off, cmp, sleep):
        a, lab = self.a, self.lab
        a('v_mov_b32 v6, 0')
        a(f's_mov_b32 s19, {SPIN}')
        lab(name)
        a(f's_sleep {sleep}')
        a(f'ds_read_b32 v7, v6 offset:{off}')
        a('s_sub_u32 s19, s19, 1')
        a('s_cbranch_scc1 L_exit')
        a('s_waitcnt lgkmcnt(0)')
        a(cmp)
        a(f's_cbranch_vccnz {name}')

    def worker(self):
        a, lab = self.a, self.lab
        opt = self.opt
        self.wparams('L_wexit' if opt['stamps'] else 'L_exit')
        a('v_lshrrev_b32 v5, 4, v1')
        a('v_and_b32 v14, 15, v1')
        BF = 64
        for i in range(72):
            a(f'v_mov_b32 v{BF+i}, 0')
        a('s_cmp_lg_u32 s34, 0')
        a('s_cbranch_scc1 L_wst')
        if opt['early']:
            a('s_cmp_eq_u32 s5, 0')
            a('s_cbranch_scc1 L_wfl')
        self.stage()
        lab('L_wfl')
        a('v_mov_b32 v6, 0')
        a('v_mov_b32 v7, s6')
        a('s_waitcnt lgkmcnt(0)')
        a(f'ds_write_b32 v6, v7 offset:{L_WOF}')
        lab('L_wst')
        self.wait_lds('L_wsw', L_WOF, 'v_cmp_ne_u32 vcc, s6, v7', 8)
        a('s_mul_i32 s44, s34, 3')
        a('s_add_u32 s43, s43, s44')
        a('s_mul_i32 s44, s43, 14')
        a('s_lshl_b32 s45, s42, 6')
        a('s_sub_u32 s44, s44, s45')
        a(f'v_mul_u32_u24 v2, {6*RS}, v5')
        a('v_cmp_gt_u32 s[46:47], 14, v14')
        for t in range(3):
            u = self.u()
            a('v_add_u32 v3, s44, v14')
            a('v_cmp_gt_u32 vcc, 64, v3')
            a('v_lshl_add_u32 v3, v3, 1, v2')
            a(f's_and_b64 s[{48+2*t}:{49+2*t}], vcc, s[46:47]')
            a(f's_mov_b64 exec, s[{48+2*t}:{49+2*t}]')
            a(f's_cbranch_execz L_wb{u}')
            for kk in range(0, 6, 2):
                for q in range(2):
                    for e in range(6):
                        a(f'ds_read_u16 v{16+6*q+e}, v3 offset:{L_WOS+24*RS*(kk+q)+RS*e}')
                a('s_waitcnt lgkmcnt(0)')
                for q in range(2):
                    for uu in range(3):
                        a(f'v_lshl_or_b32 v{BF+12*(kk+q)+4*t+uu}, v{16+6*q+2*uu+1}, 16, v{16+6*q+2*uu}')
            lab(f'L_wb{u}')
            a('s_mov_b64 exec, -1')
            a('s_add_u32 s44, s44, 14')
        a('s_lshr_b32 s44, s40, 1')
        a('s_lshl_b32 s44, s44, 14')
        a('s_and_b32 s45, s40, 1')
        a('s_mul_i32 s46, s45, 384')
        a('s_add_u32 s44, s44, s46')
        a(f's_add_u32 s44, s44, {OG}')
        a('v_lshlrev_b32 v2, 10, v14')
        a('v_lshl_add_u32 v2, v5, 4, v2')
        a('v_add_u32 v2, s44, v2')
        a(f's_and_b32 s44, s40, {opt["R"]-1}')
        a('s_lshl_b32 s44, s44, 13')
        a('s_lshl_b32 s46, s43, 6')
        a('s_add_u32 s44, s44, s46')
        a(f's_add_u32 s44, s44, {ACC}')
        a('v_lshlrev_b32 v3, 11, v5')
        a('v_lshl_add_u32 v3, v14, 2, v3')
        a('v_add_u32 v3, s44, v3')
        a('v_cmp_eq_u32 vcc, 15, v14')
        a('v_lshlrev_b32 v8, 4, v5')
        a('v_add_u32 v8, 64, v8')
        a('v_cndmask_b32 v4, 0, 1.0, vcc')
        a('v_cmp_eq_u32 s[46:47], 1, v5')
        a(f'v_mov_b32 v9, {RDY}')
        a('v_lshl_add_u32 v9, v5, 2, v9')
        a(f's_mov_b32 s19, {SPIN}')
        lab('L_wr')
        a('global_load_dword v10, v9, s[32:33] sc1')
        a('s_sub_u32 s19, s19, 1')
        a('s_cbranch_scc1 L_exit')
        a('s_waitcnt vmcnt(0)')
        a('v_cmp_ne_u32 vcc, s6, v10')
        a('s_cbranch_vccz L_wr2')
        a('s_sleep 64')
        a('s_branch L_wr')
        lab('L_wr2')
        self.stamp(24)
        self.wait_lds('L_wd', L_CNT, f'v_cmp_gt_u32 vcc, {5 if self.opt["after"] else 4}, v7', 1)
        a('s_setprio 3')
        AF = 160
        a(f's_mov_b32 s19, {SPIN}')
        lab('L_wp')
        for kk in range(6):
            a(f'global_load_dwordx4 v[{AF+4*kk}:{AF+4*kk+3}], v2, s[32:33] offset:{64*kk} sc1')
        a('s_sub_u32 s19, s19, 1')
        a('s_cbranch_scc1 L_exit')
        for kk in range(6):
            a(f's_waitcnt vmcnt({5-kk})')
            if kk == 0:
                a(f'v_xor_b32 v9, s6, v{AF+3}')
            else:
                a(f'v_bitop3_b32 v9, v{AF+4*kk+3}, s6, v9 bitop3:0xbe')
        a('v_cmp_ne_u32 vcc, 0, v9')
        a('s_and_b64 exec, exec, vcc')
        if opt['psleep']:
            a('s_cbranch_execz L_wpx')
            a(f's_sleep {opt["psleep"]}')
            a('s_branch L_wp')
            lab('L_wpx')
        else:
            a('s_cbranch_execnz L_wp')
        a('s_mov_b64 exec, -1')
        self.stamp(26)
        D0 = 204
        LS = AF + 21

        def mf(kk):
            for t in range(3):
                d = D0 + 4 * t
                c = '0' if kk == 0 else f'v[{d}:{d+3}]'
                a(f'v_mfma_f32_16x16x32_bf16 v[{d}:{d+3}], v[{AF+4*kk}:{AF+4*kk+3}], v[{BF+12*kk+4*t}:{BF+12*kk+4*t+3}], {c}')
        a(f'v_mov_b32 v10, v{LS}')
        a(f'v_cndmask_b32 v{LS}, v{LS}, 0, s[46:47]')
        mf(0)
        a('v_max_f32_dpp v11, v10, v10 quad_perm:[1,0,3,2] row_mask:0xf bank_mask:0xf')
        mf(1)
        a('v_max_f32_dpp v11, v11, v11 quad_perm:[2,3,0,1] row_mask:0xf bank_mask:0xf')
        a('v_sub_f32 v10, v10, v11')
        a('v_exp_f32 v10, v10')
        mf(2)
        a('v_add_f32_dpp v11, v10, v10 quad_perm:[1,0,3,2] row_mask:0xf bank_mask:0xf')
        mf(3)
        a('v_add_f32_dpp v11, v11, v11 quad_perm:[2,3,0,1] row_mask:0xf bank_mask:0xf')
        a('v_rcp_f32 v11, v11')
        a('s_nop 0')
        a('v_mul_f32 v10, v10, v11')
        for r in range(4):
            a(f'ds_bpermute_b32 v{16+r}, v8, v10 offset:{4*r}')
        mf(4)
        mf(5)
        a('s_cmp_eq_u64 s[52:53], 0')
        a('s_waitcnt lgkmcnt(0)')
        self.nop(4)
        for t in range(3):
            a(f'v_fma_f32 v{20+t}, v16, v{D0+4*t}, v4')
            for r in range(1, 4):
                a(f'v_fmac_f32 v{20+t}, v{16+r}, v{D0+4*t+r}')
            if t == 2:
                a('s_cbranch_scc1 L_wend')
            a(f'global_atomic_add_f32 v3, v{20+t}, s[32:33] offset:{64*t}')
        lab('L_wend')
        if opt['stamps']:
            a('s_cmp_lg_u32 s34, 0')
            a('s_cbranch_scc1 L_exit')
            self.stamp(28)
            self.flush_stamps([(11, 24), (4, 26), (5, 28)])
            lab('L_wexit')
            a('s_cmp_lg_u32 s34, 0')
            a('s_cbranch_scc1 L_exit')
            for slot, v in ((9, 240), (10, 242), (17, 228), (19, 232), (20, 234), (21, 236))[:(2 if opt['probe'] else 6)]:
                self.unvstamp(v, 20)
                self.flush_stamps([(slot, 20)])
        a('s_endpgm')

    def consumer(self):
        a, lab = self.a, self.lab
        lab('L_cons')
        a('s_mov_b32 s36, s8')
        a('s_mov_b32 s37, s9')
        a('s_mov_b32 s38, 3584')
        a('s_mov_b32 s39, 0x20000')
        a('s_mov_b32 s40, s28')
        a('s_mov_b32 s41, s29')
        a('s_mov_b32 s42, 3584')
        a('s_mov_b32 s43, 0x20000')
        a('s_mul_i32 s44, s35, 896')
        a('s_lshl_b32 s18, s35, 11')
        a(f's_add_u32 s18, s18, {ACC}')
        a('v_lshl_add_u32 v224, v1, 4, s18')
        for rp in range(1, self.opt['R']):
            a(f'v_add_u32 v{224+rp}, {8192*rp}, v224')
        a('v_lshrrev_b32 v6, 2, v1')
        a('v_and_b32 v3, 3, v1')
        a('v_mul_u32_u24 v2, 28, v6')
        a('v_lshl_add_u32 v2, v3, 3, v2')
        for r in range(2):
            for ep in range(2):
                a(f'buffer_load_dword v{8+2*r+ep}, v2, s[36:39], s44 offen offset:{448*r+4*ep}')
        a('s_mov_b32 s46, 0x88888888')
        a('s_mov_b32 s47, 0x88888888')
        a(f's_mov_b32 s62, {f2u(1.0/448):#x}')
        a(f's_mov_b32 s63, {f2u(1e-5):#x}')
        for r, m in ((0, 0x2210), (1, 0x0844)):
            a(f'v_lshrrev_b32 v{60+r}, v6, {m}' if False else f's_mov_b32 s48, {m}')
            a(f'v_lshrrev_b32 v{60+r}, v6, s48')
            a(f'v_and_b32 v{60+r}, 1, v{60+r}')
            a(f'v_add_u32 v{60+r}, 1, v{60+r}')
            a(f'v_mul_u32_u24 v{60+r}, {32 // self.opt["R"]}, v{60+r}')
            a(f'v_cvt_f32_u32 v{60+r}, v{60+r}')
        a('s_waitcnt vmcnt(0)')
        XF = 12
        for i in range(4):
            self.unpack(XF + 2 * i, XF + 2 * i + 1, 8 + i)
        a(f'v_lshlrev_b32 v7, 4, v1')
        a(f'v_add_u32 v62, {TG}, v7')
        a('v_mul_u32_u24 v3, 12, v1')
        a(f'v_add_u32 v3, {L_TBL}, v3')
        TF = 160
        a(f's_mov_b32 s19, {SPIN}')
        lab('L_ct')
        for it in range(16):
            if it % 4 == 0 and it:
                a('v_add_u32 v62, 4096, v62')
            a(f'global_load_dwordx4 v[{TF+4*it}:{TF+4*it+3}], v62, s[32:33] offset:{1024*(it%4)} sc1')
        a('v_subrev_u32 v62, 12288, v62')
        a('s_sub_u32 s19, s19, 1')
        a('s_cbranch_scc1 L_exit')
        a('s_waitcnt vmcnt(0)')
        a(f'v_xor_b32 v9, s6, v{TF+3}')
        for it in range(1, 16):
            a(f'v_bitop3_b32 v9, v{TF+4*it+3}, s6, v9 bitop3:0xbe')
        a('v_cmp_ne_u32 vcc, 0, v9')
        a('s_cbranch_vccz L_ct2')
        a(f's_sleep {self.opt["tsleep"]}')
        a('s_branch L_ct')
        lab('L_ct2')
        for it in range(16):
            a(f'ds_write2_b32 v3, v{TF+4*it}, v{TF+4*it+1} offset0:0 offset1:1')
            a(f'ds_write_b32 v3, v{TF+4*it+2} offset:8')
            a(f'v_add_u32 v3, {768 if it != 7 else 768 + 65536 - 2 * NTH}, v3')
        self.stamp(24)
        A, A2 = 20, 176
        Y = 168
        a(f's_mov_b32 s51, {E0 << 23:#x}')
        a(f's_mov_b32 s56, {(E0 + 24) << 23:#x}')
        for i in range(8):
            a(f'v_mov_b32 v{Y+i}, 0')
        self.wait_lds('L_cd', L_CNT, f'v_cmp_gt_u32 vcc, {5 if self.opt["after"] else 4}, v7', 1)
        a('s_setprio 3')
        a(f's_mov_b32 s19, {SPIN}')
        R = self.opt['R']
        AR = [A] + [A2 + 8 * i for i in range(R - 1)]
        lab('L_cp')
        for rp in range(R):
            a(f'global_load_dwordx4 v[{AR[rp]}:{AR[rp]+3}], v{224+rp}, s[32:33] sc1')
            a(f'global_load_dwordx4 v[{AR[rp]+4}:{AR[rp]+7}], v{224+rp}, s[32:33] offset:1024 sc1')
        a('s_sub_u32 s19, s19, 1')
        a('s_cbranch_scc1 L_exit')
        a('s_mov_b64 s[48:49], s[46:47]')
        for rp in range(R):
            a(f's_waitcnt vmcnt({2*(R-1-rp)})')
            a(f'v_cmp_eq_f32 vcc, v60, v{AR[rp]+3}')
            a(f'v_cmp_eq_f32 s[52:53], v61, v{AR[rp]+7}')
            if rp:
                for i in range(4):
                    a(f'v_pk_add_f32 v[{A+2*i}:{A+2*i+1}], v[{A+2*i}:{A+2*i+1}], v[{AR[rp]+2*i}:{AR[rp]+2*i+1}]')
            a('s_and_b64 s[48:49], s[48:49], vcc')
            a('s_and_b64 s[48:49], s[48:49], s[52:53]')
        a('s_cmp_eq_u64 s[48:49], s[46:47]')
        a('s_cbranch_scc0 L_cp')
        self.stamp(26)
        P, Hh, Dd = 28, 32, 40
        S1, S2, MO, RO = 48, 50, 54, 56
        for i in range(8):
            self.bf16r(A + i, A + i)
        for i in range(4):
            a(f'v_pk_add_f32 v[{A+2*i}:{A+2*i+1}], v[{A+2*i}:{A+2*i+1}], v[{XF+2*i}:{XF+2*i+1}]')
        for i in range(8):
            self.bf16r(Hh + i, A + i)

        def sums(src, piv):
            if piv:
                a(f'v_readfirstlane_b32 s50, v{src}')
                a('s_nop 1')
                for i in range(4):
                    a(f'v_pk_add_f32 v[{Dd+2*i}:{Dd+2*i+1}], v[{src+2*i}:{src+2*i+1}], s[50:51] op_sel_hi:[1,0] neg_lo:[0,1] neg_hi:[0,1]')
                s = Dd
            else:
                s = src
            for i in (2, 3, 6, 7):
                a(f'v_cndmask_b32 v{Dd+i}, v{s+i}, 0, s[46:47]')
            idx = [s, s + 4, Dd + 2, Dd + 6]
            pr = lambda r: f'v[{r}:{r+1}]'
            a(f'v_pk_add_f32 {pr(S1)}, {pr(idx[0])}, {pr(idx[1])}')
            a(f'v_pk_mul_f32 {pr(S2)}, {pr(idx[0])}, {pr(idx[0])}')
            a(f'v_pk_add_f32 {pr(S1)}, {pr(S1)}, {pr(idx[2])}')
            a(f'v_pk_fma_f32 {pr(S2)}, {pr(idx[1])}, {pr(idx[1])}, {pr(S2)}')
            a(f'v_pk_add_f32 {pr(S1)}, {pr(S1)}, {pr(idx[3])}')
            a(f'v_pk_fma_f32 {pr(S2)}, {pr(idx[2])}, {pr(idx[2])}, {pr(S2)}')
            a(f'v_add_f32 v{S1}, v{S1}, v{S1+1}')
            a(f'v_pk_fma_f32 {pr(S2)}, {pr(idx[3])}, {pr(idx[3])}, {pr(S2)}')
            a(f'v_add_f32 v{S2}, v{S2}, v{S2+1}')
            self.ladder64([S1, S2], [S1 + 1, S2 + 1])
            self.ln_stats(S1, S2, 's50' if piv else None, 58, 59, 62, 63, MO, RO)

        def norm(src, dst):
            for i in range(4):
                a(f'v_pk_add_f32 v[{dst+2*i}:{dst+2*i+1}], v[{src+2*i}:{src+2*i+1}], v[{MO}:{MO+1}] op_sel_hi:[1,0] neg_lo:[0,1] neg_hi:[0,1]')
            for i in range(8):
                self.bf16r(dst + i, dst + i)
            for i in range(4):
                a(f'v_pk_mul_f32 v[{dst+2*i}:{dst+2*i+1}], v[{dst+2*i}:{dst+2*i+1}], v[{RO}:{RO+1}] op_sel_hi:[1,0]')
            for i in range(8):
                self.bf16r(dst + i, dst + i)

        sums(Hh, True)
        norm(Hh, A)
        sums(A, False)
        norm(A, A)
        for i in range(8):
            a(f'v_lshrrev_b32 v{Dd+i}, 15, v{A+i}')
        for i in range(8):
            a(f'ds_read_u16_d16_hi v{Y+i}, v{Dd+i}')
        for i in (2, 3, 6, 7):
            a(f'v_cndmask_b32 v{A+i}, v{A+i}, 1.0, s[46:47]')
        a(f'v_min3_f32 v48, |v{A}|, |v{A+1}|, |v{A+2}|')
        a(f'v_max3_f32 v49, |v{A}|, |v{A+1}|, |v{A+2}|')
        a(f'v_min3_f32 v48, v48, |v{A+3}|, |v{A+4}|')
        a(f'v_max3_f32 v49, v49, |v{A+3}|, |v{A+4}|')
        a(f'v_min3_f32 v48, v48, |v{A+5}|, |v{A+6}|')
        a(f'v_max3_f32 v49, v49, |v{A+5}|, |v{A+6}|')
        a(f'v_min_f32 v48, v48, |v{A+7}|')
        a(f'v_max_f32 v49, v49, |v{A+7}|')
        a(f'v_mul_f32 v50, v{RO}, v{MO}')
        a('v_cmp_gt_f32 vcc, s51, v48')
        a('v_cmp_le_f32 s[52:53], s56, v49')
        a('v_cmp_u_f32 s[54:55], v50, v50')
        a('s_or_b64 vcc, vcc, s[52:53]')
        a('s_or_b64 vcc, vcc, s[54:55]')
        a('s_waitcnt lgkmcnt(0)')
        a('s_cbranch_vccnz L_cslow')
        lab('L_cfin')
        for i in range(4):
            a(f'v_pk_add_f32 v[{Y+2*i}:{Y+2*i+1}], v[{Y+2*i}:{Y+2*i+1}], v[{Hh+2*i}:{Hh+2*i+1}]')
        for i in range(4):
            a(f'v_cvt_pk_bf16_f32 v{P+i}, v{Y+2*i}, v{Y+2*i+1}')
        of = self.opt['outf']
        a(f'buffer_store_dword v{P}, v2, s[40:43], s44 offen {of}')
        a(f'buffer_store_dword v{P+2}, v2, s[40:43], s44 offen offset:448 {of}')
        a('s_andn2_b64 exec, exec, s[46:47]')
        a(f'buffer_store_dword v{P+1}, v2, s[40:43], s44 offen offset:4 {of}')
        a(f'buffer_store_dword v{P+3}, v2, s[40:43], s44 offen offset:452 {of}')
        self.stamp(28)
        if self.opt['fix']:
            a('s_and_b32 s96, s6, 0x3fff')
            a('s_lshr_b32 s97, s6, 2')
            a('s_and_b32 s97, s97, 0x0fffc000')
            a('s_or_b32 s96, s96, s97')
            lab('L_fix')
            a('s_memrealtime s[94:95]')
            a('s_waitcnt lgkmcnt(0)')
            a('s_sub_u32 s94, s94, s96')
            a('s_and_b32 s94, s94, 0x0fffffff')
            a(f's_cmp_lt_u32 s94, {self.opt["fix"]}')
            a('s_cbranch_scc1 L_fix')
        self.flush_stamps([(12, 24), (13, 26), (14, 28)])
        a('s_endpgm')
        lab('L_cslow')
        a(f's_mov_b32 s57, {E0 << 23:#x}')
        a(f's_mov_b32 s58, {24 << 23:#x}')
        for i in range(8):
            u = self.u()
            a(f'v_and_b32 v48, 0x7fffffff, v{A+i}')
            a('v_subrev_u32 v48, s57, v48')
            a('v_cmp_le_u32 s[52:53], s58, v48')
            lab(f'L_cs{u}')
            a('s_cmp_eq_u64 s[52:53], 0')
            a(f's_cbranch_scc1 L_ce{u}')
            a('s_ff1_i32_b64 s54, s[52:53]')
            a('s_bitset0_b64 s[52:53], s54')
            a(f'v_readlane_b32 s70, v{A+i}, s54')
            a('s_nop 0')
            a('s_mov_b32 s71, s70')
            a('s_nop 0')
            a('s_call_b64 s[76:77], L_eval')
            a('s_nop 0')
            a('v_readfirstlane_b32 s55, v153')
            a('s_mov_b32 m0, s54')
            a('s_lshl_b32 s55, s55, 16')
            a('s_nop 3')
            a(f'v_writelane_b32 v{Y+i}, s55, m0')
            a(f's_branch L_cs{u}')
            lab(f'L_ce{u}')
        a('s_branch L_cfin')

    def build(self):
        a, lab = self.a, self.lab
        o = self.o
        o.append(HEADER.rstrip('\n'))
        o.append(f'; @launch grid=(256,1,1) block=(512,1,1) lds={L_END}')
        o.append(DOC.rstrip('\n'))
        o.append('.amdgcn_target "amdgcn-amd-amdhsa--gfx950"')
        o.append('.text')
        o.append(f'.globl {KN}')
        o.append('.p2align 8')
        o.append(f'.type {KN},@function')
        lab(KN)
        a('s_cmp_ge_u32 s2, 256')
        a('s_cbranch_scc1 L_exit')
        a('s_memrealtime s[98:99]')
        a('s_load_dwordx16 s[8:23], s[0:1], 0')
        a('s_load_dwordx8 s[24:31], s[0:1], 64')
        a('s_load_dwordx2 s[32:33], s[0:1], 96')
        a('v_lshrrev_b32 v1, 6, v0')
        a('s_lshr_b32 s7, s2, 3')
        a('v_readfirstlane_b32 s3, v1')
        if self.opt['gmap'] == 0:
            a('s_lshr_b32 s4, s2, 2')
        elif self.opt['gmap'] == 1:
            a('s_bfe_u32 s4, s2, 0x10001')
            a('s_lshl1_add_u32 s4, s7, s4')
        else:
            a('s_lshr_b32 s4, s2, 1')
            a('s_xor_b32 s4, s4, s2')
            a('s_and_b32 s4, s4, 1')
            a('s_lshl1_add_u32 s4, s7, s4')
        self.member(5, 6)
        a('s_xor_b32 s7, s7, s5')
        a('s_and_b32 s7, s7, 3')
        a('s_cmp_eq_u32 s7, 0')
        a('s_cselect_b32 s5, 1, 0')
        a('s_cmp_ge_u32 s3, 4')
        a('s_cbranch_scc1 L_helper')
        self.streamer()
        lab('L_helper')
        self.helper()
        lab('L_exit')
        a('s_endpgm')
        o.append('.section .rodata,"a"')
        o.append('.p2align 6')
        o.append(f'.amdhsa_kernel {KN}')
        o.append('  .amdhsa_next_free_vgpr 256')
        o.append('  .amdhsa_next_free_sgpr 102')
        o.append('  .amdhsa_accum_offset 256')
        o.append('  .amdhsa_group_segment_fixed_size 0')
        o.append('  .amdhsa_kernarg_size 104')
        o.append('  .amdhsa_user_sgpr_count 2')
        o.append('  .amdhsa_user_sgpr_kernarg_segment_ptr 1')
        o.append('  .amdhsa_system_sgpr_workgroup_id_x 1')
        o.append('.end_amdhsa_kernel')
        return '\n'.join(o) + '\n'


if __name__ == '__main__':
    out = sys.argv[1]
    opt = eval(sys.argv[2]) if len(sys.argv) > 2 else {}
    open(out, 'w').write(G(**opt).build())
```

```python
import sys, struct, math

KN = 'sequential_preLN__mha_block_cached__mixer_token_mlp__decode_kernel'
HEADER = open('sequential_preLN__mha_block_cached__mixer_token_mlp__decode.s.ref').read().split('; Override launch')[0]


def f2u(x):
    return struct.unpack('<I', struct.pack('<f', x))[0]


QG, OG, TG, TK, RDY, ACC = 0x0, 0x10000, 0x50000, 0x54000, 0x58000, 0x60000
STAMP = 256 << 20
E0 = 108
NTH = 3072
L_FLG, L_CNT, L_WOF, L_HDR, L_QL, L_FL2 = 0, 16, 20, 32, 64, 576
L_XN, L_OW, L_QP = 2048, 6144, 10752
L_TBL = 2 * (E0 << 7)
L_WOS = 34048
L_END = L_TBL + 65536 + 2 * NTH
RS = 144
LOG2E = 1.4426950408889634
SPIN = 1 << 18
FRESH = 1500
GRACE = 200

DOC = '''; Single fused launch, 256 workgroups x 8 waves (one workgroup per CU).
'''


class G:
    def __init__(self, **opt):
        self.o = []
        self.opt = dict(stamps=False, wqf='nt', wof='nt', kvf='nt', vf=None, pace=12, LA=12, setC=True, NST=13, TP=8,
                        psleep=0, HALF=False, outf='', tsleep=127, fix=0, exp='', pdelay=True, hs0=16, qsleep=1, R=2, pbar=3, early=True, swin=16, ILV=True, NF=0, gmap=1, after=True, ptrs=False, probe=0, P16=False, spec=False)
        self.opt.update(opt)
        self.uid = 0

    def a(self, s):
        self.o.append('  ' + s)

    def lab(self, s):
        self.o.append(s + ':')

    def u(self):
        self.uid += 1
        return self.uid

    def nop(self, n):
        if n > 0:
            self.a(f's_nop {n-1}')

    def stamp(self, sreg):
        if self.opt['stamps']:
            self.a(f's_memrealtime s[{sreg}:{sreg+1}]')

    def vstamp(self, v):
        if self.opt['stamps']:
            self.a('s_memrealtime s[18:19]')
            self.a('s_waitcnt lgkmcnt(0)')
            self.a(f'v_mov_b32 v{v}, s18')
            self.a(f'v_mov_b32 v{v+1}, s19')

    def unvstamp(self, v, sreg):
        if self.opt['stamps']:
            self.a(f'v_readfirstlane_b32 s{sreg}, v{v}')
            self.a(f'v_readfirstlane_b32 s{sreg+1}, v{v+1}')
            self.a('s_nop 1')

    def flush_stamps(self, pairs, vt=250):
        if not self.opt['stamps']:
            return
        a = self.a
        a('s_waitcnt lgkmcnt(0)')
        a('s_mov_b64 exec, 1')
        a('s_lshl_b32 s7, s2, 8')
        a(f's_add_u32 s7, s7, {STAMP}')
        a(f'v_mov_b32 v{vt+2}, s7')
        for slot, sreg in pairs:
            a(f'v_mov_b32 v{vt}, s{sreg}')
            a(f'v_mov_b32 v{vt+1}, s{sreg+1}')
            a(f'global_store_dwordx2 v{vt+2}, v[{vt}:{vt+1}], s[32:33] offset:{8*slot}')
            a('s_nop 1')

    def fresh(self, ts, t0, t1):
        a = self.a
        a(f's_and_b32 s{t0}, s6, 0x3fff')
        a(f's_lshr_b32 s{t1}, s6, 2')
        a(f's_and_b32 s{t1}, s{t1}, 0x0fffc000')
        a(f's_or_b32 s{t0}, s{t0}, s{t1}')
        a(f's_sub_u32 s{t0}, s{t0}, s{ts}')
        a(f's_add_u32 s{t0}, s{t0}, {FRESH}')
        a(f's_bfe_u32 s{t0}, s{t0}, 0x1001b')
        a(f's_bfe_u32 s{t1}, s6, 0x1000f')
        a(f's_cmp_gt_u32 s{t1}, s{t0}')

    def tag_slow(self, name, ok, ts, t0, t1, cnt, va, vb):
        a, lab = self.a, self.lab
        a(f's_mov_b32 s{cnt}, {SPIN}')
        a(f'v_mov_b32 v{va}, 0')
        lab(name)
        a(f'global_load_dword v{vb}, v{va}, s[30:31] sc1')
        a(f's_sub_u32 s{cnt}, s{cnt}, 1')
        a('s_cbranch_scc1 L_exit')
        a('s_waitcnt vmcnt(0)')
        a(f'v_readfirstlane_b32 s6, v{vb}')
        a('s_nop 0')
        self.fresh(ts, t0, t1)
        a(f's_cbranch_scc1 {ok}')
        a(f's_cmp_gt_u32 s{cnt}, {SPIN - GRACE}')
        a(f's_cbranch_scc1 {name}')
        a('s_cmp_eq_u32 s6, 0')
        a(f's_cbranch_scc1 {name}')
        a(f's_branch {ok}')

    def flags4(self, v):
        a = self.a
        a(f'v_xor_b32 v{v}, s6, v{v}')
        for i in (1, 2, 3):
            a(f'v_bitop3_b32 v{v}, v{v+i}, s6, v{v} bitop3:0xbe')
        a(f'v_cmp_eq_u32 vcc, 0, v{v}')

    def bf16r(self, dst, src):
        self.a(f'v_cvt_pk_bf16_f32 v{dst}, 0, v{src}')

    def unpack(self, lo, hi, p):
        self.a(f'v_lshlrev_b32 v{lo}, 16, v{p}')
        self.a(f'v_and_b32 v{hi}, 0xffff0000, v{p}')

    def ladder64(self, regs, tmps, op='v_add_f32'):
        a = self.a
        n = len(regs)
        for ror in (8, 4, 2, 1):
            self.nop(max(0, 2 - (n - 1)))
            for r in regs:
                a(f'{op}_dpp v{r}, v{r}, v{r} row_ror:{ror} row_mask:0xf bank_mask:0xf')
        for sw in ('v_permlane16_swap_b32', 'v_permlane32_swap_b32'):
            for r, t in zip(regs, tmps):
                a(f'v_mov_b32 v{t}, v{r}')
            self.nop(max(0, 2 - (n - 1)))
            for r, t in zip(regs, tmps):
                a(f'{sw} v{r}, v{t}')
            for r, t in zip(regs, tmps):
                a(f'{op} v{r}, v{r}, v{t}')

    def ln_stats(self, s1, s2, piv, t0, t1, sinv, seps, mout, rout):
        a = self.a
        a(f'v_mul_f32 v{s1}, s{sinv}, v{s1}')
        a(f'v_mul_f32 v{t0}, v{s1}, v{s1}')
        a(f'v_fma_f32 v{s2}, v{s2}, s{sinv}, -v{t0}')
        if piv is not None:
            a(f'v_add_f32 v{s1}, {piv}, v{s1}')
        a(f'v_max_f32 v{s2}, 0, v{s2}')
        self.bf16r(t1, s2)
        self.bf16r(mout, s1)
        a(f'v_add_f32 v{t1}, s{seps}, v{t1}')
        self.bf16r(t1, t1)
        a(f'v_sqrt_f32 v{t1}, v{t1}')
        a('s_nop 0')
        self.bf16r(t1, t1)
        a(f'v_rcp_f32 v{rout}, v{t1}')
        a('s_nop 0')

    def member(self, dst, tmp):
        a = self.a
        if self.opt['gmap'] == 0:
            a(f's_and_b32 s{dst}, s2, 3')
        elif self.opt['gmap'] == 1:
            a(f's_bfe_u32 s{tmp}, s2, 0x10002')
            a(f's_and_b32 s{dst}, s2, 1')
            a(f's_lshl1_add_u32 s{dst}, s{tmp}, s{dst}')
        else:
            a(f's_bfe_u32 s{tmp}, s2, 0x10002')
            a(f's_and_b32 s{dst}, s2, 1')
            a(f's_lshl1_add_u32 s{dst}, s{tmp}, s{dst}')

    def cstep(self):
        return 0x20000 if self.opt['ILV'] else 0x8000

    def ld(self, R, n, sreg):
        j = n & 7
        srd = 's[36:39]' if n < 8 else 's[40:43]'
        fl = self.opt['kvf'] if (n < 8 or self.opt['vf'] is None) else self.opt['vf']
        self.a(f'buffer_load_dwordx4 v[{R+4*n}:{R+4*n+3}], v{2+j}, {srd}, s{sreg} offen {fl}')

    def chunk(self, R, issue, wait):
        a = self.a
        LA, NST, TP, HALF = self.opt['LA'], self.opt['NST'], self.opt['TP'], self.opt['HALF']
        pool0 = 4 * NST * 0x8000
        npool = (16 - NST) * 16 * (2 if HALF else 1) - (self.opt['NF'] if HALF else 0)

        def hooks(n):
            if NST < 16 and n == (16 - LA - TP) % 16:
                u = self.u()
                wrap = 16 - LA - TP < 0
                a(f's_cmp_gt_u32 s45, {2 if wrap else 1}')
                a(f's_cbranch_scc1 L_nt{u}')
                if wrap:
                    a('s_cmp_ge_u32 s44, 0x200000')
                    a(f's_cbranch_scc1 L_nt{u}')
                a('s_mov_b32 s50, 1')
                a('s_mov_b32 s51, 0')
                a('s_atomic_add_x2 s[50:51], s[52:53], 0x0 glc')
                self.lab(f'L_nt{u}')
            if n == 16 - LA:
                u = self.u()
                a(f's_add_u32 s44, s47, {self.cstep():#x}')
                a('s_cmp_gt_u32 s45, 1')
                a(f's_cbranch_scc1 L_st{u}')
                if NST < 16:
                    a('s_waitcnt lgkmcnt(0)')
                    a('s_cmp_lg_u32 s51, s6')
                    a('s_cbranch_scc1 L_tkretry')
                    self.lab('L_tkok')
                    NF = self.opt['NF']
                    if HALF and NF:
                        a('s_lshr_b32 s48, s50, 2')
                        a(f's_min_u32 s49, s48, {NF // 4}')
                        a('s_add_u32 s48, s48, s49')
                        a('s_lshl_b32 s48, s48, 14')
                        a(f's_add_u32 s38, s48, {pool0 + 0x4000}')
                        a('s_min_u32 s38, s38, 0x200000')
                        a(f's_cmp_lt_u32 s50, {NF}')
                        a('s_cselect_b32 s38, 0x200000, s38')
                        a('s_cselect_b32 s62, 0, 0xffff0000')
                    elif self.opt['P16']:
                        a('s_lshr_b32 s48, s50, 4')
                        a('s_lshl_b32 s48, s48, 17')
                        a('s_bfe_u32 s49, s50, 0x20002')
                        a('s_lshl_b32 s49, s49, 14')
                        a('s_add_u32 s48, s48, s49')
                    else:
                        a('s_lshr_b32 s48, s50, 2')
                        a(f's_lshl_b32 s48, s48, {14 if HALF else 15}')
                        if HALF:
                            a(f's_add_u32 s38, s48, {pool0 + 0x4000}')
                            a('s_min_u32 s38, s38, 0x200000')
                            a('s_mov_b32 s62, 0xffff0000')
                    a('s_and_b32 s49, s50, 3')
                    a('s_lshl_b32 s49, s49, 10')
                    a('s_add_u32 s48, s48, s49')
                    a('s_add_u32 s48, s48, s54')
                    a(f's_cmp_lt_u32 s50, {npool}')
                    a('s_cselect_b32 s44, s48, 0x200000')
                    if self.opt['stamps']:
                        u2 = self.u()
                        a(f's_cbranch_scc0 L_dg{u2}')
                        a('s_memrealtime s[94:95]')
                        a('s_add_u32 s96, s96, 1')
                        a('s_waitcnt lgkmcnt(0)')
                        self.lab(f'L_dg{u2}')
                else:
                    a('s_mov_b32 s44, 0x200000')
                self.lab(f'L_st{u}')
            if HALF and n == (24 - LA) % 16:
                a('s_mov_b32 s42, s38')

        def iss(n):
            if issue:
                hooks(n)
                t = n + LA
                if t < 16:
                    self.ld(R, t, 47)
                else:
                    self.ld(R, t - 16, 44)

        Q, AC, S = 10, 14, 22
        X, C, C2, MN, AL, E, E1, PA0, PB0, PA1, PB1 = 30, 31, 32, 33, 34, 35, 36, 37, 38, 39, 42
        M, L = 40, 41
        SU, SU2 = 43, 44
        for j in range(8):
            if wait:
                a(f's_waitcnt vmcnt({LA-1})')
            k = R + 4 * j
            a(f'v_dot2_f32_bf16 v{S+j}, v{k}, v{Q}, 0')
            for i in range(1, 4):
                a(f'v_dot2_f32_bf16 v{S+j}, v{k+i}, v{Q+i}, v{S+j}')
            iss(j)
        for p in range(4):
            a(f'v_add_f32_dpp v{S+2*p}, v{S+2*p}, v{S+2*p} row_ror:8 row_mask:0xf bank_mask:0x3')
            a(f'v_add_f32_dpp v{S+2*p}, v{S+2*p+1}, v{S+2*p+1} row_ror:8 row_mask:0xf bank_mask:0xc')
        for p in (0, 4):
            a(f'v_add_f32_dpp v{S+p}, v{S+p}, v{S+p} row_half_mirror row_mask:0xf bank_mask:0x5')
            a(f'v_add_f32_dpp v{S+p}, v{S+p+2}, v{S+p+2} row_half_mirror row_mask:0xf bank_mask:0xa')
        self.nop(2)
        a(f'v_permlane16_swap_b32 v{S}, v{S+4}')
        a(f'v_add_f32 v{S}, v{S}, v{S+4}')
        self.nop(2)
        a(f'v_add_f32_dpp v{S}, v{S}, v{S} quad_perm:[1,0,3,2] row_mask:0xf bank_mask:0xf')
        self.nop(2)
        a(f'v_add_f32_dpp v{S}, v{S}, v{S} quad_perm:[2,3,0,1] row_mask:0xf bank_mask:0xf')
        self.bf16r(X, S)
        if HALF and issue:
            a(f'v_cndmask_b32 v{X}, v{X}, v254, s[56:57]')
        self.nop(2)
        a(f'v_max_f32_dpp v{C}, v{X}, v{X} row_ror:8 row_mask:0xf bank_mask:0xf')
        self.nop(2)
        a(f'v_max_f32_dpp v{C}, v{C}, v{C} row_half_mirror row_mask:0xf bank_mask:0xf')
        for sw in ('v_permlane16_swap_b32', 'v_permlane32_swap_b32'):
            a(f'v_mov_b32 v{C2}, v{C}')
            self.nop(2)
            a(f'{sw} v{C}, v{C2}')
            a(f'v_max_f32 v{C}, v{C}, v{C2}')
        a(f'v_mul_f32 v{C}, s46, v{C}')
        a(f'v_max_f32 v{MN}, v{M}, v{C}')
        a(f'v_fma_f32 v{E}, v{X}, s46, -v{MN}')
        a(f'v_sub_f32 v{AL}, v{M}, v{MN}')
        a(f'v_exp_f32 v{E}, v{E}')
        a(f'v_exp_f32 v{AL}, v{AL}')
        a(f'v_mov_b32 v{M}, v{MN}')
        a(f'v_mov_b32 v{E1}, v{E}')
        for i in range(2):
            a(f'v_mul_f32 v{AC+i}, v{AC+i}, v{AL}')
        a(f'v_permlane16_swap_b32 v{E}, v{E1}')
        for i in range(2, 8):
            a(f'v_mul_f32 v{AC+i}, v{AC+i}, v{AL}')
        a(f'v_cvt_pk_bf16_f32 v{PA0}, v{E}, 0')
        a(f'v_cvt_pk_bf16_f32 v{PB0}, 0, v{E}')
        a(f'v_cvt_pk_bf16_f32 v{PA1}, v{E1}, 0')
        a(f'v_cvt_pk_bf16_f32 v{PB1}, 0, v{E1}')
        a(f'v_add_f32 v{SU}, v{E}, v{E1}')
        a(f'v_mul_f32 v{L}, v{L}, v{AL}')
        extra = [
            [f'v_add_f32_dpp v{SU}, v{SU}, v{SU} row_ror:8 row_mask:0xf bank_mask:0xf'],
            [f'v_add_f32_dpp v{SU}, v{SU}, v{SU} row_half_mirror row_mask:0xf bank_mask:0xf'],
            [f'v_mov_b32 v{SU2}, v{SU}'],
            [f'v_permlane32_swap_b32 v{SU}, v{SU2}', f'v_add_f32 v{L}, v{L}, v{SU}', f'v_add_f32 v{L}, v{L}, v{SU2}'],
        ]
        for j in range(8):
            if wait:
                a(f's_waitcnt vmcnt({LA-1})')
            v = R + 32 + 4 * j
            pa, pb = (PA0, PB0) if j < 4 else (PA1, PB1)
            n = 8 * (j & 1) + 4 * ((j >> 1) & 1)
            for i in range(4):
                a(f'v_dot2c_f32_bf16_dpp v{AC+2*i}, v{pa}, v{v+i} row_newbcast:{n} row_mask:0xf bank_mask:0xf')
                a(f'v_dot2c_f32_bf16_dpp v{AC+2*i+1}, v{pb}, v{v+i} row_newbcast:{n} row_mask:0xf bank_mask:0xf')
            iss(8 + j)
            if j < len(extra):
                for s in extra[j]:
                    a(s)

    def issue_set(self, R, done=0, cnt=16):
        for n in range(cnt):
            if self.opt['pace'] and done + n >= self.opt['pace']:
                self.a(f's_waitcnt vmcnt({self.opt["pace"]-1})')
            self.ld(R, n, 44)

    def streamer(self):
        a, lab = self.a, self.lab
        opt = self.opt
        RA, RB, RC = 48, 112, 176
        NST, setC = opt['NST'], opt['setC']
        a('v_lshlrev_b32 v2, 4, v0')
        for j in range(1, 8):
            a(f'v_add_u32 v{2+j}, {(j & 3) * 4096 + (j >> 2) * 65536 if opt["P16"] else 4096 * j}, v2')
        a('s_lshl_b32 s7, s4, 21')
        a('s_mov_b32 s38, 0x200000')
        a('s_mov_b32 s39, 0x20000')
        a('s_mov_b32 s42, 0x200000')
        a('s_mov_b32 s43, 0x20000')
        self.member(44, 45)
        a(f's_mul_i32 s44, s44, {0x4000 if opt["P16"] else 0x8000 if opt["ILV"] else NST*0x8000}')
        a('s_or_b32 s47, s2, s3')
        a('v_lshlrev_b32 v11, 6, v0')
        a('s_waitcnt lgkmcnt(0)')
        a('s_cmp_lg_u32 s47, 0')
        a('s_cbranch_scc1 L_sn0')
        a('s_and_b32 s49, s98, 0x3fff')
        a('s_lshl_b32 s48, s98, 2')
        a('s_and_b32 s48, s48, 0x3fff0000')
        a('s_or_b32 s48, s48, s49')
        a('s_or_b32 s48, s48, 0x8000')
        a('v_mov_b32 v10, s48')
        a('s_mov_b64 exec, 15')
        a('global_store_dword v11, v10, s[30:31] sc1')
        if opt['ptrs']:
            a('s_mov_b64 exec, 1')
            a('v_mov_b32 v12, 0')
            for i, r in enumerate((8, 10, 12, 14, 16, 28, 30, 32, 11, 13, 33)):
                a(f'v_mov_b32 v13, s{r}')
                a(f'global_store_dword v12, v13, s[30:31] offset:{16+4*i}')
                a('s_nop 1')
        a('s_mov_b64 exec, -1')
        lab('L_sn0')
        a('s_add_u32 s36, s10, s7')
        a('s_addc_u32 s37, s11, 0')
        a('s_add_u32 s40, s12, s7')
        a('s_addc_u32 s41, s13, 0')
        if opt['pdelay']:
            a('s_cmp_eq_u32 s5, 0')
            a('s_cbranch_scc1 L_spd')
            a('s_barrier')
            lab('L_spd')
        self.issue_set(RB)
        done = 16
        if setC:
            a(f's_add_u32 s44, s44, {self.cstep():#x}')
            self.issue_set(RC, done)
            done += 16
        a(f's_add_u32 s44, s44, {self.cstep():#x}')
        a('s_load_dword s6, s[30:31], 192')
        self.issue_set(RA, done, opt['LA'])
        a('s_mov_b32 s47, s44')
        a('s_lshl_b32 s48, s4, 8')
        a(f's_add_u32 s48, s48, {TK}')
        a('s_add_u32 s52, s32, s48')
        a('s_addc_u32 s53, s33, 0')
        a('s_lshl_b32 s54, s3, 10')
        a(f's_sub_u32 s54, {4*NST*0x8000}, s54')
        a('s_setprio 2')
        for i in range(8):
            a(f'v_mov_b32 v{14+i}, 0')
        a('v_mov_b32 v40, 0xff800000')
        a('v_mov_b32 v41, 0')
        a(f's_mov_b32 s46, {f2u(LOG2E/16.0):#x}')
        niter = NST - (2 if setC else 1)
        a(f's_mov_b32 s45, {niter}')
        a('s_mov_b64 s[56:57], 0')
        a('s_mov_b32 s62, 0')
        a('v_mov_b32 v254, 0xff800000')
        a('v_and_b32 v253, 63, v0')
        a('v_cmp_le_u32 vcc, 24, v253')
        a('v_and_b32 v45, 31, v0')
        a('v_lshlrev_b32 v247, 4, v45')
        a('v_cndmask_b32 v30, 0, 24, vcc')
        a('v_sub_u32 v30, v253, v30')
        a('v_mul_u32_u24 v249, 24, v30')
        a('v_cndmask_b32 v31, 0, 1, vcc')
        a('v_lshl_add_u32 v249, v31, 9, v249')
        a('v_cmp_eq_u32 s[58:59], 21, v30')
        a('v_cmp_gt_u32 s[60:61], 21, v30')
        a('v_cmp_gt_u32 s[64:65], 22, v30')
        a('v_lshlrev_b32 v46, 5, v45')
        a('v_bfe_u32 v30, v0, 5, 1')
        a('v_lshl_add_u32 v46, v30, 4, v46')
        a('s_lshl_b32 s7, s3, 10')
        a('v_add_u32 v46, s7, v46')
        a('s_lshl_b32 s7, s3, 3')
        a('v_mov_b32 v45, s7')
        a('s_and_b32 s48, s4, 15')
        a('s_lshl_b32 s48, s48, 4')
        a('s_lshr_b32 s49, s4, 4')
        a('s_lshl2_add_u32 s48, s49, s48')
        self.member(49, 7)
        a('s_add_u32 s48, s48, s49')
        a('s_lshl_b32 s48, s48, 10')
        a(f's_add_u32 s48, s48, {OG}')
        a('v_lshl_add_u32 v248, v253, 4, s48')
        a('v_mov_b32 v30, 0')
        self.stamp(80)
        a('s_waitcnt lgkmcnt(0)')
        self.fresh(98, 48, 49)
        a('s_cbranch_scc0 L_snw')
        lab('L_snok')
        a(f's_mov_b32 s48, {SPIN}')
        a('v_mov_b32 v47, s6')
        a('s_branch L_sqw')
        lab('L_sqs')
        a('s_sleep 1')
        lab('L_sqw')
        a(f'ds_read_b128 v[32:35], v30 offset:{L_FL2}')
        a(f'ds_read_b128 v[10:13], v247 offset:{L_QL}')
        a('s_sub_u32 s48, s48, 1')
        a('s_cbranch_scc1 L_exit')
        a('s_waitcnt lgkmcnt(0)')
        self.flags4(32)
        a('s_cbranch_vccz L_sqs')
        self.stamp(82)
        if opt['stamps']:
            a('s_memtime s[90:91]')
            a('s_mov_b32 s96, 0')
            a('s_mov_b32 s97, 0')
            a('s_mov_b64 s[94:95], s[98:99]')
        lab('L_sloop')
        self.chunk(RA, True, True)
        a('s_mov_b32 s47, s44')
        if opt['HALF']:
            a('s_mov_b32 s56, s62')
            a('s_mov_b32 s57, s62')
        a(f's_cmp_eq_u32 s45, {niter}')
        a('s_cbranch_scc1 L_sB')
        if setC:
            a(f's_cmp_eq_u32 s45, {niter-1}')
            a('s_cbranch_scc1 L_sC')
        lab('L_sback')
        a('s_sub_u32 s45, s45, 1')
        a('s_max_i32 s45, s45, 1')
        a('s_cmp_lt_u32 s47, 0x200000')
        a('s_cbranch_scc1 L_sloop')
        self.stamp(84)
        if opt['stamps']:
            a('s_memtime s[92:93]')
        AC = 14
        a('s_waitcnt lgkmcnt(0)')
        a('v_mov_b32 v31, 0')
        a('v_mov_b32 v32, 1')
        for i in range(4):
            a(f'v_permlane32_swap_b32 v{AC+i}, v{AC+4+i}')
        for i in range(4):
            a(f'v_add_f32 v{AC+i}, v{AC+i}, v{AC+4+i}')
        a(f'ds_write_b128 v46, v[{AC}:{AC+3}] offset:{L_OW}')
        a(f'ds_write_b64 v45, v[40:41] offset:{L_HDR}')
        a('s_mov_b64 exec, 1')
        a(f'ds_add_rtn_u32 v33, v31, v32 offset:{L_CNT}')
        a('s_mov_b64 exec, -1')
        H, D = 236, 212
        a(f'ds_read_b128 v[{H}:{H+3}], v31 offset:{L_HDR}')
        a(f'ds_read_b128 v[{H+4}:{H+7}], v31 offset:{L_HDR+16}')
        for w in range(4):
            for e in range(3):
                a(f'ds_read_b64 v[{D+6*w+2*e}:{D+6*w+2*e+1}], v249 offset:{L_OW+1024*w+8*e}')
        a('s_waitcnt lgkmcnt(14)')
        a('v_readfirstlane_b32 s7, v33')
        a('s_nop 0')
        a('s_cmp_lg_u32 s7, 3')
        a('s_cbranch_scc1 L_sexit' if opt['stamps'] else 's_cbranch_scc1 L_exit')
        a('s_waitcnt lgkmcnt(12)')
        a(f'v_max3_f32 v30, v{H}, v{H+2}, v{H+4}')
        a(f'v_max_f32 v30, v30, v{H+6}')
        for w in range(4):
            a(f'v_sub_f32 v{H+2*w}, v{H+2*w}, v30')
        for w in range(4):
            a(f'v_exp_f32 v{H+2*w}, v{H+2*w}')
        a('s_nop 0')
        a(f'v_mul_f32 v31, v{H}, v{H+1}')
        for w in range(1, 4):
            a(f'v_fmac_f32 v31, v{H+2*w}, v{H+2*w+1}')
        a('v_rcp_f32 v32, v31')
        a('v_log_f32 v33, v31')
        a('s_waitcnt lgkmcnt(0)')
        for e in range(0, 6, 2):
            a(f'v_pk_mul_f32 v[{22+e}:{23+e}], v[{D+e}:{D+e+1}], v[{H}:{H+1}] op_sel_hi:[1,0]')
        for w in range(1, 4):
            for e in range(0, 6, 2):
                a(f'v_pk_fma_f32 v[{22+e}:{23+e}], v[{D+6*w+e}:{D+6*w+e+1}], v[{H+2*w}:{H+2*w+1}], v[{22+e}:{23+e}] op_sel_hi:[1,0,1]')
        a('v_add_f32 v33, v33, v30')
        for e in range(0, 6, 2):
            a(f'v_pk_mul_f32 v[{22+e}:{23+e}], v[{22+e}:{23+e}], v[32:33] op_sel_hi:[1,0]')
        a('v_cvt_pk_bf16_f32 v44, v22, v23')
        a('v_cvt_pk_bf16_f32 v45, v24, v25')
        a('v_cvt_pk_bf16_f32 v46, v26, v27')
        a('v_cndmask_b32 v44, 0, v44, s[64:65]')
        a('v_cndmask_b32 v45, 0, v45, s[60:61]')
        a('v_cndmask_b32 v46, 0, v46, s[60:61]')
        a('v_cndmask_b32 v45, v45, v33, s[58:59]')
        a('s_mov_b32 exec_hi, 0xffff')
        a('global_store_dwordx4 v248, v[44:47], s[32:33] sc1')
        if opt['after']:
            a('v_mov_b32 v30, 0')
            a('v_mov_b32 v31, 5')
            a(f'ds_write_b32 v30, v31 offset:{L_CNT}')
        self.stamp(86)
        if opt['stamps']:
            self.flush_stamps([(3, 86)])
            lab('L_sexit')
            a('s_mov_b64 exec, 1')
            a('s_lshl_b32 s7, s2, 8')
            a(f's_add_u32 s7, s7, {STAMP}')
            a('s_lshl3_add_u32 s7, s3, s7')
            a('v_mov_b32 v252, s7')
            for slot, sr in ((22, 84), (26, 94)):
                a(f'v_mov_b32 v250, s{sr}')
                a(f'v_mov_b32 v251, s{sr+1}')
                a(f'global_store_dwordx2 v252, v[250:251], s[32:33] offset:{8*slot}')
                a('s_nop 1')
            a('s_cmp_lg_u32 s3, 0')
            a('s_cbranch_scc1 L_exit')
            a('v_mov_b32 v250, s96')
            a('v_mov_b32 v251, s97')
            if not opt['probe']:
                a(f'global_store_dwordx2 v252, v[250:251], s[32:33] offset:{8*30}')
            a('s_cmp_lg_u32 s3, 0')
            a('s_cbranch_scc1 L_exit')
            a('s_getreg_b32 s88, hwreg(HW_REG_XCC_ID)')
            a('s_and_b32 s88, s88, 15')
            a('s_mov_b32 s89, 0')
            a('s_sub_u32 s90, s92, s90')
            a('s_mov_b32 s91, 0')
            self.flush_stamps([(0, 98), (1, 80), (2, 82), (8, 84), (6, 88), (7, 90)])
        a('s_endpgm')
        if NST < 16:
            lab('L_tkretry')
            a(f's_mov_b32 s48, {SPIN}')
            lab('L_tkr2')
            a('s_sleep 8')
            a('s_mov_b32 s50, 1')
            a('s_mov_b32 s51, 0')
            a('s_atomic_add_x2 s[50:51], s[52:53], 0x0 glc')
            a('s_sub_u32 s48, s48, 1')
            a('s_cbranch_scc1 L_exit')
            a('s_waitcnt lgkmcnt(0)')
            a('s_cmp_lg_u32 s51, s6')
            a('s_cbranch_scc1 L_tkr2')
            a('s_branch L_tkok')
        lab('L_snw')
        self.tag_slow('L_snw2', 'L_snok', 98, 48, 49, 50, 30, 31)
        lab('L_sB')
        self.chunk(RB, False, False)
        a('s_branch L_sback')
        if setC:
            lab('L_sC')
            self.chunk(RC, False, False)
            a('s_branch L_sback')

    W1, B1, W2P, C1P, ET, EA = 64, 92, 120, 134, 136, 152

    def eval_sub(self):
        a = self.a
        W1, B1, W2P, C1P, ET, EA = self.W1, self.B1, self.W2P, self.C1P, self.ET, self.EA
        self.lab('L_eval')
        a(f'v_mov_b32 v{EA}, 0')
        for base in range(0, 14, 2):
            prs = [(base, ET), (base + 1, ET + 6)]
            for p, t in prs:
                a(f'v_pk_mul_f32 v[{t}:{t+1}], v[{W1+2*p}:{W1+2*p+1}], s[70:71]')
            for p, t in prs:
                self.bf16r(t, t)
                self.bf16r(t + 1, t + 1)
            for p, t in prs:
                a(f'v_pk_add_f32 v[{t}:{t+1}], v[{t}:{t+1}], v[{B1+2*p}:{B1+2*p+1}]')
            for p, t in prs:
                self.bf16r(t, t)
                self.bf16r(t + 1, t + 1)
            for p, t in prs:
                a(f'v_pk_mul_f32 v[{t+2}:{t+3}], v[{t}:{t+1}], v[{t}:{t+1}]')
            for p, t in prs:
                a(f'v_pk_fma_f32 v[{t+2}:{t+3}], v[{t+2}:{t+3}], s[72:73], v[{C1P}:{C1P+1}]')
            for p, t in prs:
                a(f'v_pk_mul_f32 v[{t+2}:{t+3}], v[{t+2}:{t+3}], v[{t}:{t+1}]')
            for p, t in prs:
                a(f'v_exp_f32 v{t+2}, v{t+2}')
                a(f'v_exp_f32 v{t+3}, v{t+3}')
            a('s_nop 0')
            for p, t in prs:
                a(f'v_add_f32 v{t+2}, 1.0, v{t+2}')
                a(f'v_add_f32 v{t+3}, 1.0, v{t+3}')
            for p, t in prs:
                a(f'v_rcp_f32 v{t+2}, v{t+2}')
                a(f'v_rcp_f32 v{t+3}, v{t+3}')
            a('s_nop 0')
            for p, t in prs:
                a(f'v_pk_mul_f32 v[{t}:{t+1}], v[{t}:{t+1}], v[{t+2}:{t+3}]')
            for p, t in prs:
                a(f'v_cvt_pk_bf16_f32 v{t+4}, v{t}, v{t+1}')
            for p, t in prs:
                a(f'v_dot2c_f32_bf16 v{EA}, v{t+4}, v{W2P+p}')
        self.nop(2)
        self.ladder64([EA], [ET])
        self.bf16r(EA, EA)
        a(f'v_add_f32 v{EA}, s74, v{EA}')
        a(f'v_cvt_pk_bf16_f32 v153, v{EA}, 0')
        a('s_setpc_b64 s[76:77]')

    def producer(self):
        a, lab = self.a, self.lab
        opt = self.opt
        a('v_lshrrev_b32 v2, 4, v1')
        a('v_and_b32 v3, 15, v1')
        a('v_mul_u32_u24 v4, 896, v2')
        a('v_lshl_add_u32 v4, v3, 4, v4')
        a('v_cmp_gt_u32 s[60:61], 14, v3')
        a('v_bfrev_b32 v7, 1')
        a('v_lshrrev_b32 v5, 3, v1')
        a('v_and_b32 v6, 7, v1')
        a('v_cndmask_b32 v4, v7, v4, s[60:61]')
        a(f's_mov_b32 s7, {14*8192}')
        a('v_mul_lo_u32 v56, s7, v5')
        a('v_lshl_add_u32 v56, v6, 4, v56')
        for r in range(4):
            a(f's_add_u32 s{40+r}, s34, {r}')
            a(f's_and_b32 s{40+r}, s{40+r}, 3')
            a(f's_mul_i32 s{40+r}, s{40+r}, 224')
        a(f's_mul_i32 s48, s34, {112*8192}')
        a('s_lshl_b32 s49, s4, 7')
        a('s_add_u32 s48, s48, s49')
        a('s_mov_b32 s38, 3584')
        a('s_mov_b32 s39, 0x20000')
        a(f's_mov_b32 s46, {0 if "nowq" in opt["exp"] else 3670016}')
        a('s_mov_b32 s47, 0x20000')
        a('s_waitcnt lgkmcnt(0)')
        a('s_mov_b32 s35, s98')
        a('s_mov_b32 s36, s8')
        a('s_mov_b32 s37, s9')
        a('s_mov_b32 s44, s14')
        a('s_mov_b32 s45, s15')
        for r in range(4):
            a(f'buffer_load_dwordx4 v[{8+4*r}:{11+4*r}], v4, s[36:39], s{40+r} offen')
        WR = 100
        for it in range(14):
            a(f'buffer_load_dwordx4 v[{WR+4*it}:{WR+4*it+3}], v56, s[44:47], s48 offen {opt["wqf"]}')
            if it < 13:
                a('s_add_u32 s48, s48, 8192')
        if opt['pdelay'] and opt['pbar'] < 0:
            a('s_barrier')
        a(f's_mov_b32 s62, {f2u(1.0/448):#x}')
        a(f's_mov_b32 s63, {f2u(1e-5):#x}')
        a('s_mov_b32 s64, 0x05040100')
        a('s_mov_b32 s65, 0x07060302')
        a('s_lshl_b32 s18, s34, 10')
        a('v_lshl_add_u32 v57, v1, 4, s18')
        a('v_mul_u32_u24 v58, 28, v5')
        a('v_add_u32 v58, s18, v58')
        a('s_waitcnt vmcnt(14)')
        self.vstamp(228)
        XF = 24
        for i in range(16):
            self.unpack(XF + 2 * i, XF + 2 * i + 1, 8 + i)
        PV, S1, S2, DT = 76, 78, 80, 82
        a('s_nop 0')
        a(f'v_mov_b32_dpp v{PV}, v{XF} row_newbcast:0 row_mask:0xf bank_mask:0xf')
        for i in range(16):
            d = DT + 2 * (i & 1)
            a(f'v_pk_add_f32 v[{d}:{d+1}], v[{XF+2*i}:{XF+2*i+1}], v[{PV}:{PV+1}] op_sel_hi:[1,0] neg_lo:[0,1] neg_hi:[0,1]')
            if i == 0:
                a(f'v_pk_mul_f32 v[{S2}:{S2+1}], v[{d}:{d+1}], v[{d}:{d+1}]')
                a(f'v_mov_b32 v{S1}, v{d}')
                a(f'v_mov_b32 v{S1+1}, v{d+1}')
            else:
                a(f'v_pk_fma_f32 v[{S2}:{S2+1}], v[{d}:{d+1}], v[{d}:{d+1}], v[{S2}:{S2+1}]')
                a(f'v_pk_add_f32 v[{S1}:{S1+1}], v[{S1}:{S1+1}], v[{d}:{d+1}]')
        a(f'v_add_f32 v{S1}, v{S1}, v{S1+1}')
        a(f'v_add_f32 v{S2}, v{S2}, v{S2+1}')
        a(f'v_cndmask_b32 v{S1}, 0, v{S1}, s[60:61]')
        a(f'v_cndmask_b32 v{S2}, 0, v{S2}, s[60:61]')
        for ror in (8, 4, 2, 1):
            a('s_nop 0')
            a(f'v_add_f32_dpp v{S1}, v{S1}, v{S1} row_ror:{ror} row_mask:0xf bank_mask:0xf')
            a(f'v_add_f32_dpp v{S2}, v{S2}, v{S2} row_ror:{ror} row_mask:0xf bank_mask:0xf')
        MO, RO = 86, 88
        self.ln_stats(S1, S2, f'v{PV}', 84, 85, 62, 63, MO, RO)
        for i in range(4):
            a(f'v_pk_add_f32 v[{XF+2*i}:{XF+2*i+1}], v[{XF+2*i}:{XF+2*i+1}], v[{MO}:{MO+1}] op_sel_hi:[1,0] neg_lo:[0,1] neg_hi:[0,1]')
        for i in range(8):
            self.bf16r(XF + i, XF + i)
        for i in range(4):
            a(f'v_pk_mul_f32 v[{XF+2*i}:{XF+2*i+1}], v[{XF+2*i}:{XF+2*i+1}], v[{RO}:{RO+1}] op_sel_hi:[1,0]')
        for i in range(4):
            a(f'v_cvt_pk_bf16_f32 v{8+i}, v{XF+2*i}, v{XF+2*i+1}')
        a(f'ds_write_b128 v57, v[8:11] offset:{L_XN}')
        a(f'v_add_u32 v58, {L_XN}, v58')
        a('s_waitcnt lgkmcnt(0)')
        XN = 8
        for b in range(4):
            for p in range(0, 6, 2):
                a(f'ds_read2_b32 v[{XN+8*b+p}:{XN+8*b+p+1}], v58 offset0:{64*b+p} offset1:{64*b+p+1}')
            a(f'ds_read_b32 v{XN+8*b+6}, v58 offset:{256*b+24}')
            if b == 2:
                a('s_waitcnt lgkmcnt(8)')
        a('s_waitcnt lgkmcnt(0)')
        a('s_load_dword s6, s[30:31], 0')
        PP, QA = 40, 60
        for p in range(7):
            a(f's_waitcnt vmcnt({12-2*p})')
            if opt['pdelay'] and opt['pbar'] == p:
                a('s_barrier')
            r0, r1 = WR + 8 * p, WR + 8 * p + 4
            for dw in range(4):
                a(f'v_perm_b32 v{PP+2*dw}, v{r1+dw}, v{r0+dw}, s64')
                a(f'v_perm_b32 v{PP+2*dw+1}, v{r1+dw}, v{r0+dw}, s65')
            for b in range(4):
                for e in range(8):
                    src2 = '0' if p == 0 else f'v{QA+8*b+e}'
                    a(f'v_dot2_f32_bf16 v{QA+8*b+e}, v{PP+e}, v{XN+8*b+p}, {src2}')
        self.vstamp(232)
        for b in range(4):
            for e in range(4):
                v = QA + 8 * b + e
                a(f'v_add_f32_dpp v{v}, v{v}, v{v} row_ror:8 row_mask:0xf bank_mask:0x3')
                a(f'v_add_f32_dpp v{v}, v{v+4}, v{v+4} row_ror:8 row_mask:0xf bank_mask:0xc')
        for b in (0, 2):
            for e in range(4):
                a(f'v_permlane16_swap_b32 v{QA+8*b+e}, v{QA+8*b+8+e}')
        for b in (0, 2):
            for e in range(4):
                a(f'v_add_f32 v{QA+8*b+e}, v{QA+8*b+e}, v{QA+8*b+8+e}')
        for e in range(4):
            a(f'v_permlane32_swap_b32 v{QA+e}, v{QA+16+e}')
        for e in range(4):
            a(f'v_add_f32 v{QA+e}, v{QA+e}, v{QA+16+e}')
        a(f'ds_write_b128 v57, v[{QA}:{QA+3}] offset:{L_QP}')
        self.vstamp(234)

    def publish_q(self):
        a, lab = self.a, self.lab
        a('v_mov_b32 v58, 0')
        a('v_lshlrev_b32 v57, 4, v1')
        a('s_lshr_b32 s18, s4, 2')
        a('s_lshl_b32 s18, s18, 12')
        a('s_and_b32 s19, s4, 3')
        a('s_lshl_b32 s19, s19, 8')
        a('s_add_u32 s18, s18, s19')
        a('v_lshrrev_b32 v8, 4, v1')
        a('v_lshlrev_b32 v8, 10, v8')
        a('v_and_b32 v9, 7, v1')
        a('v_lshl_add_u32 v8, v9, 5, v8')
        a('v_bfe_u32 v9, v1, 3, 1')
        a('v_lshl_add_u32 v8, v9, 4, v8')
        a('v_add_u32 v8, s18, v8')
        a('v_mov_b32 v34, s6')
        a('v_mov_b32 v35, s6')
        a(f's_mov_b32 s19, {SPIN}')
        lab('L_hfw')
        a(f'ds_read_b128 v[12:15], v58 offset:{L_FLG}')
        for w in range(4):
            a(f'ds_read_b128 v[{16+4*w}:{19+4*w}], v57 offset:{L_QP+1024*w}')
        a('s_sub_u32 s19, s19, 1')
        a('s_cbranch_scc1 L_exit')
        a('s_waitcnt lgkmcnt(0)')
        self.flags4(12)
        a('s_cbranch_vccz L_hfw')
        a('v_pk_add_f32 v[16:17], v[16:17], v[20:21]')
        a('v_pk_add_f32 v[18:19], v[18:19], v[22:23]')
        a('v_pk_add_f32 v[24:25], v[24:25], v[28:29]')
        a('v_pk_add_f32 v[26:27], v[26:27], v[30:31]')
        a('v_pk_add_f32 v[16:17], v[16:17], v[24:25]')
        a('v_pk_add_f32 v[18:19], v[18:19], v[26:27]')
        a('v_cvt_pk_bf16_f32 v32, v16, v17')
        a('v_cvt_pk_bf16_f32 v33, v18, v19')
        a('global_store_dwordx4 v8, v[32:35], s[32:33] sc1')

    def helper(self):
        a, lab = self.a, self.lab
        opt = self.opt
        a('s_setprio 3')
        a('s_sub_u32 s34, s3, 4')
        a('v_and_b32 v1, 63, v0')
        a('s_cmp_eq_u32 s5, 0')
        a('s_cbranch_scc1 L_hnp')
        self.producer()
        a('s_branch L_hn1')
        lab('L_hnp')
        a('s_waitcnt lgkmcnt(0)')
        a('s_mov_b32 s35, s98')
        if opt['early']:
            a('s_cmp_eq_u32 s34, 0')
            a('s_cbranch_scc1 L_he0')
            a('s_cmp_eq_u32 s34, 1')
            a('s_cbranch_scc1 L_he1')
            self.mlp_loads()
            a('s_branch L_he1')
            lab('L_he0')
            self.wparams('L_he1')
            self.stage()
            lab('L_he1')
        if opt['probe']:
            a('s_cmp_lt_u32 s34, 2')
            a('s_cbranch_scc1 L_pr1')
            a('s_lshl_b32 s40, s4, 21')
            a('s_and_b32 s41, s34, 1')
            a('s_lshl_b32 s41, s41, 13')
            a('s_add_u32 s40, s40, s41')
            a('s_add_u32 s40, s40, 0x1fc000')
            for base, res in ((10, 50), (12, 52)):
                a(f's_add_u32 s42, s{base}, s40')
                a(f's_addc_u32 s43, s{base+1}, 0')
                a(f's_mov_b32 s{res}, -1')
                a(f's_mov_b32 s{res+1}, 0')
                for rep in range(opt['probe']):
                    a('s_memtime s[44:45]')
                    a('s_waitcnt lgkmcnt(0)')
                    a(f's_load_dword s48, s[42:43], 0 glc')
                    a('s_waitcnt lgkmcnt(0)')
                    a('s_memtime s[46:47]')
                    a('s_waitcnt lgkmcnt(0)')
                    a('s_sub_u32 s49, s46, s44')
                    a(f's_min_u32 s{res}, s{res}, s49')
                a(f's_memrealtime s[{res+4}:{res+5}]')
                a('s_waitcnt lgkmcnt(0)')
            a('s_mov_b64 exec, 1')
            a('s_lshl_b32 s7, s2, 8')
            a(f's_add_u32 s7, s7, {STAMP}')
            a('s_and_b32 s41, s34, 1')
            a('s_lshl3_add_u32 s7, s41, s7')
            a('v_mov_b32 v252, s7')
            for slot, sr in ((16, 50), (18, 52), (30, 54)):
                a(f'v_mov_b32 v250, s{sr}')
                a(f'v_mov_b32 v251, s{sr+1}')
                a(f'global_store_dwordx2 v252, v[250:251], s[32:33] offset:{8*slot}')
                a('s_nop 1')
            a('s_mov_b64 exec, -1')
            lab('L_pr1')
        a(f's_sleep {opt["hs0"]}')
        a('s_load_dword s6, s[30:31], 0')
        lab('L_hn1')
        for sec in (1, 2):
            a('s_waitcnt lgkmcnt(0)')
            self.fresh(35, 18, 19)
            a('s_cbranch_scc1 L_hnok')
            a('s_sleep 4')
            a(f's_load_dword s6, s[30:31], {64*sec}')
        a('s_waitcnt lgkmcnt(0)')
        self.fresh(35, 18, 19)
        a('s_cbranch_scc1 L_hnok')
        self.tag_slow('L_hnw', 'L_hnok', 35, 18, 19, 7, 58, 59)
        lab('L_hnok')
        self.vstamp(236)
        a('s_lshl_b32 s18, s34, 2')
        a('v_mov_b32 v58, s18')
        a('v_mov_b32 v59, s6')
        a(f'ds_write_b32 v58, v59 offset:{L_FLG}')
        a('s_and_b32 s35, s4, 15')
        a('s_lshl_b32 s35, s35, 2')
        a('s_lshr_b32 s7, s4, 4')
        a('s_add_u32 s35, s35, s7')
        a('s_lshl_b32 s35, s35, 10')
        a('s_lshl_b32 s7, s34, 8')
        a('s_add_u32 s35, s35, s7')
        a('s_add_u32 s100, s32, s35')
        a('s_addc_u32 s101, s33, 0')
        a('s_cmp_lg_u32 s34, 0')
        a('s_cbranch_scc1 L_hq')
        a('v_mov_b32 v58, 0')
        a(f'ds_write_b32 v58, v58 offset:{L_CNT}')
        a('s_cmp_eq_u32 s5, 0')
        a('s_cbranch_scc1 L_hq')
        self.publish_q()
        self.vstamp(240)
        lab('L_hq')
        a(f's_mov_b32 s19, {SPIN}')
        lab('L_hqw')
        for p in range(4):
            a(f's_load_dwordx16 s[{36+16*p}:{51+16*p}], s[100:101], {64*p} glc')
        a('s_sub_u32 s19, s19, 1')
        a('s_cbranch_scc1 L_exit')
        a('s_waitcnt lgkmcnt(0)')
        tags = [36 + 16 * p + 4 * g + 2 for p in range(4) for g in range(4)]
        a(f's_xor_b32 s7, s{tags[0]}, s6')
        for t in tags[1:]:
            a(f's_xor_b32 s18, s{t}, s6')
            a('s_or_b32 s7, s7, s18')
        a('s_cbranch_scc0 L_hqok')
        a(f's_sleep {opt["qsleep"]}')
        a('s_branch L_hqw')
        lab('L_hqok')
        for p in range(4):
            for g in range(4):
                for k in range(2):
                    a(f'v_writelane_b32 v8, s{36+16*p+4*g+k}, {8*p+2*g+k}')
        a('s_lshl_b32 s18, s34, 7')
        a('v_lshl_add_u32 v9, v1, 2, s18')
        a('s_mov_b32 exec_hi, 0')
        a(f'ds_write_b32 v9, v8 offset:{L_QL}')
        a('s_mov_b64 exec, -1')
        a('s_load_dword s74, s[26:27], 0')
        a('s_lshl_b32 s18, s34, 2')
        a('v_mov_b32 v9, s18')
        a('v_mov_b32 v8, s6')
        a('s_waitcnt lgkmcnt(0)')
        a(f'ds_write_b32 v9, v8 offset:{L_FL2}')
        self.vstamp(242)
        a('s_setprio 0')
        if opt['NST'] < 16:
            self.member(18, 19)
            a('s_lshl2_add_u32 s18, s18, s34')
            a('s_cmp_lg_u32 s18, 1')
            a('s_cbranch_scc1 L_htk')
            a('s_lshl_b32 s18, s4, 8')
            a(f's_add_u32 s18, s18, {TK}')
            a('v_mov_b32 v10, s18')
            a('v_mov_b32 v8, 0')
            a('v_mov_b32 v9, s6')
            a('s_mov_b64 exec, 1')
            a('global_store_dwordx2 v10, v[8:9], s[32:33] sc1')
            a('s_mov_b64 exec, -1')
            lab('L_htk')
        a('s_cmp_lt_u32 s34, 2')
        a('s_cbranch_scc1 L_work')
        a('s_sub_u32 s18, s2, 4')
        a('s_mul_i32 s35, s18, 964')
        a('s_lshr_b32 s35, s35, 16')
        a('s_mul_i32 s19, s35, 68')
        a('s_cmp_eq_u32 s18, s19')
        a('s_cselect_b32 s35, s35, 4')
        a('s_cmp_eq_u32 s34, 3')
        a('s_cselect_b32 s35, s35, 4')
        a('s_cmp_ge_u32 s35, 4')
        a('s_cbranch_scc1 L_hw')
        a('s_lshl_b32 s18, s35, 11')
        a(f's_add_u32 s18, s18, {ACC}')
        a('v_lshl_add_u32 v4, v1, 4, s18')
        for i in range(4):
            a(f'v_mov_b32 v{8+i}, 0')
        for rp in range(opt['R']):
            a(f'v_add_u32 v{224+rp}, {8192*rp}, v4')
            a(f'global_store_dwordx4 v{224+rp}, v[8:11], s[32:33] sc1')
            a(f'global_store_dwordx4 v{224+rp}, v[8:11], s[32:33] offset:1024 sc1')
        a('s_lshl_b32 s18, s35, 2')
        a(f's_add_u32 s18, s18, {RDY}')
        a('v_mov_b32 v12, s18')
        a('v_mov_b32 v13, s6')
        a('s_waitcnt vmcnt(0)')
        a('s_mov_b64 exec, 1')
        a('global_store_dword v12, v13, s[32:33] sc1')
        a('s_mov_b64 exec, -1')
        lab('L_hw')
        W1, B1, C1P, W2P = self.W1, self.B1, self.C1P, self.W2P
        if opt['early']:
            a('s_cmp_eq_u32 s5, 0')
            a('s_cbranch_scc1 L_hw2')
        self.mlp_loads()
        lab('L_hw2')
        k2 = -2.0 * math.sqrt(2.0 / math.pi) * LOG2E
        a(f'v_mov_b32 v{C1P}, {f2u(k2):#x}')
        a(f'v_mov_b32 v{C1P+1}, {f2u(k2):#x}')
        a(f's_mov_b32 s72, {f2u(k2*0.044715):#x}')
        a('s_mov_b32 s73, s72')
        a('s_lshl_b32 s74, s74, 16')
        a('s_waitcnt vmcnt(0)')
        for i in range(14):
            self.unpack(W1 + 2 * i, W1 + 2 * i + 1, 160 + i)
            self.unpack(B1 + 2 * i, B1 + 2 * i + 1, 176 + i)
        a('s_lshl_b32 s40, s2, 2')
        a('s_lshl1_add_u32 s40, s34, s40')
        a('s_sub_u32 s40, s40, 4')
        a('s_add_u32 s50, s40, 2')
        lab('L_tb')
        a('s_mul_i32 s41, s40, 6')
        a(f's_cmp_ge_u32 s41, {NTH}')
        a(f's_mov_b32 s43, {E0 << 7}')
        a(f's_cselect_b32 s42, {0x8000 - NTH + (E0 << 7)}, s43')
        a('s_add_u32 s41, s41, s42')
        for n in range(6):
            a(f's_add_u32 s70, s41, {n}')
            a('s_lshl_b32 s70, s70, 16')
            a('s_mov_b32 s71, s70')
            if 'noeval' not in opt['exp']:
                a('s_call_b64 s[76:77], L_eval')
            a('s_nop 0')
            a(f'v_readfirstlane_b32 s{44+n}, v153')
        a('s_nop 0')
        for n in range(3):
            a(f's_pack_ll_b32_b16 s{44+n}, s{44+2*n}, s{45+2*n}')
        a('s_lshl_b32 s41, s40, 4')
        a(f's_add_u32 s41, s41, {TG}')
        a('v_mov_b32 v8, s44')
        a('v_mov_b32 v9, s45')
        a('v_mov_b32 v10, s46')
        a('v_mov_b32 v11, s6')
        a('v_mov_b32 v12, s41')
        a('s_mov_b64 exec, 1')
        a('global_store_dwordx4 v12, v[8:11], s[32:33] sc1')
        a('s_mov_b64 exec, -1')
        a('s_add_u32 s40, s40, 1')
        a('s_cmp_lt_u32 s40, s50')
        a('s_cbranch_scc1 L_tb')
        a('s_cmp_lt_u32 s35, 4')
        a('s_cbranch_scc1 L_cons')
        if opt['stamps']:
            a('s_cmp_lg_u32 s34, 2')
            a('s_cbranch_scc1 L_exit')
            self.stamp(24)
            self.flush_stamps([(15, 24)])
        a('s_endpgm')
        lab('L_work')
        self.worker()
        self.consumer()
        self.eval_sub()

    def wparams(self, idle):
        a = self.a
        a('s_lshr_b32 s40, s2, 3')
        self.member(41, 42)
        a('s_sub_u32 s42, s40, s41')
        a('s_and_b32 s43, s42, 7')
        a('s_cmp_eq_u32 s43, 0')
        a(f's_cbranch_scc1 {idle}')
        a('s_add_u32 s42, s42, 7')
        a('s_lshr_b32 s42, s42, 3')
        a('s_sub_u32 s40, s40, s42')
        a('s_mul_i32 s41, s40, 37')
        a('s_lshr_b32 s41, s41, 8')
        a('s_mul_i32 s42, s41, 7')
        a('s_sub_u32 s42, s40, s42')
        a('s_and_b32 s40, s2, 7')
        a('s_lshl2_add_u32 s40, s40, s41')
        a('s_mul_i32 s43, s42, 293')
        a('s_lshr_b32 s43, s43, 6')

    def stage(self):
        a = self.a
        opt = self.opt
        W = opt['swin']
        a(f's_mul_i32 s44, s40, {128*896}')
        a('s_lshl_b32 s45, s42, 7')
        a('s_add_u32 s44, s44, s45')
        a('s_add_u32 s36, s16, s44')
        a('s_addc_u32 s37, s17, 0')
        a(f's_sub_u32 s38, {128*896}, s45')
        if 'nowo' in opt['exp']:
            a('s_mov_b32 s38, 0')
        a('s_mov_b32 s39, 0x20000')
        a('v_lshrrev_b32 v2, 3, v1')
        a('v_and_b32 v3, 7, v1')
        a(f'v_mul_u32_u24 v8, {RS}, v2')
        a('v_lshl_add_u32 v8, v3, 4, v8')
        a('v_mul_u32_u24 v2, 896, v2')
        a('v_lshl_add_u32 v2, v3, 4, v2')
        a('s_mov_b32 s44, 0')
        for it in range(16):
            if it >= W:
                a(f's_waitcnt vmcnt({W-1})')
                a(f'ds_write_b128 v8, v[{160+4*(it-W)}:{163+4*(it-W)}] offset:{L_WOS+8*RS*(it-W)}')
            a(f'buffer_load_dwordx4 v[{160+4*it}:{163+4*it}], v2, s[36:39], s44 offen {opt["wof"]}')
            a('s_add_u32 s44, s44, 7168')
        a('v_lshlrev_b32 v3, 4, v1')
        for z in range(4):
            a(f'v_mov_b32 v{224+z}, 0')
        for z in range(3):
            a(f'ds_write_b128 v3, v[224:227] offset:{L_WOS+128*RS+1024*z}')
        for it in range(16 - W, 16):
            a(f's_waitcnt vmcnt({15-it})')
            a(f'ds_write_b128 v8, v[{160+4*it}:{163+4*it}] offset:{L_WOS+8*RS*it}')

    def mlp_loads(self):
        a = self.a
        a('v_lshlrev_b32 v2, 4, v1')
        a('v_lshlrev_b32 v3, 3, v1')
        W1, B1, C1P, W2P = self.W1, self.B1, self.C1P, self.W2P
        for base, sp in ((160, 20), (176, 22), (W2P, 24)) if 'nomlp' not in self.opt['exp'] else ():
            for r in range(3):
                a(f'global_load_dwordx4 v[{base+4*r}:{base+4*r+3}], v2, s[{sp}:{sp+1}] offset:{1024*r}')
            a(f'global_load_dwordx2 v[{base+12}:{base+13}], v3, s[{sp}:{sp+1}] offset:3072')

    def wait_lds(self, name, off, cmp, sleep):
        a, lab = self.a, self.lab
        a('v_mov_b32 v6, 0')
        a(f's_mov_b32 s19, {SPIN}')
        lab(name)
        a(f's_sleep {sleep}')
        a(f'ds_read_b32 v7, v6 offset:{off}')
        a('s_sub_u32 s19, s19, 1')
        a('s_cbranch_scc1 L_exit')
        a('s_waitcnt lgkmcnt(0)')
        a(cmp)
        a(f's_cbranch_vccnz {name}')

    def worker(self):
        a, lab = self.a, self.lab
        opt = self.opt
        self.wparams('L_wexit' if opt['stamps'] else 'L_exit')
        a('v_lshrrev_b32 v5, 4, v1')
        a('v_and_b32 v14, 15, v1')
        BF = 64
        for i in range(72):
            a(f'v_mov_b32 v{BF+i}, 0')
        a('s_cmp_lg_u32 s34, 0')
        a('s_cbranch_scc1 L_wst')
        if opt['early']:
            a('s_cmp_eq_u32 s5, 0')
            a('s_cbranch_scc1 L_wfl')
        self.stage()
        lab('L_wfl')
        a('v_mov_b32 v6, 0')
        a('v_mov_b32 v7, s6')
        a('s_waitcnt lgkmcnt(0)')
        a(f'ds_write_b32 v6, v7 offset:{L_WOF}')
        lab('L_wst')
        self.wait_lds('L_wsw', L_WOF, 'v_cmp_ne_u32 vcc, s6, v7', 8)
        a('s_mul_i32 s44, s34, 3')
        a('s_add_u32 s43, s43, s44')
        a('s_mul_i32 s44, s43, 14')
        a('s_lshl_b32 s45, s42, 6')
        a('s_sub_u32 s44, s44, s45')
        a(f'v_mul_u32_u24 v2, {6*RS}, v5')
        a('v_cmp_gt_u32 s[46:47], 14, v14')
        for t in range(3):
            u = self.u()
            a('v_add_u32 v3, s44, v14')
            a('v_cmp_gt_u32 vcc, 64, v3')
            a('v_lshl_add_u32 v3, v3, 1, v2')
            a(f's_and_b64 s[{48+2*t}:{49+2*t}], vcc, s[46:47]')
            a(f's_mov_b64 exec, s[{48+2*t}:{49+2*t}]')
            a(f's_cbranch_execz L_wb{u}')
            for kk in range(0, 6, 2):
                for q in range(2):
                    for e in range(6):
                        a(f'ds_read_u16 v{16+6*q+e}, v3 offset:{L_WOS+24*RS*(kk+q)+RS*e}')
                a('s_waitcnt lgkmcnt(0)')
                for q in range(2):
                    for uu in range(3):
                        a(f'v_lshl_or_b32 v{BF+12*(kk+q)+4*t+uu}, v{16+6*q+2*uu+1}, 16, v{16+6*q+2*uu}')
            lab(f'L_wb{u}')
            a('s_mov_b64 exec, -1')
            a('s_add_u32 s44, s44, 14')
        a('s_lshr_b32 s44, s40, 1')
        a('s_lshl_b32 s44, s44, 14')
        a('s_and_b32 s45, s40, 1')
        a('s_mul_i32 s46, s45, 384')
        a('s_add_u32 s44, s44, s46')
        a(f's_add_u32 s44, s44, {OG}')
        a('v_lshlrev_b32 v2, 10, v14')
        a('v_lshl_add_u32 v2, v5, 4, v2')
        a('v_add_u32 v2, s44, v2')
        a(f's_and_b32 s44, s40, {opt["R"]-1}')
        a('s_lshl_b32 s44, s44, 13')
        a('s_lshl_b32 s46, s43, 6')
        a('s_add_u32 s44, s44, s46')
        a(f's_add_u32 s44, s44, {ACC}')
        a('v_lshlrev_b32 v3, 11, v5')
        a('v_lshl_add_u32 v3, v14, 2, v3')
        a('v_add_u32 v3, s44, v3')
        a('v_cmp_eq_u32 vcc, 15, v14')
        a('v_lshlrev_b32 v8, 4, v5')
        a('v_add_u32 v8, 64, v8')
        a('v_cndmask_b32 v4, 0, 1.0, vcc')
        a('v_cmp_eq_u32 s[46:47], 1, v5')
        a(f'v_mov_b32 v9, {RDY}')
        a('v_lshl_add_u32 v9, v5, 2, v9')
        a(f's_mov_b32 s19, {SPIN}')
        lab('L_wr')
        a('global_load_dword v10, v9, s[32:33] sc1')
        a('s_sub_u32 s19, s19, 1')
        a('s_cbranch_scc1 L_exit')
        a('s_waitcnt vmcnt(0)')
        a('v_cmp_ne_u32 vcc, s6, v10')
        a('s_cbranch_vccz L_wr2')
        a('s_sleep 64')
        a('s_branch L_wr')
        lab('L_wr2')
        self.stamp(24)
        self.wait_lds('L_wd', L_CNT, f'v_cmp_gt_u32 vcc, {5 if self.opt["after"] else 4}, v7', 1)
        a('s_setprio 3')
        AF = 160
        a(f's_mov_b32 s19, {SPIN}')
        D0 = 204
        LS = AF + 21

        def mf(kk, first):
            for t in range(3):
                d = D0 + 4 * t
                c = '0' if first else f'v[{d}:{d+3}]'
                a(f'v_mfma_f32_16x16x32_bf16 v[{d}:{d+3}], v[{AF+4*kk}:{AF+4*kk+3}], v[{BF+12*kk+4*t}:{BF+12*kk+4*t+3}], {c}')
        if opt['spec']:
            a('s_mov_b64 s[54:55], -1')
            lab('L_wp')
            a('s_mov_b64 exec, s[54:55]')
            for kk in (5, 0, 1, 2, 3, 4):
                a(f'global_load_dwordx4 v[{AF+4*kk}:{AF+4*kk+3}], v2, s[32:33] offset:{64*kk} sc1')
            a('s_mov_b64 exec, -1')
            a('s_sub_u32 s19, s19, 1')
            a('s_cbranch_scc1 L_exit')
            a('s_waitcnt vmcnt(5)')
            a(f'v_cndmask_b32 v10, v10, v{LS}, s[54:55]')
            a(f'v_cndmask_b32 v{LS}, v{LS}, 0, s[46:47]')
            a(f'v_xor_b32 v9, s6, v{AF+23}')
            a('v_max_f32_dpp v11, v10, v10 quad_perm:[1,0,3,2] row_mask:0xf bank_mask:0xf')
            mf(5, True)
            a('v_max_f32_dpp v11, v11, v11 quad_perm:[2,3,0,1] row_mask:0xf bank_mask:0xf')
            a('v_sub_f32 v12, v10, v11')
            a('v_exp_f32 v12, v12')
            fill = {0: ['v_add_f32_dpp v11, v12, v12 quad_perm:[1,0,3,2] row_mask:0xf bank_mask:0xf'],
                    1: ['v_add_f32_dpp v11, v11, v11 quad_perm:[2,3,0,1] row_mask:0xf bank_mask:0xf', 'v_rcp_f32 v11, v11'],
                    2: ['v_mul_f32 v12, v12, v11'] + [f'ds_bpermute_b32 v{16+r}, v8, v12 offset:{4*r}' for r in range(4)]}
            for kk in range(5):
                a(f's_waitcnt vmcnt({4-kk})')
                a(f'v_bitop3_b32 v9, v{AF+4*kk+3}, s6, v9 bitop3:0xbe')
                if kk == 4:
                    a('v_cmp_ne_u32 s[54:55], 0, v9')
                mf(kk, False)
                for t in fill.get(kk, []):
                    a(t)
            a('s_cmp_lg_u64 s[54:55], 0')
            a('s_cbranch_scc1 L_wp')
            self.stamp(26)
        else:
            lab('L_wp')
            for kk in range(6):
                a(f'global_load_dwordx4 v[{AF+4*kk}:{AF+4*kk+3}], v2, s[32:33] offset:{64*kk} sc1')
            a('s_sub_u32 s19, s19, 1')
            a('s_cbranch_scc1 L_exit')
            for kk in range(6):
                a(f's_waitcnt vmcnt({5-kk})')
                if kk == 0:
                    a(f'v_xor_b32 v9, s6, v{AF+3}')
                else:
                    a(f'v_bitop3_b32 v9, v{AF+4*kk+3}, s6, v9 bitop3:0xbe')
            a('v_cmp_ne_u32 vcc, 0, v9')
            a('s_and_b64 exec, exec, vcc')
            if opt['psleep']:
                a('s_cbranch_execz L_wpx')
                a(f's_sleep {opt["psleep"]}')
                a('s_branch L_wp')
                lab('L_wpx')
            else:
                a('s_cbranch_execnz L_wp')
            a('s_mov_b64 exec, -1')
            self.stamp(26)
            a(f'v_mov_b32 v10, v{LS}')
            a(f'v_cndmask_b32 v{LS}, v{LS}, 0, s[46:47]')
            mf(0, True)
            a('v_max_f32_dpp v11, v10, v10 quad_perm:[1,0,3,2] row_mask:0xf bank_mask:0xf')
            mf(1, False)
            a('v_max_f32_dpp v11, v11, v11 quad_perm:[2,3,0,1] row_mask:0xf bank_mask:0xf')
            a('v_sub_f32 v10, v10, v11')
            a('v_exp_f32 v10, v10')
            mf(2, False)
            a('v_add_f32_dpp v11, v10, v10 quad_perm:[1,0,3,2] row_mask:0xf bank_mask:0xf')
            mf(3, False)
            a('v_add_f32_dpp v11, v11, v11 quad_perm:[2,3,0,1] row_mask:0xf bank_mask:0xf')
            a('v_rcp_f32 v11, v11')
            a('s_nop 0')
            a('v_mul_f32 v10, v10, v11')
            for r in range(4):
                a(f'ds_bpermute_b32 v{16+r}, v8, v10 offset:{4*r}')
            mf(4, False)
            mf(5, False)
        a('s_cmp_eq_u64 s[52:53], 0')
        a('s_waitcnt lgkmcnt(0)')
        self.nop(4)
        for t in range(3):
            a(f'v_fma_f32 v{20+t}, v16, v{D0+4*t}, v4')
            for r in range(1, 4):
                a(f'v_fmac_f32 v{20+t}, v{16+r}, v{D0+4*t+r}')
            if t == 2:
                a('s_cbranch_scc1 L_wend')
            a(f'global_atomic_add_f32 v3, v{20+t}, s[32:33] offset:{64*t}')
        lab('L_wend')
        if opt['stamps']:
            a('s_cmp_lg_u32 s34, 0')
            a('s_cbranch_scc1 L_exit')
            self.stamp(28)
            self.flush_stamps([(11, 24), (4, 26), (5, 28)])
            lab('L_wexit')
            a('s_cmp_lg_u32 s34, 0')
            a('s_cbranch_scc1 L_exit')
            for slot, v in ((9, 240), (10, 242), (17, 228), (19, 232), (20, 234), (21, 236))[:(2 if opt['probe'] else 6)]:
                self.unvstamp(v, 20)
                self.flush_stamps([(slot, 20)])
        a('s_endpgm')

    def consumer(self):
        a, lab = self.a, self.lab
        lab('L_cons')
        a('s_mov_b32 s36, s8')
        a('s_mov_b32 s37, s9')
        a('s_mov_b32 s38, 3584')
        a('s_mov_b32 s39, 0x20000')
        a('s_mov_b32 s40, s28')
        a('s_mov_b32 s41, s29')
        a('s_mov_b32 s42, 3584')
        a('s_mov_b32 s43, 0x20000')
        a('s_mul_i32 s44, s35, 896')
        a('s_lshl_b32 s18, s35, 11')
        a(f's_add_u32 s18, s18, {ACC}')
        a('v_lshl_add_u32 v224, v1, 4, s18')
        for rp in range(1, self.opt['R']):
            a(f'v_add_u32 v{224+rp}, {8192*rp}, v224')
        a('v_lshrrev_b32 v6, 2, v1')
        a('v_and_b32 v3, 3, v1')
        a('v_mul_u32_u24 v2, 28, v6')
        a('v_lshl_add_u32 v2, v3, 3, v2')
        for r in range(2):
            for ep in range(2):
                a(f'buffer_load_dword v{8+2*r+ep}, v2, s[36:39], s44 offen offset:{448*r+4*ep}')
        a('s_mov_b32 s46, 0x88888888')
        a('s_mov_b32 s47, 0x88888888')
        a(f's_mov_b32 s62, {f2u(1.0/448):#x}')
        a(f's_mov_b32 s63, {f2u(1e-5):#x}')
        for r, m in ((0, 0x2210), (1, 0x0844)):
            a(f'v_lshrrev_b32 v{60+r}, v6, {m}' if False else f's_mov_b32 s48, {m}')
            a(f'v_lshrrev_b32 v{60+r}, v6, s48')
            a(f'v_and_b32 v{60+r}, 1, v{60+r}')
            a(f'v_add_u32 v{60+r}, 1, v{60+r}')
            a(f'v_mul_u32_u24 v{60+r}, {32 // self.opt["R"]}, v{60+r}')
            a(f'v_cvt_f32_u32 v{60+r}, v{60+r}')
        a('s_waitcnt vmcnt(0)')
        XF = 12
        for i in range(4):
            self.unpack(XF + 2 * i, XF + 2 * i + 1, 8 + i)
        a(f'v_lshlrev_b32 v7, 4, v1')
        a(f'v_add_u32 v62, {TG}, v7')
        a('v_mul_u32_u24 v3, 12, v1')
        a(f'v_add_u32 v3, {L_TBL}, v3')
        TF = 160
        a(f's_mov_b32 s19, {SPIN}')
        lab('L_ct')
        for it in range(16):
            if it % 4 == 0 and it:
                a('v_add_u32 v62, 4096, v62')
            a(f'global_load_dwordx4 v[{TF+4*it}:{TF+4*it+3}], v62, s[32:33] offset:{1024*(it%4)} sc1')
        a('v_subrev_u32 v62, 12288, v62')
        a('s_sub_u32 s19, s19, 1')
        a('s_cbranch_scc1 L_exit')
        a('s_waitcnt vmcnt(0)')
        a(f'v_xor_b32 v9, s6, v{TF+3}')
        for it in range(1, 16):
            a(f'v_bitop3_b32 v9, v{TF+4*it+3}, s6, v9 bitop3:0xbe')
        a('v_cmp_ne_u32 vcc, 0, v9')
        a('s_cbranch_vccz L_ct2')
        a(f's_sleep {self.opt["tsleep"]}')
        a('s_branch L_ct')
        lab('L_ct2')
        for it in range(16):
            a(f'ds_write2_b32 v3, v{TF+4*it}, v{TF+4*it+1} offset0:0 offset1:1')
            a(f'ds_write_b32 v3, v{TF+4*it+2} offset:8')
            a(f'v_add_u32 v3, {768 if it != 7 else 768 + 65536 - 2 * NTH}, v3')
        self.stamp(24)
        A, A2 = 20, 176
        Y = 168
        a(f's_mov_b32 s51, {E0 << 23:#x}')
        a(f's_mov_b32 s56, {(E0 + 24) << 23:#x}')
        for i in range(8):
            a(f'v_mov_b32 v{Y+i}, 0')
        self.wait_lds('L_cd', L_CNT, f'v_cmp_gt_u32 vcc, {5 if self.opt["after"] else 4}, v7', 1)
        a('s_setprio 3')
        a(f's_mov_b32 s19, {SPIN}')
        R = self.opt['R']
        AR = [A] + [A2 + 8 * i for i in range(R - 1)]
        lab('L_cp')
        for rp in range(R):
            a(f'global_load_dwordx4 v[{AR[rp]}:{AR[rp]+3}], v{224+rp}, s[32:33] sc1')
            a(f'global_load_dwordx4 v[{AR[rp]+4}:{AR[rp]+7}], v{224+rp}, s[32:33] offset:1024 sc1')
        a('s_sub_u32 s19, s19, 1')
        a('s_cbranch_scc1 L_exit')
        a('s_mov_b64 s[48:49], s[46:47]')
        for rp in range(R):
            a(f's_waitcnt vmcnt({2*(R-1-rp)})')
            a(f'v_cmp_eq_f32 vcc, v60, v{AR[rp]+3}')
            a(f'v_cmp_eq_f32 s[52:53], v61, v{AR[rp]+7}')
            if rp:
                for i in range(4):
                    a(f'v_pk_add_f32 v[{A+2*i}:{A+2*i+1}], v[{A+2*i}:{A+2*i+1}], v[{AR[rp]+2*i}:{AR[rp]+2*i+1}]')
            a('s_and_b64 s[48:49], s[48:49], vcc')
            a('s_and_b64 s[48:49], s[48:49], s[52:53]')
        a('s_cmp_eq_u64 s[48:49], s[46:47]')
        a('s_cbranch_scc0 L_cp')
        self.stamp(26)
        P, Hh, Dd = 28, 32, 40
        S1, S2, MO, RO = 48, 50, 54, 56
        for i in range(8):
            self.bf16r(A + i, A + i)
        for i in range(4):
            a(f'v_pk_add_f32 v[{A+2*i}:{A+2*i+1}], v[{A+2*i}:{A+2*i+1}], v[{XF+2*i}:{XF+2*i+1}]')
        for i in range(8):
            self.bf16r(Hh + i, A + i)

        def sums(src, piv):
            if piv:
                a(f'v_readfirstlane_b32 s50, v{src}')
                a('s_nop 1')
                for i in range(4):
                    a(f'v_pk_add_f32 v[{Dd+2*i}:{Dd+2*i+1}], v[{src+2*i}:{src+2*i+1}], s[50:51] op_sel_hi:[1,0] neg_lo:[0,1] neg_hi:[0,1]')
                s = Dd
            else:
                s = src
            for i in (2, 3, 6, 7):
                a(f'v_cndmask_b32 v{Dd+i}, v{s+i}, 0, s[46:47]')
            idx = [s, s + 4, Dd + 2, Dd + 6]
            pr = lambda r: f'v[{r}:{r+1}]'
            a(f'v_pk_add_f32 {pr(S1)}, {pr(idx[0])}, {pr(idx[1])}')
            a(f'v_pk_mul_f32 {pr(S2)}, {pr(idx[0])}, {pr(idx[0])}')
            a(f'v_pk_add_f32 {pr(S1)}, {pr(S1)}, {pr(idx[2])}')
            a(f'v_pk_fma_f32 {pr(S2)}, {pr(idx[1])}, {pr(idx[1])}, {pr(S2)}')
            a(f'v_pk_add_f32 {pr(S1)}, {pr(S1)}, {pr(idx[3])}')
            a(f'v_pk_fma_f32 {pr(S2)}, {pr(idx[2])}, {pr(idx[2])}, {pr(S2)}')
            a(f'v_add_f32 v{S1}, v{S1}, v{S1+1}')
            a(f'v_pk_fma_f32 {pr(S2)}, {pr(idx[3])}, {pr(idx[3])}, {pr(S2)}')
            a(f'v_add_f32 v{S2}, v{S2}, v{S2+1}')
            self.ladder64([S1, S2], [S1 + 1, S2 + 1])
            self.ln_stats(S1, S2, 's50' if piv else None, 58, 59, 62, 63, MO, RO)

        def norm(src, dst):
            for i in range(4):
                a(f'v_pk_add_f32 v[{dst+2*i}:{dst+2*i+1}], v[{src+2*i}:{src+2*i+1}], v[{MO}:{MO+1}] op_sel_hi:[1,0] neg_lo:[0,1] neg_hi:[0,1]')
            for i in range(8):
                self.bf16r(dst + i, dst + i)
            for i in range(4):
                a(f'v_pk_mul_f32 v[{dst+2*i}:{dst+2*i+1}], v[{dst+2*i}:{dst+2*i+1}], v[{RO}:{RO+1}] op_sel_hi:[1,0]')
            for i in range(8):
                self.bf16r(dst + i, dst + i)

        sums(Hh, True)
        norm(Hh, A)
        sums(A, False)
        norm(A, A)
        for i in range(8):
            a(f'v_lshrrev_b32 v{Dd+i}, 15, v{A+i}')
        for i in range(8):
            a(f'ds_read_u16_d16_hi v{Y+i}, v{Dd+i}')
        for i in (2, 3, 6, 7):
            a(f'v_cndmask_b32 v{A+i}, v{A+i}, 1.0, s[46:47]')
        a(f'v_min3_f32 v48, |v{A}|, |v{A+1}|, |v{A+2}|')
        a(f'v_max3_f32 v49, |v{A}|, |v{A+1}|, |v{A+2}|')
        a(f'v_min3_f32 v48, v48, |v{A+3}|, |v{A+4}|')
        a(f'v_max3_f32 v49, v49, |v{A+3}|, |v{A+4}|')
        a(f'v_min3_f32 v48, v48, |v{A+5}|, |v{A+6}|')
        a(f'v_max3_f32 v49, v49, |v{A+5}|, |v{A+6}|')
        a(f'v_min_f32 v48, v48, |v{A+7}|')
        a(f'v_max_f32 v49, v49, |v{A+7}|')
        a(f'v_mul_f32 v50, v{RO}, v{MO}')
        a('v_cmp_gt_f32 vcc, s51, v48')
        a('v_cmp_le_f32 s[52:53], s56, v49')
        a('v_cmp_u_f32 s[54:55], v50, v50')
        a('s_or_b64 vcc, vcc, s[52:53]')
        a('s_or_b64 vcc, vcc, s[54:55]')
        a('s_waitcnt lgkmcnt(0)')
        a('s_cbranch_vccnz L_cslow')
        lab('L_cfin')
        for i in range(4):
            a(f'v_pk_add_f32 v[{Y+2*i}:{Y+2*i+1}], v[{Y+2*i}:{Y+2*i+1}], v[{Hh+2*i}:{Hh+2*i+1}]')
        for i in range(4):
            a(f'v_cvt_pk_bf16_f32 v{P+i}, v{Y+2*i}, v{Y+2*i+1}')
        of = self.opt['outf']
        a(f'buffer_store_dword v{P}, v2, s[40:43], s44 offen {of}')
        a(f'buffer_store_dword v{P+2}, v2, s[40:43], s44 offen offset:448 {of}')
        a('s_andn2_b64 exec, exec, s[46:47]')
        a(f'buffer_store_dword v{P+1}, v2, s[40:43], s44 offen offset:4 {of}')
        a(f'buffer_store_dword v{P+3}, v2, s[40:43], s44 offen offset:452 {of}')
        self.stamp(28)
        if self.opt['fix']:
            a('s_and_b32 s96, s6, 0x3fff')
            a('s_lshr_b32 s97, s6, 2')
            a('s_and_b32 s97, s97, 0x0fffc000')
            a('s_or_b32 s96, s96, s97')
            lab('L_fix')
            a('s_memrealtime s[94:95]')
            a('s_waitcnt lgkmcnt(0)')
            a('s_sub_u32 s94, s94, s96')
            a('s_and_b32 s94, s94, 0x0fffffff')
            a(f's_cmp_lt_u32 s94, {self.opt["fix"]}')
            a('s_cbranch_scc1 L_fix')
        self.flush_stamps([(12, 24), (13, 26), (14, 28)])
        a('s_endpgm')
        lab('L_cslow')
        a(f's_mov_b32 s57, {E0 << 23:#x}')
        a(f's_mov_b32 s58, {24 << 23:#x}')
        for i in range(8):
            u = self.u()
            a(f'v_and_b32 v48, 0x7fffffff, v{A+i}')
            a('v_subrev_u32 v48, s57, v48')
            a('v_cmp_le_u32 s[52:53], s58, v48')
            lab(f'L_cs{u}')
            a('s_cmp_eq_u64 s[52:53], 0')
            a(f's_cbranch_scc1 L_ce{u}')
            a('s_ff1_i32_b64 s54, s[52:53]')
            a('s_bitset0_b64 s[52:53], s54')
            a(f'v_readlane_b32 s70, v{A+i}, s54')
            a('s_nop 0')
            a('s_mov_b32 s71, s70')
            a('s_nop 0')
            a('s_call_b64 s[76:77], L_eval')
            a('s_nop 0')
            a('v_readfirstlane_b32 s55, v153')
            a('s_mov_b32 m0, s54')
            a('s_lshl_b32 s55, s55, 16')
            a('s_nop 3')
            a(f'v_writelane_b32 v{Y+i}, s55, m0')
            a(f's_branch L_cs{u}')
            lab(f'L_ce{u}')
        a('s_branch L_cfin')

    def build(self):
        a, lab = self.a, self.lab
        o = self.o
        o.append(HEADER.rstrip('\n'))
        o.append(f'; @launch grid=(256,1,1) block=(512,1,1) lds={L_END}')
        o.append(DOC.rstrip('\n'))
        o.append('.amdgcn_target "amdgcn-amd-amdhsa--gfx950"')
        o.append('.text')
        o.append(f'.globl {KN}')
        o.append('.p2align 8')
        o.append(f'.type {KN},@function')
        lab(KN)
        a('s_cmp_ge_u32 s2, 256')
        a('s_cbranch_scc1 L_exit')
        a('s_memrealtime s[98:99]')
        a('s_load_dwordx16 s[8:23], s[0:1], 0')
        a('s_load_dwordx8 s[24:31], s[0:1], 64')
        a('s_load_dwordx2 s[32:33], s[0:1], 96')
        a('v_lshrrev_b32 v1, 6, v0')
        a('s_lshr_b32 s7, s2, 3')
        a('v_readfirstlane_b32 s3, v1')
        if self.opt['gmap'] == 0:
            a('s_lshr_b32 s4, s2, 2')
        elif self.opt['gmap'] == 1:
            a('s_bfe_u32 s4, s2, 0x10001')
            a('s_lshl1_add_u32 s4, s7, s4')
        else:
            a('s_lshr_b32 s4, s2, 1')
            a('s_xor_b32 s4, s4, s2')
            a('s_and_b32 s4, s4, 1')
            a('s_lshl1_add_u32 s4, s7, s4')
        self.member(5, 6)
        a('s_xor_b32 s7, s7, s5')
        a('s_and_b32 s7, s7, 3')
        a('s_cmp_eq_u32 s7, 0')
        a('s_cselect_b32 s5, 1, 0')
        a('s_cmp_ge_u32 s3, 4')
        a('s_cbranch_scc1 L_helper')
        self.streamer()
        lab('L_helper')
        self.helper()
        lab('L_exit')
        a('s_endpgm')
        o.append('.section .rodata,"a"')
        o.append('.p2align 6')
        o.append(f'.amdhsa_kernel {KN}')
        o.append('  .amdhsa_next_free_vgpr 256')
        o.append('  .amdhsa_next_free_sgpr 102')
        o.append('  .amdhsa_accum_offset 256')
        o.append('  .amdhsa_group_segment_fixed_size 0')
        o.append('  .amdhsa_kernarg_size 104')
        o.append('  .amdhsa_user_sgpr_count 2')
        o.append('  .amdhsa_user_sgpr_kernarg_segment_ptr 1')
        o.append('  .amdhsa_system_sgpr_workgroup_id_x 1')
        o.append('.end_amdhsa_kernel')
        return '\n'.join(o) + '\n'


if __name__ == '__main__':
    out = sys.argv[1]
    opt = eval(sys.argv[2]) if len(sys.argv) > 2 else {}
    open(out, 'w').write(G(**opt).build())
```

```python
import sys, struct, math

KN = 'sequential_preLN__mha_block_cached__mixer_token_mlp__decode_kernel'
HEADER = open('sequential_preLN__mha_block_cached__mixer_token_mlp__decode.s.ref').read().split('; Override launch')[0]


def f2u(x):
    return struct.unpack('<I', struct.pack('<f', x))[0]


QG, OG, TG, TK, RDY, ACC = 0x0, 0x10000, 0x50000, 0x54000, 0x58000, 0x60000
OG2, ACC2, PRB = 0x100000, 0x180000, 0x1a0000
CW = 0x58040
STAMP = 256 << 20
E0 = 108
NTH = 3072
L_FLG, L_CNT, L_WOF, L_PC, L_HDR, L_QL, L_FL2, L_EV = 0, 16, 20, 24, 32, 64, 576, 592
L_XN, L_OW, L_QP = 2048, 6144, 10752
L_TBL = 2 * (E0 << 7)
L_WOS = 34048
L_END = L_TBL + 65536 + 2 * NTH
RS = 144
LOG2E = 1.4426950408889634
SPIN = 1 << 18
FRESH = 1500
GRACE = 200

DOC = '''; Single fused launch, 256 workgroups x 8 waves (one workgroup per CU).
'''


class G:
    def __init__(self, **opt):
        self.o = []
        self.opt = dict(stamps=False, wqf='nt', wof='nt', kvf='nt', vf=None, pace=12, LA=12, setC=True, NST=13, TP=8,
                        psleep=0, HALF=False, outf='', tsleep=64, fix=0, exp='', pdelay=True, hs0=16, qsleep=1, R=2, pbar=3, early=True, swin=16, ILV=True, NF=0, gmap=1, after=True, ptrs=False, probe=0, P16=False, spec=False, evs=0, sprio=2, numa=True, NP=3, PLIM=900, forcec=None, rsleep=40, ev=True, EVI=3, gs0=64)
        self.opt.update(opt)
        self.uid = 0

    def a(self, s):
        self.o.append('  ' + s)

    def lab(self, s):
        self.o.append(s + ':')

    def u(self):
        self.uid += 1
        return self.uid

    def nop(self, n):
        if n > 0:
            self.a(f's_nop {n-1}')

    def stamp(self, sreg):
        if self.opt['stamps']:
            self.a(f's_memrealtime s[{sreg}:{sreg+1}]')

    def vstamp(self, v):
        if self.opt['stamps']:
            self.a('s_memrealtime s[18:19]')
            self.a('s_waitcnt lgkmcnt(0)')
            self.a(f'v_mov_b32 v{v}, s18')
            self.a(f'v_mov_b32 v{v+1}, s19')

    def unvstamp(self, v, sreg):
        if self.opt['stamps']:
            self.a(f'v_readfirstlane_b32 s{sreg}, v{v}')
            self.a(f'v_readfirstlane_b32 s{sreg+1}, v{v+1}')
            self.a('s_nop 1')

    def flush_stamps(self, pairs, vt=250):
        if not self.opt['stamps']:
            return
        a = self.a
        a('s_waitcnt lgkmcnt(0)')
        a('s_mov_b64 exec, 1')
        a('s_lshl_b32 s7, s2, 8')
        a(f's_add_u32 s7, s7, {STAMP}')
        a(f'v_mov_b32 v{vt+2}, s7')
        for slot, sreg in pairs:
            a(f'v_mov_b32 v{vt}, s{sreg}')
            a(f'v_mov_b32 v{vt+1}, s{sreg+1}')
            a(f'global_store_dwordx2 v{vt+2}, v[{vt}:{vt+1}], s[32:33] offset:{8*slot}')
            a('s_nop 1')

    def fresh(self, ts, t0, t1):
        a = self.a
        a(f's_and_b32 s{t0}, s6, 0x3fff')
        a(f's_lshr_b32 s{t1}, s6, 2')
        a(f's_and_b32 s{t1}, s{t1}, 0x0fffc000')
        a(f's_or_b32 s{t0}, s{t0}, s{t1}')
        a(f's_sub_u32 s{t0}, s{t0}, s{ts}')
        a(f's_add_u32 s{t0}, s{t0}, {FRESH}')
        a(f's_bfe_u32 s{t0}, s{t0}, 0x1001b')
        a(f's_bfe_u32 s{t1}, s6, 0x1000f')
        a(f's_cmp_gt_u32 s{t1}, s{t0}')

    def tag_slow(self, name, ok, ts, t0, t1, cnt, va, vb):
        a, lab = self.a, self.lab
        a(f's_mov_b32 s{cnt}, {SPIN}')
        a(f'v_mov_b32 v{va}, 0')
        lab(name)
        a(f'global_load_dword v{vb}, v{va}, s[30:31] sc1')
        a(f's_sub_u32 s{cnt}, s{cnt}, 1')
        a('s_cbranch_scc1 L_exit')
        a('s_waitcnt vmcnt(0)')
        a(f'v_readfirstlane_b32 s6, v{vb}')
        a('s_nop 0')
        self.fresh(ts, t0, t1)
        a(f's_cbranch_scc1 {ok}')
        a(f's_cmp_gt_u32 s{cnt}, {SPIN - GRACE}')
        a(f's_cbranch_scc1 {name}')
        a('s_cmp_eq_u32 s6, 0')
        a(f's_cbranch_scc1 {name}')
        a(f's_branch {ok}')

    def flags4(self, v):
        a = self.a
        a(f'v_xor_b32 v{v}, s6, v{v}')
        for i in (1, 2, 3):
            a(f'v_bitop3_b32 v{v}, v{v+i}, s6, v{v} bitop3:0xbe')
        a(f'v_cmp_eq_u32 vcc, 0, v{v}')

    def bf16r(self, dst, src):
        self.a(f'v_cvt_pk_bf16_f32 v{dst}, 0, v{src}')

    def unpack(self, lo, hi, p):
        self.a(f'v_lshlrev_b32 v{lo}, 16, v{p}')
        self.a(f'v_and_b32 v{hi}, 0xffff0000, v{p}')

    def ladder64(self, regs, tmps, op='v_add_f32'):
        a = self.a
        n = len(regs)
        for ror in (8, 4, 2, 1):
            self.nop(max(0, 2 - (n - 1)))
            for r in regs:
                a(f'{op}_dpp v{r}, v{r}, v{r} row_ror:{ror} row_mask:0xf bank_mask:0xf')
        for sw in ('v_permlane16_swap_b32', 'v_permlane32_swap_b32'):
            for r, t in zip(regs, tmps):
                a(f'v_mov_b32 v{t}, v{r}')
            self.nop(max(0, 2 - (n - 1)))
            for r, t in zip(regs, tmps):
                a(f'{sw} v{r}, v{t}')
            for r, t in zip(regs, tmps):
                a(f'{op} v{r}, v{r}, v{t}')

    def ln_stats(self, s1, s2, piv, t0, t1, sinv, seps, mout, rout):
        a = self.a
        a(f'v_mul_f32 v{s1}, s{sinv}, v{s1}')
        a(f'v_mul_f32 v{t0}, v{s1}, v{s1}')
        a(f'v_fma_f32 v{s2}, v{s2}, s{sinv}, -v{t0}')
        if piv is not None:
            a(f'v_add_f32 v{s1}, {piv}, v{s1}')
        a(f'v_max_f32 v{s2}, 0, v{s2}')
        self.bf16r(t1, s2)
        self.bf16r(mout, s1)
        a(f'v_add_f32 v{t1}, s{seps}, v{t1}')
        self.bf16r(t1, t1)
        a(f'v_sqrt_f32 v{t1}, v{t1}')
        a('s_nop 0')
        self.bf16r(t1, t1)
        a(f'v_rcp_f32 v{rout}, v{t1}')
        a('s_nop 0')

    def member(self, dst, tmp):
        a = self.a
        if self.opt['gmap'] == 0:
            a(f's_and_b32 s{dst}, s2, 3')
        elif self.opt['gmap'] == 1:
            a(f's_bfe_u32 s{tmp}, s2, 0x10002')
            a(f's_and_b32 s{dst}, s2, 1')
            a(f's_lshl1_add_u32 s{dst}, s{tmp}, s{dst}')
        else:
            a(f's_bfe_u32 s{tmp}, s2, 0x10002')
            a(f's_and_b32 s{dst}, s2, 1')
            a(f's_lshl1_add_u32 s{dst}, s{tmp}, s{dst}')

    def getc(self, dst, t):
        a = self.a
        a(f's_load_dwordx2 s[{t}:{t+1}], s[0:1], 40')
        a('s_waitcnt lgkmcnt(0)')
        a(f's_load_dword s{dst}, s[{t}:{t+1}], 0')
        a('s_waitcnt lgkmcnt(0)')

    def cstep(self):
        return 0x20000 if self.opt['ILV'] else 0x8000

    def ld(self, R, n, sreg):
        j = n & 7
        srd = 's[36:39]' if n < 8 else 's[40:43]'
        fl = self.opt['kvf'] if (n < 8 or self.opt['vf'] is None) else self.opt['vf']
        self.a(f'buffer_load_dwordx4 v[{R+4*n}:{R+4*n+3}], v{2+j}, {srd}, s{sreg} offen {fl}')

    def chunk(self, R, issue, wait):
        a = self.a
        LA, NST, TP, HALF = self.opt['LA'], self.opt['NST'], self.opt['TP'], self.opt['HALF']
        pool0 = 4 * NST * 0x8000
        npool = (16 - NST) * 16 * (2 if HALF else 1) - (self.opt['NF'] if HALF else 0)

        def hooks(n):
            if NST < 16 and n == (16 - LA - TP) % 16:
                u = self.u()
                wrap = 16 - LA - TP < 0
                a(f's_cmp_gt_u32 s45, {2 if wrap else 1}')
                a(f's_cbranch_scc1 L_nt{u}')
                if wrap:
                    a('s_cmp_ge_u32 s44, 0x200000')
                    a(f's_cbranch_scc1 L_nt{u}')
                a('s_mov_b32 s50, 1')
                a('s_mov_b32 s51, 0')
                a('s_atomic_add_x2 s[50:51], s[52:53], 0x0 glc')
                self.lab(f'L_nt{u}')
            if n == 16 - LA:
                u = self.u()
                a(f's_add_u32 s44, s47, {self.cstep():#x}')
                a('s_cmp_gt_u32 s45, 1')
                a(f's_cbranch_scc1 L_st{u}')
                if NST < 16:
                    a('s_waitcnt lgkmcnt(0)')
                    a('s_cmp_lg_u32 s51, s6')
                    a('s_cbranch_scc1 L_tkretry')
                    self.lab('L_tkok')
                    NF = self.opt['NF']
                    if HALF and NF:
                        a('s_lshr_b32 s48, s50, 2')
                        a(f's_min_u32 s49, s48, {NF // 4}')
                        a('s_add_u32 s48, s48, s49')
                        a('s_lshl_b32 s48, s48, 14')
                        a(f's_add_u32 s38, s48, {pool0 + 0x4000}')
                        a('s_min_u32 s38, s38, 0x200000')
                        a(f's_cmp_lt_u32 s50, {NF}')
                        a('s_cselect_b32 s38, 0x200000, s38')
                        a('s_cselect_b32 s62, 0, 0xffff0000')
                    elif self.opt['P16']:
                        a('s_lshr_b32 s48, s50, 4')
                        a('s_lshl_b32 s48, s48, 17')
                        a('s_bfe_u32 s49, s50, 0x20002')
                        a('s_lshl_b32 s49, s49, 14')
                        a('s_add_u32 s48, s48, s49')
                    else:
                        a('s_lshr_b32 s48, s50, 2')
                        a(f's_lshl_b32 s48, s48, {14 if HALF else 15}')
                        if HALF:
                            a(f's_add_u32 s38, s48, {pool0 + 0x4000}')
                            a('s_min_u32 s38, s38, 0x200000')
                            a('s_mov_b32 s62, 0xffff0000')
                    a('s_and_b32 s49, s50, 3')
                    a('s_lshl_b32 s49, s49, 10')
                    a('s_add_u32 s48, s48, s49')
                    a('s_add_u32 s48, s48, s54')
                    a(f's_cmp_lt_u32 s50, {npool}')
                    a('s_cselect_b32 s44, s48, 0x200000')
                    if self.opt['stamps']:
                        u2 = self.u()
                        a(f's_cbranch_scc0 L_dg{u2}')
                        a('s_memrealtime s[94:95]')
                        a('s_add_u32 s96, s96, 1')
                        a('s_waitcnt lgkmcnt(0)')
                        self.lab(f'L_dg{u2}')
                else:
                    a('s_mov_b32 s44, 0x200000')
                self.lab(f'L_st{u}')
            if HALF and n == (24 - LA) % 16:
                a('s_mov_b32 s42, s38')

        def iss(n):
            if issue:
                hooks(n)
                t = n + LA
                if t < 16:
                    self.ld(R, t, 47)
                else:
                    self.ld(R, t - 16, 44)

        Q, AC, S = 10, 14, 22
        X, C, C2, MN, AL, E, E1, PA0, PB0, PA1, PB1 = 30, 31, 32, 33, 34, 35, 36, 37, 38, 39, 42
        M, L = 40, 41
        SU, SU2 = 43, 44
        for j in range(8):
            if wait:
                a(f's_waitcnt vmcnt({LA-1})')
            k = R + 4 * j
            a(f'v_dot2_f32_bf16 v{S+j}, v{k}, v{Q}, 0')
            for i in range(1, 4):
                a(f'v_dot2_f32_bf16 v{S+j}, v{k+i}, v{Q+i}, v{S+j}')
            iss(j)
        for p in range(4):
            a(f'v_add_f32_dpp v{S+2*p}, v{S+2*p}, v{S+2*p} row_ror:8 row_mask:0xf bank_mask:0x3')
            a(f'v_add_f32_dpp v{S+2*p}, v{S+2*p+1}, v{S+2*p+1} row_ror:8 row_mask:0xf bank_mask:0xc')
        for p in (0, 4):
            a(f'v_add_f32_dpp v{S+p}, v{S+p}, v{S+p} row_half_mirror row_mask:0xf bank_mask:0x5')
            a(f'v_add_f32_dpp v{S+p}, v{S+p+2}, v{S+p+2} row_half_mirror row_mask:0xf bank_mask:0xa')
        self.nop(2)
        a(f'v_permlane16_swap_b32 v{S}, v{S+4}')
        a(f'v_add_f32 v{S}, v{S}, v{S+4}')
        self.nop(2)
        a(f'v_add_f32_dpp v{S}, v{S}, v{S} quad_perm:[1,0,3,2] row_mask:0xf bank_mask:0xf')
        self.nop(2)
        a(f'v_add_f32_dpp v{S}, v{S}, v{S} quad_perm:[2,3,0,1] row_mask:0xf bank_mask:0xf')
        self.bf16r(X, S)
        if HALF and issue:
            a(f'v_cndmask_b32 v{X}, v{X}, v254, s[56:57]')
        self.nop(2)
        a(f'v_max_f32_dpp v{C}, v{X}, v{X} row_ror:8 row_mask:0xf bank_mask:0xf')
        self.nop(2)
        a(f'v_max_f32_dpp v{C}, v{C}, v{C} row_half_mirror row_mask:0xf bank_mask:0xf')
        for sw in ('v_permlane16_swap_b32', 'v_permlane32_swap_b32'):
            a(f'v_mov_b32 v{C2}, v{C}')
            self.nop(2)
            a(f'{sw} v{C}, v{C2}')
            a(f'v_max_f32 v{C}, v{C}, v{C2}')
        a(f'v_mul_f32 v{C}, s46, v{C}')
        a(f'v_max_f32 v{MN}, v{M}, v{C}')
        a(f'v_fma_f32 v{E}, v{X}, s46, -v{MN}')
        a(f'v_sub_f32 v{AL}, v{M}, v{MN}')
        a(f'v_exp_f32 v{E}, v{E}')
        a(f'v_exp_f32 v{AL}, v{AL}')
        a(f'v_mov_b32 v{M}, v{MN}')
        a(f'v_mov_b32 v{E1}, v{E}')
        for i in range(2):
            a(f'v_mul_f32 v{AC+i}, v{AC+i}, v{AL}')
        a(f'v_permlane16_swap_b32 v{E}, v{E1}')
        for i in range(2, 8):
            a(f'v_mul_f32 v{AC+i}, v{AC+i}, v{AL}')
        a(f'v_cvt_pk_bf16_f32 v{PA0}, v{E}, 0')
        a(f'v_cvt_pk_bf16_f32 v{PB0}, 0, v{E}')
        a(f'v_cvt_pk_bf16_f32 v{PA1}, v{E1}, 0')
        a(f'v_cvt_pk_bf16_f32 v{PB1}, 0, v{E1}')
        a(f'v_add_f32 v{SU}, v{E}, v{E1}')
        a(f'v_mul_f32 v{L}, v{L}, v{AL}')
        extra = [
            [f'v_add_f32_dpp v{SU}, v{SU}, v{SU} row_ror:8 row_mask:0xf bank_mask:0xf'],
            [f'v_add_f32_dpp v{SU}, v{SU}, v{SU} row_half_mirror row_mask:0xf bank_mask:0xf'],
            [f'v_mov_b32 v{SU2}, v{SU}'],
            [f'v_permlane32_swap_b32 v{SU}, v{SU2}', f'v_add_f32 v{L}, v{L}, v{SU}', f'v_add_f32 v{L}, v{L}, v{SU2}'],
        ]
        for j in range(8):
            if wait:
                a(f's_waitcnt vmcnt({LA-1})')
            v = R + 32 + 4 * j
            pa, pb = (PA0, PB0) if j < 4 else (PA1, PB1)
            n = 8 * (j & 1) + 4 * ((j >> 1) & 1)
            for i in range(4):
                a(f'v_dot2c_f32_bf16_dpp v{AC+2*i}, v{pa}, v{v+i} row_newbcast:{n} row_mask:0xf bank_mask:0xf')
                a(f'v_dot2c_f32_bf16_dpp v{AC+2*i+1}, v{pb}, v{v+i} row_newbcast:{n} row_mask:0xf bank_mask:0xf')
            iss(8 + j)
            if j < len(extra):
                for s in extra[j]:
                    a(s)

    def issue_set(self, R, done=0, cnt=16):
        for n in range(cnt):
            if self.opt['pace'] and done + n >= self.opt['pace']:
                self.a(f's_waitcnt vmcnt({self.opt["pace"]-1})')
            self.ld(R, n, 44)

    def streamer(self):
        a, lab = self.a, self.lab
        opt = self.opt
        RA, RB, RC = 48, 112, 176
        NST, setC = opt['NST'], opt['setC']
        a('v_lshlrev_b32 v2, 4, v0')
        for j in range(1, 8):
            a(f'v_add_u32 v{2+j}, {(j & 3) * 4096 + (j >> 2) * 65536 if opt["P16"] else 4096 * j}, v2')
        a('s_lshl_b32 s7, s4, 21')
        a('s_mov_b32 s38, 0x200000')
        a('s_mov_b32 s39, 0x20000')
        a('s_mov_b32 s42, 0x200000')
        a('s_mov_b32 s43, 0x20000')
        self.member(44, 45)
        a(f's_mul_i32 s44, s44, {0x4000 if opt["P16"] else 0x8000 if opt["ILV"] else NST*0x8000}')
        a('s_or_b32 s47, s2, s3')
        a('v_lshlrev_b32 v11, 6, v0')
        a('s_waitcnt lgkmcnt(0)')
        a('s_cmp_lg_u32 s47, 0')
        a('s_cbranch_scc1 L_sn0')
        a('s_and_b32 s49, s98, 0x3fff')
        a('s_lshl_b32 s48, s98, 2')
        a('s_and_b32 s48, s48, 0x3fff0000')
        a('s_or_b32 s48, s48, s49')
        a('s_or_b32 s48, s48, 0x8000')
        a('v_mov_b32 v10, s48')
        a('s_mov_b64 exec, 15')
        a('global_store_dword v11, v10, s[30:31] sc1')
        if opt['ptrs']:
            a('s_mov_b64 exec, 1')
            a('v_mov_b32 v12, 0')
            for i, r in enumerate((8, 10, 12, 14, 16, 28, 30, 32, 11, 13, 33)):
                a(f'v_mov_b32 v13, s{r}')
                a(f'global_store_dword v12, v13, s[30:31] offset:{16+4*i}')
                a('s_nop 1')
        a('s_mov_b64 exec, -1')
        lab('L_sn0')
        a('s_add_u32 s36, s10, s7')
        a('s_addc_u32 s37, s11, 0')
        a('s_add_u32 s40, s12, s7')
        a('s_addc_u32 s41, s13, 0')
        if opt['pdelay']:
            a('s_cmp_eq_u32 s5, 0')
            a('s_cbranch_scc1 L_spd')
            a('s_barrier')
            lab('L_spd')
        self.issue_set(RB)
        done = 16
        if setC:
            a(f's_add_u32 s44, s44, {self.cstep():#x}')
            self.issue_set(RC, done)
            done += 16
        a(f's_add_u32 s44, s44, {self.cstep():#x}')
        a('s_load_dword s6, s[30:31], 192')
        self.issue_set(RA, done, opt['LA'])
        a('s_mov_b32 s47, s44')
        a('s_lshl_b32 s48, s4, 8')
        a(f's_add_u32 s48, s48, {TK}')
        a('s_add_u32 s52, s32, s48')
        a('s_addc_u32 s53, s33, 0')
        a('s_lshl_b32 s54, s3, 10')
        a(f's_sub_u32 s54, {4*NST*0x8000}, s54')
        a(f's_setprio {opt["sprio"]}')
        for i in range(8):
            a(f'v_mov_b32 v{14+i}, 0')
        a('v_mov_b32 v40, 0xff800000')
        a('v_mov_b32 v41, 0')
        a(f's_mov_b32 s46, {f2u(LOG2E/16.0):#x}')
        niter = NST - (2 if setC else 1)
        a(f's_mov_b32 s45, {niter}')
        a('s_mov_b64 s[56:57], 0')
        a('s_mov_b32 s62, 0')
        a('v_mov_b32 v254, 0xff800000')
        a('v_mov_b32 v255, 0')
        a('v_and_b32 v253, 63, v0')
        a('v_cmp_le_u32 vcc, 24, v253')
        a('v_and_b32 v45, 31, v0')
        a('v_lshlrev_b32 v247, 4, v45')
        a('v_cndmask_b32 v30, 0, 24, vcc')
        a('v_sub_u32 v30, v253, v30')
        a('v_mul_u32_u24 v249, 24, v30')
        a('v_cndmask_b32 v31, 0, 1, vcc')
        a('v_lshl_add_u32 v249, v31, 9, v249')
        a('v_cmp_eq_u32 s[58:59], 21, v30')
        a('v_cmp_gt_u32 s[60:61], 21, v30')
        a('v_cmp_gt_u32 s[64:65], 22, v30')
        a('v_lshlrev_b32 v46, 5, v45')
        a('v_bfe_u32 v30, v0, 5, 1')
        a('v_lshl_add_u32 v46, v30, 4, v46')
        a('s_lshl_b32 s7, s3, 10')
        a('v_add_u32 v46, s7, v46')
        a('s_lshl_b32 s7, s3, 3')
        a('v_mov_b32 v45, s7')
        if opt['numa']:
            a('s_and_b32 s48, s4, 15')
            a('s_lshr_b32 s66, s48, 3')
            a('s_lshl_b32 s66, s66, 13')
            a('s_lshl_b32 s48, s48, 15')
            a('s_add_u32 s48, s48, s66')
            a('s_lshr_b32 s67, s4, 4')
            self.member(49, 7)
            a('s_lshl2_add_u32 s49, s67, s49')
            a('s_mul_i32 s49, s49, 384')
            a('s_add_u32 s48, s48, s49')
            a(f's_add_u32 s48, s48, {OG2}')
            a('v_lshl_add_u32 v248, v253, 4, s48')
            a(f'v_mul_u32_u24 v31, {16384-384}, v31')
            a('v_add_u32 v248, v248, v31')
        else:
            a('s_and_b32 s48, s4, 15')
            a('s_lshl_b32 s48, s48, 4')
            a('s_lshr_b32 s49, s4, 4')
            a('s_lshl2_add_u32 s48, s49, s48')
            self.member(49, 7)
            a('s_add_u32 s48, s48, s49')
            a('s_lshl_b32 s48, s48, 10')
            a(f's_add_u32 s48, s48, {OG}')
            a('v_lshl_add_u32 v248, v253, 4, s48')
        a('v_mov_b32 v30, 0')
        self.stamp(80)
        a('s_waitcnt lgkmcnt(0)')
        self.fresh(98, 48, 49)
        a('s_cbranch_scc0 L_snw')
        lab('L_snok')
        a(f's_mov_b32 s48, {SPIN}')
        a('v_mov_b32 v47, s6')
        a('s_branch L_sqw')
        lab('L_sqs')
        a('s_sleep 1')
        lab('L_sqw')
        a(f'ds_read_b128 v[32:35], v30 offset:{L_FL2}')
        a(f'ds_read_b128 v[10:13], v247 offset:{L_QL}')
        a('s_sub_u32 s48, s48, 1')
        a('s_cbranch_scc1 L_exit')
        a('s_waitcnt lgkmcnt(0)')
        self.flags4(32)
        a('s_cbranch_vccz L_sqs')
        self.stamp(82)
        if opt['stamps']:
            a('s_memtime s[90:91]')
            a('s_mov_b32 s96, 0')
            a('s_mov_b32 s97, 0')
            a('s_mov_b64 s[94:95], s[98:99]')
        lab('L_sloop')
        self.chunk(RA, True, True)
        a('s_mov_b32 s47, s44')
        if opt['HALF']:
            a('s_mov_b32 s56, s62')
            a('s_mov_b32 s57, s62')
        a(f's_cmp_eq_u32 s45, {niter}')
        a('s_cbranch_scc1 L_sB')
        if setC:
            a(f's_cmp_eq_u32 s45, {niter-1}')
            a('s_cbranch_scc1 L_sC')
        if opt['ev']:
            a(f's_cmp_lg_u32 s45, {opt["EVI"]}')
            a('s_cbranch_scc1 L_sback')
            a(f'ds_write_b32 v255, v47 offset:{L_EV}')
        lab('L_sback')
        a('s_sub_u32 s45, s45, 1')
        a('s_max_i32 s45, s45, 1')
        a('s_cmp_lt_u32 s47, 0x200000')
        a('s_cbranch_scc1 L_sloop')
        self.stamp(84)
        if opt['stamps']:
            a('s_memtime s[92:93]')
        AC = 14
        a('s_waitcnt lgkmcnt(0)')
        a('v_mov_b32 v31, 0')
        a('v_mov_b32 v32, 1')
        for i in range(4):
            a(f'v_permlane32_swap_b32 v{AC+i}, v{AC+4+i}')
        for i in range(4):
            a(f'v_add_f32 v{AC+i}, v{AC+i}, v{AC+4+i}')
        a(f'ds_write_b128 v46, v[{AC}:{AC+3}] offset:{L_OW}')
        a(f'ds_write_b64 v45, v[40:41] offset:{L_HDR}')
        a('s_mov_b64 exec, 1')
        a(f'ds_add_rtn_u32 v33, v31, v32 offset:{L_CNT}')
        a('s_mov_b64 exec, -1')
        if opt['numa']:
            a(f'ds_read_b64 v[34:35], v31 offset:{L_PC}')
        H, D = 236, 212
        a(f'ds_read_b128 v[{H}:{H+3}], v31 offset:{L_HDR}')
        a(f'ds_read_b128 v[{H+4}:{H+7}], v31 offset:{L_HDR+16}')
        for w in range(4):
            for e in range(3):
                a(f'ds_read_b64 v[{D+6*w+2*e}:{D+6*w+2*e+1}], v249 offset:{L_OW+1024*w+8*e}')
        a('s_waitcnt lgkmcnt(14)')
        a('v_readfirstlane_b32 s7, v33')
        a('s_nop 0')
        a('s_cmp_lg_u32 s7, 3')
        a('s_cbranch_scc1 L_sexit' if opt['stamps'] else 's_cbranch_scc1 L_exit')
        if opt['numa']:
            a('v_cmp_ne_u32 vcc, s6, v34')
            a('s_cbranch_vccnz L_spc')
            lab('L_spcok')
            a('v_xor_b32 v248, v35, v248')
        a('s_waitcnt lgkmcnt(12)')
        a(f'v_max3_f32 v30, v{H}, v{H+2}, v{H+4}')
        a(f'v_max_f32 v30, v30, v{H+6}')
        for w in range(4):
            a(f'v_sub_f32 v{H+2*w}, v{H+2*w}, v30')
        for w in range(4):
            a(f'v_exp_f32 v{H+2*w}, v{H+2*w}')
        a('s_nop 0')
        a(f'v_mul_f32 v31, v{H}, v{H+1}')
        for w in range(1, 4):
            a(f'v_fmac_f32 v31, v{H+2*w}, v{H+2*w+1}')
        a('v_rcp_f32 v32, v31')
        a('v_log_f32 v33, v31')
        a('s_waitcnt lgkmcnt(0)')
        for e in range(0, 6, 2):
            a(f'v_pk_mul_f32 v[{22+e}:{23+e}], v[{D+e}:{D+e+1}], v[{H}:{H+1}] op_sel_hi:[1,0]')
        for w in range(1, 4):
            for e in range(0, 6, 2):
                a(f'v_pk_fma_f32 v[{22+e}:{23+e}], v[{D+6*w+e}:{D+6*w+e+1}], v[{H+2*w}:{H+2*w+1}], v[{22+e}:{23+e}] op_sel_hi:[1,0,1]')
        a('v_add_f32 v33, v33, v30')
        for e in range(0, 6, 2):
            a(f'v_pk_mul_f32 v[{22+e}:{23+e}], v[{22+e}:{23+e}], v[32:33] op_sel_hi:[1,0]')
        a('v_cvt_pk_bf16_f32 v44, v22, v23')
        a('v_cvt_pk_bf16_f32 v45, v24, v25')
        a('v_cvt_pk_bf16_f32 v46, v26, v27')
        a('v_cndmask_b32 v44, 0, v44, s[64:65]')
        a('v_cndmask_b32 v45, 0, v45, s[60:61]')
        a('v_cndmask_b32 v46, 0, v46, s[60:61]')
        a('v_cndmask_b32 v45, v45, v33, s[58:59]')
        a('s_mov_b32 exec_hi, 0xffff')
        a('global_store_dwordx4 v248, v[44:47], s[32:33] sc1')
        if opt['after']:
            a('v_mov_b32 v30, 0')
            a('v_mov_b32 v31, 5')
            a(f'ds_write_b32 v30, v31 offset:{L_CNT}')
        self.stamp(86)
        if opt['stamps']:
            self.flush_stamps([(3, 86)])
            lab('L_sexit')
            a('s_mov_b64 exec, 1')
            a('s_lshl_b32 s7, s2, 8')
            a(f's_add_u32 s7, s7, {STAMP}')
            a('s_lshl3_add_u32 s7, s3, s7')
            a('v_mov_b32 v252, s7')
            for slot, sr in ((22, 84), (26, 94)):
                a(f'v_mov_b32 v250, s{sr}')
                a(f'v_mov_b32 v251, s{sr+1}')
                a(f'global_store_dwordx2 v252, v[250:251], s[32:33] offset:{8*slot}')
                a('s_nop 1')
            a('s_cmp_lg_u32 s3, 0')
            a('s_cbranch_scc1 L_exit')
            a('v_mov_b32 v250, s96')
            a('v_mov_b32 v251, s97')
            if not opt['probe']:
                a(f'global_store_dwordx2 v252, v[250:251], s[32:33] offset:{8*30}')
            a('s_cmp_lg_u32 s3, 0')
            a('s_cbranch_scc1 L_exit')
            a('s_getreg_b32 s88, hwreg(HW_REG_XCC_ID)')
            a('s_and_b32 s88, s88, 15')
            a('s_mov_b32 s89, 0')
            a('s_sub_u32 s90, s92, s90')
            a('s_mov_b32 s91, 0')
            self.flush_stamps([(0, 98), (1, 80), (2, 82), (8, 84), (6, 88), (7, 90)])
        a('s_endpgm')
        if NST < 16:
            lab('L_tkretry')
            a(f's_mov_b32 s48, {SPIN}')
            lab('L_tkr2')
            a('s_sleep 8')
            a('s_mov_b32 s50, 1')
            a('s_mov_b32 s51, 0')
            a('s_atomic_add_x2 s[50:51], s[52:53], 0x0 glc')
            a('s_sub_u32 s48, s48, 1')
            a('s_cbranch_scc1 L_exit')
            a('s_waitcnt lgkmcnt(0)')
            a('s_cmp_lg_u32 s51, s6')
            a('s_cbranch_scc1 L_tkr2')
            a('s_branch L_tkok')
        if opt['numa']:
            lab('L_spc')
            a(f's_mov_b32 s48, {SPIN}')
            lab('L_spc2')
            a('s_sleep 2')
            a(f'ds_read_b64 v[34:35], v31 offset:{L_PC}')
            a('s_sub_u32 s48, s48, 1')
            a('s_cbranch_scc1 L_exit')
            a('s_waitcnt lgkmcnt(0)')
            a('v_cmp_ne_u32 vcc, s6, v34')
            a('s_cbranch_vccnz L_spc2')
            a('s_branch L_spcok')
        lab('L_snw')
        self.tag_slow('L_snw2', 'L_snok', 98, 48, 49, 50, 30, 31)
        lab('L_sB')
        self.chunk(RB, False, False)
        a('s_branch L_sback')
        if setC:
            lab('L_sC')
            self.chunk(RC, False, False)
            a('s_branch L_sback')

    W1, B1, W2P, C1P, ET, EA = 64, 92, 120, 134, 136, 152

    def eval_sub(self):
        a = self.a
        W1, B1, W2P, C1P, ET, EA = self.W1, self.B1, self.W2P, self.C1P, self.ET, self.EA
        self.lab('L_eval')
        a(f'v_mov_b32 v{EA}, 0')
        for base in range(0, 14, 2):
            prs = [(base, ET), (base + 1, ET + 6)]
            for p, t in prs:
                a(f'v_pk_mul_f32 v[{t}:{t+1}], v[{W1+2*p}:{W1+2*p+1}], s[70:71]')
            for p, t in prs:
                self.bf16r(t, t)
                self.bf16r(t + 1, t + 1)
            for p, t in prs:
                a(f'v_pk_add_f32 v[{t}:{t+1}], v[{t}:{t+1}], v[{B1+2*p}:{B1+2*p+1}]')
            for p, t in prs:
                self.bf16r(t, t)
                self.bf16r(t + 1, t + 1)
            for p, t in prs:
                a(f'v_pk_mul_f32 v[{t+2}:{t+3}], v[{t}:{t+1}], v[{t}:{t+1}]')
            for p, t in prs:
                a(f'v_pk_fma_f32 v[{t+2}:{t+3}], v[{t+2}:{t+3}], s[72:73], v[{C1P}:{C1P+1}]')
            for p, t in prs:
                a(f'v_pk_mul_f32 v[{t+2}:{t+3}], v[{t+2}:{t+3}], v[{t}:{t+1}]')
            for p, t in prs:
                a(f'v_exp_f32 v{t+2}, v{t+2}')
                a(f'v_exp_f32 v{t+3}, v{t+3}')
            a('s_nop 0')
            for p, t in prs:
                a(f'v_add_f32 v{t+2}, 1.0, v{t+2}')
                a(f'v_add_f32 v{t+3}, 1.0, v{t+3}')
            for p, t in prs:
                a(f'v_rcp_f32 v{t+2}, v{t+2}')
                a(f'v_rcp_f32 v{t+3}, v{t+3}')
            a('s_nop 0')
            for p, t in prs:
                a(f'v_pk_mul_f32 v[{t}:{t+1}], v[{t}:{t+1}], v[{t+2}:{t+3}]')
            for p, t in prs:
                a(f'v_cvt_pk_bf16_f32 v{t+4}, v{t}, v{t+1}')
            for p, t in prs:
                a(f'v_dot2c_f32_bf16 v{EA}, v{t+4}, v{W2P+p}')
            if self.opt['evs']:
                a(f's_sleep {self.opt["evs"]}')
        self.nop(2)
        self.ladder64([EA], [ET])
        self.bf16r(EA, EA)
        a(f'v_add_f32 v{EA}, s74, v{EA}')
        a(f'v_cvt_pk_bf16_f32 v153, v{EA}, 0')
        a('s_setpc_b64 s[76:77]')

    def producer(self):
        a, lab = self.a, self.lab
        opt = self.opt
        a('v_lshrrev_b32 v2, 4, v1')
        a('v_and_b32 v3, 15, v1')
        a('v_mul_u32_u24 v4, 896, v2')
        a('v_lshl_add_u32 v4, v3, 4, v4')
        a('v_cmp_gt_u32 s[60:61], 14, v3')
        a('v_bfrev_b32 v7, 1')
        a('v_lshrrev_b32 v5, 3, v1')
        a('v_and_b32 v6, 7, v1')
        a('v_cndmask_b32 v4, v7, v4, s[60:61]')
        a(f's_mov_b32 s7, {14*8192}')
        a('v_mul_lo_u32 v56, s7, v5')
        a('v_lshl_add_u32 v56, v6, 4, v56')
        for r in range(4):
            a(f's_add_u32 s{40+r}, s34, {r}')
            a(f's_and_b32 s{40+r}, s{40+r}, 3')
            a(f's_mul_i32 s{40+r}, s{40+r}, 224')
        a(f's_mul_i32 s48, s34, {112*8192}')
        a('s_lshl_b32 s49, s4, 7')
        a('s_add_u32 s48, s48, s49')
        a('s_mov_b32 s38, 3584')
        a('s_mov_b32 s39, 0x20000')
        a(f's_mov_b32 s46, {0 if "nowq" in opt["exp"] else 3670016}')
        a('s_mov_b32 s47, 0x20000')
        a('s_waitcnt lgkmcnt(0)')
        a('s_mov_b32 s35, s98')
        a('s_mov_b32 s36, s8')
        a('s_mov_b32 s37, s9')
        a('s_mov_b32 s44, s14')
        a('s_mov_b32 s45, s15')
        for r in range(4):
            a(f'buffer_load_dwordx4 v[{8+4*r}:{11+4*r}], v4, s[36:39], s{40+r} offen')
        WR = 100
        for it in range(14):
            a(f'buffer_load_dwordx4 v[{WR+4*it}:{WR+4*it+3}], v56, s[44:47], s48 offen {opt["wqf"]}')
            if it < 13:
                a('s_add_u32 s48, s48, 8192')
        if opt['pdelay'] and opt['pbar'] < 0:
            a('s_barrier')
        a(f's_mov_b32 s62, {f2u(1.0/448):#x}')
        a(f's_mov_b32 s63, {f2u(1e-5):#x}')
        a('s_mov_b32 s64, 0x05040100')
        a('s_mov_b32 s65, 0x07060302')
        a('s_lshl_b32 s18, s34, 10')
        a('v_lshl_add_u32 v57, v1, 4, s18')
        a('v_mul_u32_u24 v58, 28, v5')
        a('v_add_u32 v58, s18, v58')
        a('s_waitcnt vmcnt(14)')
        self.vstamp(228)
        XF = 24
        for i in range(16):
            self.unpack(XF + 2 * i, XF + 2 * i + 1, 8 + i)
        PV, S1, S2, DT = 76, 78, 80, 82
        a('s_nop 0')
        a(f'v_mov_b32_dpp v{PV}, v{XF} row_newbcast:0 row_mask:0xf bank_mask:0xf')
        for i in range(16):
            d = DT + 2 * (i & 1)
            a(f'v_pk_add_f32 v[{d}:{d+1}], v[{XF+2*i}:{XF+2*i+1}], v[{PV}:{PV+1}] op_sel_hi:[1,0] neg_lo:[0,1] neg_hi:[0,1]')
            if i == 0:
                a(f'v_pk_mul_f32 v[{S2}:{S2+1}], v[{d}:{d+1}], v[{d}:{d+1}]')
                a(f'v_mov_b32 v{S1}, v{d}')
                a(f'v_mov_b32 v{S1+1}, v{d+1}')
            else:
                a(f'v_pk_fma_f32 v[{S2}:{S2+1}], v[{d}:{d+1}], v[{d}:{d+1}], v[{S2}:{S2+1}]')
                a(f'v_pk_add_f32 v[{S1}:{S1+1}], v[{S1}:{S1+1}], v[{d}:{d+1}]')
        a(f'v_add_f32 v{S1}, v{S1}, v{S1+1}')
        a(f'v_add_f32 v{S2}, v{S2}, v{S2+1}')
        a(f'v_cndmask_b32 v{S1}, 0, v{S1}, s[60:61]')
        a(f'v_cndmask_b32 v{S2}, 0, v{S2}, s[60:61]')
        for ror in (8, 4, 2, 1):
            a('s_nop 0')
            a(f'v_add_f32_dpp v{S1}, v{S1}, v{S1} row_ror:{ror} row_mask:0xf bank_mask:0xf')
            a(f'v_add_f32_dpp v{S2}, v{S2}, v{S2} row_ror:{ror} row_mask:0xf bank_mask:0xf')
        MO, RO = 86, 88
        self.ln_stats(S1, S2, f'v{PV}', 84, 85, 62, 63, MO, RO)
        for i in range(4):
            a(f'v_pk_add_f32 v[{XF+2*i}:{XF+2*i+1}], v[{XF+2*i}:{XF+2*i+1}], v[{MO}:{MO+1}] op_sel_hi:[1,0] neg_lo:[0,1] neg_hi:[0,1]')
        for i in range(8):
            self.bf16r(XF + i, XF + i)
        for i in range(4):
            a(f'v_pk_mul_f32 v[{XF+2*i}:{XF+2*i+1}], v[{XF+2*i}:{XF+2*i+1}], v[{RO}:{RO+1}] op_sel_hi:[1,0]')
        for i in range(4):
            a(f'v_cvt_pk_bf16_f32 v{8+i}, v{XF+2*i}, v{XF+2*i+1}')
        a(f'ds_write_b128 v57, v[8:11] offset:{L_XN}')
        a(f'v_add_u32 v58, {L_XN}, v58')
        a('s_waitcnt lgkmcnt(0)')
        XN = 8
        for b in range(4):
            for p in range(0, 6, 2):
                a(f'ds_read2_b32 v[{XN+8*b+p}:{XN+8*b+p+1}], v58 offset0:{64*b+p} offset1:{64*b+p+1}')
            a(f'ds_read_b32 v{XN+8*b+6}, v58 offset:{256*b+24}')
            if b == 2:
                a('s_waitcnt lgkmcnt(8)')
        a('s_waitcnt lgkmcnt(0)')
        a('s_load_dword s6, s[30:31], 0')
        PP, QA = 40, 60
        for p in range(7):
            a(f's_waitcnt vmcnt({12-2*p})')
            if opt['pdelay'] and opt['pbar'] == p:
                a('s_barrier')
            r0, r1 = WR + 8 * p, WR + 8 * p + 4
            for dw in range(4):
                a(f'v_perm_b32 v{PP+2*dw}, v{r1+dw}, v{r0+dw}, s64')
                a(f'v_perm_b32 v{PP+2*dw+1}, v{r1+dw}, v{r0+dw}, s65')
            for b in range(4):
                for e in range(8):
                    src2 = '0' if p == 0 else f'v{QA+8*b+e}'
                    a(f'v_dot2_f32_bf16 v{QA+8*b+e}, v{PP+e}, v{XN+8*b+p}, {src2}')
        self.vstamp(232)
        for b in range(4):
            for e in range(4):
                v = QA + 8 * b + e
                a(f'v_add_f32_dpp v{v}, v{v}, v{v} row_ror:8 row_mask:0xf bank_mask:0x3')
                a(f'v_add_f32_dpp v{v}, v{v+4}, v{v+4} row_ror:8 row_mask:0xf bank_mask:0xc')
        for b in (0, 2):
            for e in range(4):
                a(f'v_permlane16_swap_b32 v{QA+8*b+e}, v{QA+8*b+8+e}')
        for b in (0, 2):
            for e in range(4):
                a(f'v_add_f32 v{QA+8*b+e}, v{QA+8*b+e}, v{QA+8*b+8+e}')
        for e in range(4):
            a(f'v_permlane32_swap_b32 v{QA+e}, v{QA+16+e}')
        for e in range(4):
            a(f'v_add_f32 v{QA+e}, v{QA+e}, v{QA+16+e}')
        a(f'ds_write_b128 v57, v[{QA}:{QA+3}] offset:{L_QP}')
        self.vstamp(234)

    def publish_q(self):
        a, lab = self.a, self.lab
        a('v_mov_b32 v58, 0')
        a('v_lshlrev_b32 v57, 4, v1')
        a('s_lshr_b32 s18, s4, 2')
        a('s_lshl_b32 s18, s18, 12')
        a('s_and_b32 s19, s4, 3')
        a('s_lshl_b32 s19, s19, 8')
        a('s_add_u32 s18, s18, s19')
        a('v_lshrrev_b32 v8, 4, v1')
        a('v_lshlrev_b32 v8, 10, v8')
        a('v_and_b32 v9, 7, v1')
        a('v_lshl_add_u32 v8, v9, 5, v8')
        a('v_bfe_u32 v9, v1, 3, 1')
        a('v_lshl_add_u32 v8, v9, 4, v8')
        a('v_add_u32 v8, s18, v8')
        a('v_mov_b32 v34, s6')
        a('v_mov_b32 v35, s6')
        a(f's_mov_b32 s19, {SPIN}')
        lab('L_hfw')
        a(f'ds_read_b128 v[12:15], v58 offset:{L_FLG}')
        for w in range(4):
            a(f'ds_read_b128 v[{16+4*w}:{19+4*w}], v57 offset:{L_QP+1024*w}')
        a('s_sub_u32 s19, s19, 1')
        a('s_cbranch_scc1 L_exit')
        a('s_waitcnt lgkmcnt(0)')
        self.flags4(12)
        a('s_cbranch_vccz L_hfw')
        a('v_pk_add_f32 v[16:17], v[16:17], v[20:21]')
        a('v_pk_add_f32 v[18:19], v[18:19], v[22:23]')
        a('v_pk_add_f32 v[24:25], v[24:25], v[28:29]')
        a('v_pk_add_f32 v[26:27], v[26:27], v[30:31]')
        a('v_pk_add_f32 v[16:17], v[16:17], v[24:25]')
        a('v_pk_add_f32 v[18:19], v[18:19], v[26:27]')
        a('v_cvt_pk_bf16_f32 v32, v16, v17')
        a('v_cvt_pk_bf16_f32 v33, v18, v19')
        a('global_store_dwordx4 v8, v[32:35], s[32:33] sc1')

    def helper(self):
        a, lab = self.a, self.lab
        opt = self.opt
        a('s_setprio 3')
        a('s_sub_u32 s34, s3, 4')
        a('v_and_b32 v1, 63, v0')
        a('s_cmp_eq_u32 s5, 0')
        a('s_cbranch_scc1 L_hnp')
        self.producer()
        a('s_branch L_hn1')
        lab('L_hnp')
        a('s_waitcnt lgkmcnt(0)')
        a('s_mov_b32 s35, s98')
        if opt['early']:
            a('s_cmp_eq_u32 s34, 0')
            a('s_cbranch_scc1 L_he0')
            a('s_cmp_eq_u32 s34, 1')
            a('s_cbranch_scc1 L_he1')
            self.mlp_loads()
            a('s_branch L_he1')
            lab('L_he0')
            self.wparams('L_he1')
            self.stage()
            lab('L_he1')
        if opt['probe']:
            a('s_cmp_lt_u32 s34, 2')
            a('s_cbranch_scc1 L_pr1')
            a('s_lshl_b32 s40, s4, 21')
            a('s_and_b32 s41, s34, 1')
            a('s_lshl_b32 s41, s41, 13')
            a('s_add_u32 s40, s40, s41')
            a('s_add_u32 s40, s40, 0x1fc000')
            for base, res in ((10, 50), (12, 52)):
                a(f's_add_u32 s42, s{base}, s40')
                a(f's_addc_u32 s43, s{base+1}, 0')
                a(f's_mov_b32 s{res}, -1')
                a(f's_mov_b32 s{res+1}, 0')
                for rep in range(opt['probe']):
                    a('s_memtime s[44:45]')
                    a('s_waitcnt lgkmcnt(0)')
                    a(f's_load_dword s48, s[42:43], 0 glc')
                    a('s_waitcnt lgkmcnt(0)')
                    a('s_memtime s[46:47]')
                    a('s_waitcnt lgkmcnt(0)')
                    a('s_sub_u32 s49, s46, s44')
                    a(f's_min_u32 s{res}, s{res}, s49')
                a(f's_memrealtime s[{res+4}:{res+5}]')
                a('s_waitcnt lgkmcnt(0)')
            a('s_mov_b64 exec, 1')
            a('s_lshl_b32 s7, s2, 8')
            a(f's_add_u32 s7, s7, {STAMP}')
            a('s_and_b32 s41, s34, 1')
            a('s_lshl3_add_u32 s7, s41, s7')
            a('v_mov_b32 v252, s7')
            for slot, sr in ((16, 50), (18, 52), (30, 54)):
                a(f'v_mov_b32 v250, s{sr}')
                a(f'v_mov_b32 v251, s{sr+1}')
                a(f'global_store_dwordx2 v252, v[250:251], s[32:33] offset:{8*slot}')
                a('s_nop 1')
            a('s_mov_b64 exec, -1')
            lab('L_pr1')
        a(f's_sleep {opt["hs0"]}')
        a('s_load_dword s6, s[30:31], 0')
        lab('L_hn1')
        for sec in (1, 2):
            a('s_waitcnt lgkmcnt(0)')
            self.fresh(35, 18, 19)
            a('s_cbranch_scc1 L_hnok')
            a('s_sleep 4')
            a(f's_load_dword s6, s[30:31], {64*sec}')
        a('s_waitcnt lgkmcnt(0)')
        self.fresh(35, 18, 19)
        a('s_cbranch_scc1 L_hnok')
        self.tag_slow('L_hnw', 'L_hnok', 35, 18, 19, 7, 58, 59)
        lab('L_hnok')
        self.vstamp(236)
        a('s_lshl_b32 s18, s34, 2')
        a('v_mov_b32 v58, s18')
        a('v_mov_b32 v59, s6')
        a(f'ds_write_b32 v58, v59 offset:{L_FLG}')
        a('s_and_b32 s35, s4, 15')
        a('s_lshl_b32 s35, s35, 2')
        a('s_lshr_b32 s7, s4, 4')
        a('s_add_u32 s35, s35, s7')
        a('s_lshl_b32 s35, s35, 10')
        a('s_lshl_b32 s7, s34, 8')
        a('s_add_u32 s35, s35, s7')
        a('s_add_u32 s100, s32, s35')
        a('s_addc_u32 s101, s33, 0')
        a('s_cmp_lg_u32 s34, 0')
        a('s_cbranch_scc1 L_hq')
        a('v_mov_b32 v58, 0')
        a(f'ds_write_b32 v58, v58 offset:{L_CNT}')
        a('s_cmp_eq_u32 s5, 0')
        a('s_cbranch_scc1 L_hq')
        self.publish_q()
        self.vstamp(240)
        lab('L_hq')
        if opt['gs0']:
            a('s_cmp_lg_u32 s5, 0')
            a('s_cbranch_scc1 L_hq0')
            a('s_cmp_eq_u32 s34, 0')
            a('s_cbranch_scc1 L_hq0')
            a(f's_sleep {opt["gs0"]}')
            lab('L_hq0')
        a(f's_mov_b32 s19, {SPIN}')
        lab('L_hqw')
        for p in range(4):
            a(f's_load_dwordx16 s[{36+16*p}:{51+16*p}], s[100:101], {64*p} glc')
        a('s_sub_u32 s19, s19, 1')
        a('s_cbranch_scc1 L_exit')
        a('s_waitcnt lgkmcnt(0)')
        tags = [36 + 16 * p + 4 * g + 2 for p in range(4) for g in range(4)]
        a(f's_xor_b32 s7, s{tags[0]}, s6')
        for t in tags[1:]:
            a(f's_xor_b32 s18, s{t}, s6')
            a('s_or_b32 s7, s7, s18')
        a('s_cbranch_scc0 L_hqok')
        a(f's_sleep {opt["qsleep"]}')
        a('s_branch L_hqw')
        lab('L_hqok')
        for p in range(4):
            for g in range(4):
                for k in range(2):
                    a(f'v_writelane_b32 v8, s{36+16*p+4*g+k}, {8*p+2*g+k}')
        a('s_lshl_b32 s18, s34, 7')
        a('v_lshl_add_u32 v9, v1, 2, s18')
        a('s_mov_b32 exec_hi, 0')
        a(f'ds_write_b32 v9, v8 offset:{L_QL}')
        a('s_mov_b64 exec, -1')
        a('s_load_dword s74, s[26:27], 0')
        a('s_lshl_b32 s18, s34, 2')
        a('v_mov_b32 v9, s18')
        a('v_mov_b32 v8, s6')
        a('s_waitcnt lgkmcnt(0)')
        a(f'ds_write_b32 v9, v8 offset:{L_FL2}')
        self.vstamp(242)
        a('s_setprio 0')
        if opt['NST'] < 16:
            self.member(18, 19)
            a('s_lshl2_add_u32 s18, s18, s34')
            a('s_cmp_lg_u32 s18, 1')
            a('s_cbranch_scc1 L_htk')
            a('s_lshl_b32 s18, s4, 8')
            a(f's_add_u32 s18, s18, {TK}')
            a('v_mov_b32 v10, s18')
            a('v_mov_b32 v8, 0')
            a('v_mov_b32 v9, s6')
            a('s_mov_b64 exec, 1')
            a('global_store_dwordx2 v10, v[8:9], s[32:33] sc1')
            a('s_mov_b64 exec, -1')
            lab('L_htk')
        a('s_cmp_lt_u32 s34, 2')
        a('s_cbranch_scc1 L_work')
        a('s_sub_u32 s18, s2, 4')
        a('s_mul_i32 s35, s18, 964')
        a('s_lshr_b32 s35, s35, 16')
        a('s_mul_i32 s19, s35, 68')
        a('s_cmp_eq_u32 s18, s19')
        a('s_cselect_b32 s35, s35, 4')
        a('s_cmp_eq_u32 s34, 3')
        a('s_cselect_b32 s35, s35, 4')
        if not opt['numa']:
            a('s_cmp_ge_u32 s35, 4')
            a('s_cbranch_scc1 L_hw')
            a('s_lshl_b32 s18, s35, 11')
            if self.opt['numa']:
                self.getc(48, 50)
                a('s_xor_b32 s48, s48, s35')
                a('s_xor_b32 s48, s48, 1')
                a('s_and_b32 s48, s48, 1')
                a('s_lshl_b32 s48, s48, 13')
                a('s_add_u32 s18, s18, s48')
            a(f's_add_u32 s18, s18, {ACC2 if self.opt["numa"] else ACC}')
            a('v_lshl_add_u32 v4, v1, 4, s18')
            for i in range(4):
                a(f'v_mov_b32 v{8+i}, 0')
            for rp in range(opt['R']):
                a(f'v_add_u32 v{224+rp}, {(16384 if opt["numa"] else 8192)*rp}, v4')
                a(f'global_store_dwordx4 v{224+rp}, v[8:11], s[32:33] sc1')
                a(f'global_store_dwordx4 v{224+rp}, v[8:11], s[32:33] offset:1024 sc1')
            a('s_lshl_b32 s18, s35, 2')
            a(f's_add_u32 s18, s18, {RDY}')
            a('v_mov_b32 v12, s18')
            a('v_mov_b32 v13, s6')
            a('s_waitcnt vmcnt(0)')
            a('s_mov_b64 exec, 1')
            a('global_store_dword v12, v13, s[32:33] sc1')
            a('s_mov_b64 exec, -1')
        lab('L_hw')
        W1, B1, C1P, W2P = self.W1, self.B1, self.C1P, self.W2P
        if opt['early']:
            a('s_cmp_eq_u32 s5, 0')
            a('s_cbranch_scc1 L_hw2')
        self.mlp_loads()
        lab('L_hw2')
        k2 = -2.0 * math.sqrt(2.0 / math.pi) * LOG2E
        a(f'v_mov_b32 v{C1P}, {f2u(k2):#x}')
        a(f'v_mov_b32 v{C1P+1}, {f2u(k2):#x}')
        a(f's_mov_b32 s72, {f2u(k2*0.044715):#x}')
        a('s_mov_b32 s73, s72')
        a('s_lshl_b32 s74, s74, 16')
        a('s_waitcnt vmcnt(0)')
        for i in range(14):
            self.unpack(W1 + 2 * i, W1 + 2 * i + 1, 160 + i)
            self.unpack(B1 + 2 * i, B1 + 2 * i + 1, 176 + i)
        a('s_lshl_b32 s40, s2, 2')
        a('s_lshl1_add_u32 s40, s34, s40')
        a('s_sub_u32 s40, s40, 4')
        a('s_add_u32 s50, s40, 2')
        lab('L_tb')
        a('s_mul_i32 s41, s40, 6')
        a(f's_cmp_ge_u32 s41, {NTH}')
        a(f's_mov_b32 s43, {E0 << 7}')
        a(f's_cselect_b32 s42, {0x8000 - NTH + (E0 << 7)}, s43')
        a('s_add_u32 s41, s41, s42')
        for n in range(6):
            a(f's_add_u32 s70, s41, {n}')
            a('s_lshl_b32 s70, s70, 16')
            a('s_mov_b32 s71, s70')
            if 'noeval' not in opt['exp']:
                a('s_call_b64 s[76:77], L_eval')
            a('s_nop 0')
            a(f'v_readfirstlane_b32 s{44+n}, v153')
        a('s_nop 0')
        for n in range(3):
            a(f's_pack_ll_b32_b16 s{44+n}, s{44+2*n}, s{45+2*n}')
        a('s_lshl_b32 s41, s40, 4')
        a(f's_add_u32 s41, s41, {TG}')
        a('v_mov_b32 v8, s44')
        a('v_mov_b32 v9, s45')
        a('v_mov_b32 v10, s46')
        a('v_mov_b32 v11, s6')
        a('v_mov_b32 v12, s41')
        a('s_mov_b64 exec, 1')
        a('global_store_dwordx4 v12, v[8:11], s[32:33] sc1')
        a('s_mov_b64 exec, -1')
        a('s_add_u32 s40, s40, 1')
        a('s_cmp_lt_u32 s40, s50')
        a('s_cbranch_scc1 L_tb')
        a('s_cmp_lt_u32 s35, 4')
        a('s_cbranch_scc1 L_cons')
        if opt['stamps']:
            a('s_cmp_lg_u32 s34, 2')
            a('s_cbranch_scc1 L_exit')
            self.stamp(24)
            self.flush_stamps([(15, 24)])
        a('s_endpgm')
        lab('L_work')
        self.worker()
        if opt['numa']:
            self.idle_worker()
        self.consumer()
        self.eval_sub()

    def wparams(self, idle):
        a = self.a
        a('s_lshr_b32 s40, s2, 3')
        self.member(41, 42)
        a('s_sub_u32 s42, s40, s41')
        a('s_and_b32 s43, s42, 7')
        a('s_cmp_eq_u32 s43, 0')
        a(f's_cbranch_scc1 {idle}')
        a('s_add_u32 s42, s42, 7')
        a('s_lshr_b32 s42, s42, 3')
        a('s_sub_u32 s40, s40, s42')
        a('s_mul_i32 s41, s40, 37')
        a('s_lshr_b32 s41, s41, 8')
        a('s_mul_i32 s42, s41, 7')
        a('s_sub_u32 s42, s40, s42')
        a('s_and_b32 s40, s2, 7')
        a('s_lshl2_add_u32 s40, s40, s41')
        a('s_mul_i32 s43, s42, 293')
        a('s_lshr_b32 s43, s43, 6')

    def stage(self):
        a = self.a
        opt = self.opt
        W = opt['swin']
        a(f's_mul_i32 s44, s40, {128*896}')
        a('s_lshl_b32 s45, s42, 7')
        a('s_add_u32 s44, s44, s45')
        a('s_add_u32 s36, s16, s44')
        a('s_addc_u32 s37, s17, 0')
        a(f's_sub_u32 s38, {128*896}, s45')
        if 'nowo' in opt['exp']:
            a('s_mov_b32 s38, 0')
        a('s_mov_b32 s39, 0x20000')
        a('v_lshrrev_b32 v2, 3, v1')
        a('v_and_b32 v3, 7, v1')
        a(f'v_mul_u32_u24 v8, {RS}, v2')
        a('v_lshl_add_u32 v8, v3, 4, v8')
        a('v_mul_u32_u24 v2, 896, v2')
        a('v_lshl_add_u32 v2, v3, 4, v2')
        a('s_mov_b32 s44, 0')
        for it in range(16):
            if it >= W:
                a(f's_waitcnt vmcnt({W-1})')
                a(f'ds_write_b128 v8, v[{160+4*(it-W)}:{163+4*(it-W)}] offset:{L_WOS+8*RS*(it-W)}')
            a(f'buffer_load_dwordx4 v[{160+4*it}:{163+4*it}], v2, s[36:39], s44 offen {opt["wof"]}')
            a('s_add_u32 s44, s44, 7168')
        a('v_lshlrev_b32 v3, 4, v1')
        for z in range(4):
            a(f'v_mov_b32 v{224+z}, 0')
        for z in range(3):
            a(f'ds_write_b128 v3, v[224:227] offset:{L_WOS+128*RS+1024*z}')
        for it in range(16 - W, 16):
            a(f's_waitcnt vmcnt({15-it})')
            a(f'ds_write_b128 v8, v[{160+4*it}:{163+4*it}] offset:{L_WOS+8*RS*it}')

    def mlp_loads(self):
        a = self.a
        a('v_lshlrev_b32 v2, 4, v1')
        a('v_lshlrev_b32 v3, 3, v1')
        W1, B1, C1P, W2P = self.W1, self.B1, self.C1P, self.W2P
        for base, sp in ((160, 20), (176, 22), (W2P, 24)) if 'nomlp' not in self.opt['exp'] else ():
            for r in range(3):
                a(f'global_load_dwordx4 v[{base+4*r}:{base+4*r+3}], v2, s[{sp}:{sp+1}] offset:{1024*r}')
            a(f'global_load_dwordx2 v[{base+12}:{base+13}], v3, s[{sp}:{sp+1}] offset:3072')

    def batch_of_wg(self, dst, t0, t1):
        a = self.a
        a(f's_sub_u32 s{t0}, s2, 4')
        a(f's_mul_i32 s{dst}, s{t0}, 964')
        a(f's_lshr_b32 s{dst}, s{dst}, 16')
        a(f's_mul_i32 s{t1}, s{dst}, 68')
        a(f's_cmp_eq_u32 s{t0}, s{t1}')
        a(f's_cselect_b32 s{dst}, s{dst}, 4')

    def acc_addr(self, batch, c, t):
        a = self.a
        a(f's_and_b32 s{t}, s{batch}, 1')
        a(f's_xor_b32 s{t}, s{t}, 1')
        a(f's_lshl_b32 s{t}, s{t}, 13')
        a(f's_xor_b32 s{c}, s{c}, s{t}')
        a(f's_lshl_b32 s{t}, s{batch}, 11')
        a(f's_add_u32 s{t}, s{t}, s{c}')
        a(f's_add_u32 s{t}, s{t}, {ACC2}')
        a(f'v_lshl_add_u32 v224, v1, 4, s{t}')
        for rp in range(1, self.opt['R']):
            a(f'v_add_u32 v{224+rp}, {16384*rp}, v224')

    def acc_init(self):
        a, lab = self.a, self.lab
        self.batch_of_wg(56, 18, 19)
        a('s_cmp_eq_u32 s34, 1')
        a('s_cselect_b32 s56, s56, 4')
        a('s_cmp_ge_u32 s56, 4')
        a('s_cbranch_scc1 L_wai')
        a(f's_add_u32 s58, s32, {CW}')
        a('s_addc_u32 s59, s33, 0')
        a(f's_mov_b32 s19, {SPIN}')
        lab('L_ccw')
        a('s_load_dwordx8 s[60:67], s[58:59], 0 glc')
        a('s_sub_u32 s19, s19, 1')
        a('s_cbranch_scc1 L_exit')
        a('s_waitcnt lgkmcnt(0)')
        a('s_xor_b32 s7, s60, s6')
        for t in (62, 64, 66):
            a(f's_xor_b32 s18, s{t}, s6')
            a('s_or_b32 s7, s7, s18')
        a('s_cbranch_scc0 L_ccw2')
        a('s_sleep 16')
        a('s_branch L_ccw')
        lab('L_ccw2')
        a('s_add_i32 s58, s61, s63')
        a('s_add_i32 s60, s65, s67')
        a('s_add_i32 s58, s58, s60')
        a('v_mov_b32 v10, s6')
        a('s_cmp_gt_i32 s58, 0')
        a('s_cselect_b32 s57, 0x2000, 0')
        a('v_mov_b32 v11, s57')
        self.acc_addr(56, 57, 18)
        for i in range(4):
            a(f'v_mov_b32 v{16+i}, 0')
        for rp in range(self.opt['R']):
            a(f'global_store_dwordx4 v{224+rp}, v[16:19], s[32:33] sc1')
            a(f'global_store_dwordx4 v{224+rp}, v[16:19], s[32:33] offset:1024 sc1')
        a('s_lshl_b32 s18, s56, 3')
        a(f's_add_u32 s18, s18, {RDY}')
        a('v_mov_b32 v9, s18')
        a('s_waitcnt vmcnt(0)')
        a('s_mov_b64 exec, 1')
        a('global_store_dwordx2 v9, v[10:11], s[32:33] sc1')
        a('s_mov_b64 exec, -1')
        lab('L_wai')

    def ready_wait(self, name):
        a, lab = self.a, self.lab
        nu = self.opt['numa']
        if self.opt['ev']:
            self.wait_lds(name + 'e', L_EV, 'v_cmp_ne_u32 vcc, s6, v7', 16)
        a(f's_add_u32 s56, s32, {RDY}')
        a('s_addc_u32 s57, s33, 0')
        a(f's_mov_b32 s19, {SPIN}')
        ld = 's_load_dwordx8 s[60:67], s[56:57], 0' if nu else 's_load_dwordx4 s[60:63], s[56:57], 0'
        a(ld)
        lab(name)
        a('s_waitcnt lgkmcnt(0)')
        tg = (60, 62, 64, 66) if nu else (60, 61, 62, 63)
        a(f's_xor_b32 s7, s{tg[0]}, s6')
        for t in tg[1:]:
            a(f's_xor_b32 s18, s{t}, s6')
            a('s_or_b32 s7, s7, s18')
        a(f's_cbranch_scc0 {name}2')
        a(f'v_mov_b32 v9, {RDY}')
        a(f'v_lshl_add_u32 v9, v5, {3 if nu else 2}, v9')
        lab(name + '1')
        a(f's_sleep {self.opt["rsleep"]}')
        a('global_load_dwordx2 v[10:11], v9, s[32:33] sc1' if nu else 'global_load_dword v10, v9, s[32:33] sc1')
        a('s_sub_u32 s19, s19, 1')
        a('s_cbranch_scc1 L_exit')
        a('s_waitcnt vmcnt(0)')
        a('v_cmp_ne_u32 vcc, s6, v10')
        a(f's_cbranch_vccnz {name}1')
        if nu:
            a('v_readfirstlane_b32 s61, v11')
            a('s_nop 1')
        lab(name + '2')
        if nu:
            a('v_mov_b32 v9, 0')
            a('v_mov_b32 v10, s6')
            a('v_mov_b32 v11, s61')
            a(f'ds_write_b64 v9, v[10:11] offset:{L_PC}')

    def idle_worker(self):
        a, lab = self.a, self.lab
        opt = self.opt
        lab('L_widle')
        a('s_cmp_lg_u32 s34, 1')
        a('s_cbranch_scc1 L_wexit' if opt['stamps'] else 's_cbranch_scc1 L_exit')
        a('s_cmp_ge_u32 s2, 16')
        a('s_cbranch_scc1 L_wi2')
        a('s_bitcmp1_b32 s2, 2')
        a('s_cbranch_scc1 L_wi2')
        a('s_setprio 3')
        a('s_and_b32 s52, s2, 3')
        a(f's_mul_i32 s40, s52, {opt["NP"]*640}')
        a(f's_add_u32 s40, s40, {PRB}')
        a('s_add_u32 s40, s32, s40')
        a('s_addc_u32 s41, s33, 0')
        for k in range(opt['NP']):
            a(f's_load_dword s48, s[40:41], {640*k} glc')
            a(f's_load_dword s49, s[40:41], {640*k+8192} glc')
        a('s_mov_b32 s42, 0')
        a(f's_mov_b32 s43, {opt["NP"]}')
        a('s_memrealtime s[56:57]')
        a('s_waitcnt lgkmcnt(0)')
        lab('L_wpr')
        a('s_mov_b32 s50, -1')
        a('s_mov_b32 s51, -1')
        for rep in range(2):
            for off, mn in ((0, 50), (8192, 51)):
                a('s_memtime s[44:45]')
                a('s_waitcnt lgkmcnt(0)')
                a(f's_load_dword s48, s[40:41], {off} glc')
                a('s_waitcnt lgkmcnt(0)')
                a('s_memtime s[46:47]')
                a('s_waitcnt lgkmcnt(0)')
                a('s_sub_u32 s49, s46, s44')
                a(f's_min_u32 s{mn}, s{mn}, s49')
        a('s_cmp_lt_u32 s51, s50')
        a('s_cselect_b32 s49, 1, -1')
        a('s_add_i32 s42, s42, s49')
        a('s_add_u32 s40, s40, 640')
        a('s_addc_u32 s41, s41, 0')
        a('s_memrealtime s[58:59]')
        a('s_sub_u32 s43, s43, 1')
        a('s_waitcnt lgkmcnt(0)')
        a('s_sub_u32 s49, s58, s56')
        a(f's_cmp_gt_u32 s49, {opt["PLIM"]}')
        a('s_cselect_b32 s43, 0, s43')
        a('s_cmp_lg_u32 s43, 0')
        a('s_cbranch_scc1 L_wpr')
        if opt['forcec'] is not None:
            a(f's_mov_b32 s42, {1 if opt["forcec"] else -1}')
        a('s_lshl_b32 s52, s52, 3')
        a(f's_add_u32 s52, s52, {CW}')
        a('v_mov_b32 v9, s52')
        a('v_mov_b32 v10, s6')
        a('v_mov_b32 v11, s42')
        a('s_mov_b64 exec, 1')
        a('global_store_dwordx2 v9, v[10:11], s[32:33] sc1')
        if opt['stamps']:
            a('s_add_u32 s60, s42, 100')
            a('s_mov_b32 s61, 0')
            self.flush_stamps([(31, 60), (16, 58)])
        a('s_mov_b64 exec, -1')
        a('s_setprio 0')
        lab('L_wi2')
        a('v_lshrrev_b32 v5, 4, v1')
        self.ready_wait('L_wir')
        a('s_endpgm')

    def wait_lds(self, name, off, cmp, sleep):
        a, lab = self.a, self.lab
        a('v_mov_b32 v6, 0')
        a(f's_mov_b32 s19, {SPIN}')
        lab(name)
        a(f's_sleep {sleep}')
        a(f'ds_read_b32 v7, v6 offset:{off}')
        a('s_sub_u32 s19, s19, 1')
        a('s_cbranch_scc1 L_exit')
        a('s_waitcnt lgkmcnt(0)')
        a(cmp)
        a(f's_cbranch_vccnz {name}')

    def worker(self):
        a, lab = self.a, self.lab
        opt = self.opt
        self.wparams('L_widle' if opt['numa'] else 'L_wexit' if opt['stamps'] else 'L_exit')
        a('v_lshrrev_b32 v5, 4, v1')
        a('v_and_b32 v14, 15, v1')
        BF = 64
        for i in range(72):
            a(f'v_mov_b32 v{BF+i}, 0')
        a('s_cmp_lg_u32 s34, 0')
        a('s_cbranch_scc1 L_wst')
        if opt['early']:
            a('s_cmp_eq_u32 s5, 0')
            a('s_cbranch_scc1 L_wfl')
        self.stage()
        lab('L_wfl')
        a('v_mov_b32 v6, 0')
        a('v_mov_b32 v7, s6')
        a('s_waitcnt lgkmcnt(0)')
        a(f'ds_write_b32 v6, v7 offset:{L_WOF}')
        lab('L_wst')
        self.wait_lds('L_wsw', L_WOF, 'v_cmp_ne_u32 vcc, s6, v7', 8)
        a('s_mul_i32 s44, s34, 3')
        a('s_add_u32 s43, s43, s44')
        a('s_mul_i32 s44, s43, 14')
        a('s_lshl_b32 s45, s42, 6')
        a('s_sub_u32 s44, s44, s45')
        a(f'v_mul_u32_u24 v2, {6*RS}, v5')
        a('v_cmp_gt_u32 s[46:47], 14, v14')
        for t in range(3):
            u = self.u()
            a('v_add_u32 v3, s44, v14')
            a('v_cmp_gt_u32 vcc, 64, v3')
            a('v_lshl_add_u32 v3, v3, 1, v2')
            a(f's_and_b64 s[{48+2*t}:{49+2*t}], vcc, s[46:47]')
            a(f's_mov_b64 exec, s[{48+2*t}:{49+2*t}]')
            a(f's_cbranch_execz L_wb{u}')
            for kk in range(0, 6, 2):
                for q in range(2):
                    for e in range(6):
                        a(f'ds_read_u16 v{16+6*q+e}, v3 offset:{L_WOS+24*RS*(kk+q)+RS*e}')
                a('s_waitcnt lgkmcnt(0)')
                for q in range(2):
                    for uu in range(3):
                        a(f'v_lshl_or_b32 v{BF+12*(kk+q)+4*t+uu}, v{16+6*q+2*uu+1}, 16, v{16+6*q+2*uu}')
            lab(f'L_wb{u}')
            a('s_mov_b64 exec, -1')
            a('s_add_u32 s44, s44, 14')
        if opt['numa']:
            a('s_lshr_b32 s44, s40, 4')
            a('s_lshl_b32 s44, s44, 13')
            a('s_lshl_b32 s45, s40, 14')
            a('s_add_u32 s44, s44, s45')
            a(f's_add_u32 s44, s44, {OG2}')
            a('v_mul_u32_u24 v2, 384, v14')
            a('v_lshl_add_u32 v2, v5, 4, v2')
            a('v_add_u32 v2, s44, v2')
            a(f's_and_b32 s44, s40, {opt["R"]-1}')
            a('s_lshl_b32 s44, s44, 14')
            a('s_lshl_b32 s46, s43, 6')
            a('s_add_u32 s44, s44, s46')
            a(f's_add_u32 s44, s44, {ACC2}')
            a('v_xor_b32 v3, 1, v5')
            a('v_and_b32 v3, 1, v3')
            a('v_lshlrev_b32 v3, 13, v3')
            a('v_lshl_add_u32 v3, v5, 11, v3')
            a('v_lshl_add_u32 v3, v14, 2, v3')
            a('v_add_u32 v3, s44, v3')
        else:
            a('s_lshr_b32 s44, s40, 1')
            a('s_lshl_b32 s44, s44, 14')
            a('s_and_b32 s45, s40, 1')
            a('s_mul_i32 s46, s45, 384')
            a('s_add_u32 s44, s44, s46')
            a(f's_add_u32 s44, s44, {OG}')
            a('v_lshlrev_b32 v2, 10, v14')
            a('v_lshl_add_u32 v2, v5, 4, v2')
            a('v_add_u32 v2, s44, v2')
            a(f's_and_b32 s44, s40, {opt["R"]-1}')
            a('s_lshl_b32 s44, s44, 13')
            a('s_lshl_b32 s46, s43, 6')
            a('s_add_u32 s44, s44, s46')
            a(f's_add_u32 s44, s44, {ACC}')
            a('v_lshlrev_b32 v3, 11, v5')
            a('v_lshl_add_u32 v3, v14, 2, v3')
            a('v_add_u32 v3, s44, v3')
        a('v_cmp_eq_u32 vcc, 15, v14')
        a('v_lshlrev_b32 v8, 4, v5')
        a('v_add_u32 v8, 64, v8')
        a('v_cndmask_b32 v4, 0, 1.0, vcc')
        a('v_cmp_eq_u32 s[46:47], 1, v5')
        if opt['numa']:
            self.acc_init()
        self.ready_wait('L_wr')
        if opt['numa']:
            a('v_xor_b32 v2, v11, v2')
            a('v_xor_b32 v3, v11, v3')
        self.stamp(24)
        self.wait_lds('L_wd', L_CNT, f'v_cmp_gt_u32 vcc, {5 if self.opt["after"] else 4}, v7', 1)
        a('s_setprio 3')
        AF = 160
        a(f's_mov_b32 s19, {SPIN}')
        D0 = 204
        LS = AF + 21

        def mf(kk, first):
            for t in range(3):
                d = D0 + 4 * t
                c = '0' if first else f'v[{d}:{d+3}]'
                a(f'v_mfma_f32_16x16x32_bf16 v[{d}:{d+3}], v[{AF+4*kk}:{AF+4*kk+3}], v[{BF+12*kk+4*t}:{BF+12*kk+4*t+3}], {c}')
        if opt['spec']:
            a('s_mov_b64 s[54:55], -1')
            lab('L_wp')
            a('s_mov_b64 exec, s[54:55]')
            for kk in (5, 0, 1, 2, 3, 4):
                a(f'global_load_dwordx4 v[{AF+4*kk}:{AF+4*kk+3}], v2, s[32:33] offset:{64*kk} sc1')
            a('s_mov_b64 exec, -1')
            a('s_sub_u32 s19, s19, 1')
            a('s_cbranch_scc1 L_exit')
            a('s_waitcnt vmcnt(5)')
            a(f'v_cndmask_b32 v10, v10, v{LS}, s[54:55]')
            a(f'v_cndmask_b32 v{LS}, v{LS}, 0, s[46:47]')
            a(f'v_xor_b32 v9, s6, v{AF+23}')
            a('v_max_f32_dpp v11, v10, v10 quad_perm:[1,0,3,2] row_mask:0xf bank_mask:0xf')
            mf(5, True)
            a('v_max_f32_dpp v11, v11, v11 quad_perm:[2,3,0,1] row_mask:0xf bank_mask:0xf')
            a('v_sub_f32 v12, v10, v11')
            a('v_exp_f32 v12, v12')
            fill = {0: ['v_add_f32_dpp v11, v12, v12 quad_perm:[1,0,3,2] row_mask:0xf bank_mask:0xf'],
                    1: ['v_add_f32_dpp v11, v11, v11 quad_perm:[2,3,0,1] row_mask:0xf bank_mask:0xf', 'v_rcp_f32 v11, v11'],
                    2: ['v_mul_f32 v12, v12, v11'] + [f'ds_bpermute_b32 v{16+r}, v8, v12 offset:{4*r}' for r in range(4)]}
            for kk in range(5):
                a(f's_waitcnt vmcnt({4-kk})')
                a(f'v_bitop3_b32 v9, v{AF+4*kk+3}, s6, v9 bitop3:0xbe')
                if kk == 4:
                    a('v_cmp_ne_u32 s[54:55], 0, v9')
                mf(kk, False)
                for t in fill.get(kk, []):
                    a(t)
            a('s_cmp_lg_u64 s[54:55], 0')
            a('s_cbranch_scc1 L_wp')
            self.stamp(26)
        else:
            lab('L_wp')
            for kk in range(6):
                a(f'global_load_dwordx4 v[{AF+4*kk}:{AF+4*kk+3}], v2, s[32:33] offset:{64*kk} sc1')
            a('s_sub_u32 s19, s19, 1')
            a('s_cbranch_scc1 L_exit')
            for kk in range(6):
                a(f's_waitcnt vmcnt({5-kk})')
                if kk == 0:
                    a(f'v_xor_b32 v9, s6, v{AF+3}')
                else:
                    a(f'v_bitop3_b32 v9, v{AF+4*kk+3}, s6, v9 bitop3:0xbe')
            a('v_cmp_ne_u32 vcc, 0, v9')
            a('s_and_b64 exec, exec, vcc')
            if opt['psleep']:
                a('s_cbranch_execz L_wpx')
                a(f's_sleep {opt["psleep"]}')
                a('s_branch L_wp')
                lab('L_wpx')
            else:
                a('s_cbranch_execnz L_wp')
            a('s_mov_b64 exec, -1')
            self.stamp(26)
            a(f'v_mov_b32 v10, v{LS}')
            a(f'v_cndmask_b32 v{LS}, v{LS}, 0, s[46:47]')
            mf(0, True)
            a('v_max_f32_dpp v11, v10, v10 quad_perm:[1,0,3,2] row_mask:0xf bank_mask:0xf')
            mf(1, False)
            a('v_max_f32_dpp v11, v11, v11 quad_perm:[2,3,0,1] row_mask:0xf bank_mask:0xf')
            a('v_sub_f32 v10, v10, v11')
            a('v_exp_f32 v10, v10')
            mf(2, False)
            a('v_add_f32_dpp v11, v10, v10 quad_perm:[1,0,3,2] row_mask:0xf bank_mask:0xf')
            mf(3, False)
            a('v_add_f32_dpp v11, v11, v11 quad_perm:[2,3,0,1] row_mask:0xf bank_mask:0xf')
            a('v_rcp_f32 v11, v11')
            a('s_nop 0')
            a('v_mul_f32 v10, v10, v11')
            for r in range(4):
                a(f'ds_bpermute_b32 v{16+r}, v8, v10 offset:{4*r}')
            mf(4, False)
            mf(5, False)
        a('s_cmp_eq_u64 s[52:53], 0')
        a('s_waitcnt lgkmcnt(0)')
        self.nop(4)
        for t in range(3):
            a(f'v_fma_f32 v{20+t}, v16, v{D0+4*t}, v4')
            for r in range(1, 4):
                a(f'v_fmac_f32 v{20+t}, v{16+r}, v{D0+4*t+r}')
            if t == 2:
                a('s_cbranch_scc1 L_wend')
            a(f'global_atomic_add_f32 v3, v{20+t}, s[32:33] offset:{64*t}')
        lab('L_wend')
        if opt['stamps']:
            a('s_cmp_lg_u32 s34, 0')
            a('s_cbranch_scc1 L_exit')
            self.stamp(28)
            self.flush_stamps([(11, 24), (4, 26), (5, 28)])
            lab('L_wexit')
            a('s_cmp_lg_u32 s34, 0')
            a('s_cbranch_scc1 L_exit')
            for slot, v in ((9, 240), (10, 242), (17, 228), (19, 232), (20, 234), (21, 236))[:(2 if opt['probe'] else 6)]:
                self.unvstamp(v, 20)
                self.flush_stamps([(slot, 20)])
        a('s_endpgm')

    def consumer(self):
        a, lab = self.a, self.lab
        lab('L_cons')
        a('s_mov_b32 s36, s8')
        a('s_mov_b32 s37, s9')
        a('s_mov_b32 s38, 3584')
        a('s_mov_b32 s39, 0x20000')
        a('s_mov_b32 s40, s28')
        a('s_mov_b32 s41, s29')
        a('s_mov_b32 s42, 3584')
        a('s_mov_b32 s43, 0x20000')
        a('s_mul_i32 s44, s35, 896')
        if self.opt['numa']:
            pass
        else:
            a('s_lshl_b32 s18, s35, 11')
            a(f's_add_u32 s18, s18, {ACC}')
            a('v_lshl_add_u32 v224, v1, 4, s18')
            for rp in range(1, self.opt['R']):
                a(f'v_add_u32 v{224+rp}, {8192*rp}, v224')
        a('v_lshrrev_b32 v6, 2, v1')
        a('v_and_b32 v3, 3, v1')
        a('v_mul_u32_u24 v2, 28, v6')
        a('v_lshl_add_u32 v2, v3, 3, v2')
        for r in range(2):
            for ep in range(2):
                a(f'buffer_load_dword v{8+2*r+ep}, v2, s[36:39], s44 offen offset:{448*r+4*ep}')
        a('s_mov_b32 s46, 0x88888888')
        a('s_mov_b32 s47, 0x88888888')
        a(f's_mov_b32 s62, {f2u(1.0/448):#x}')
        a(f's_mov_b32 s63, {f2u(1e-5):#x}')
        for r, m in ((0, 0x2210), (1, 0x0844)):
            a(f'v_lshrrev_b32 v{60+r}, v6, {m}' if False else f's_mov_b32 s48, {m}')
            a(f'v_lshrrev_b32 v{60+r}, v6, s48')
            a(f'v_and_b32 v{60+r}, 1, v{60+r}')
            a(f'v_add_u32 v{60+r}, 1, v{60+r}')
            a(f'v_mul_u32_u24 v{60+r}, {32 // self.opt["R"]}, v{60+r}')
            a(f'v_cvt_f32_u32 v{60+r}, v{60+r}')
        a('s_waitcnt vmcnt(0)')
        XF = 12
        for i in range(4):
            self.unpack(XF + 2 * i, XF + 2 * i + 1, 8 + i)
        a(f'v_lshlrev_b32 v7, 4, v1')
        a(f'v_add_u32 v62, {TG}, v7')
        a('v_mul_u32_u24 v3, 12, v1')
        a(f'v_add_u32 v3, {L_TBL}, v3')
        TF = 160
        if self.opt['ev']:
            self.wait_lds('L_cte', L_EV, 'v_cmp_ne_u32 vcc, s6, v7', 16)
        a(f's_mov_b32 s19, {SPIN}')
        if self.opt['ev']:
            for it in range(16):
                if it % 4 == 0 and it:
                    a('v_add_u32 v62, 4096, v62')
                a(f'global_load_dwordx4 v[{TF+4*it}:{TF+4*it+3}], v62, s[32:33] offset:{1024*(it%4)}')
            a('s_branch L_ct1')
        lab('L_ct')
        for it in range(16):
            if it % 4 == 0 and it:
                a('v_add_u32 v62, 4096, v62')
            a(f'global_load_dwordx4 v[{TF+4*it}:{TF+4*it+3}], v62, s[32:33] offset:{1024*(it%4)} sc1')
        lab('L_ct1')
        a('v_subrev_u32 v62, 12288, v62')
        a('s_sub_u32 s19, s19, 1')
        a('s_cbranch_scc1 L_exit')
        a('s_waitcnt vmcnt(0)')
        a(f'v_xor_b32 v9, s6, v{TF+3}')
        for it in range(1, 16):
            a(f'v_bitop3_b32 v9, v{TF+4*it+3}, s6, v9 bitop3:0xbe')
        a('v_cmp_ne_u32 vcc, 0, v9')
        a('s_cbranch_vccz L_ct2')
        a(f's_sleep {self.opt["tsleep"]}')
        a('s_branch L_ct')
        lab('L_ct2')
        for it in range(16):
            a(f'ds_write2_b32 v3, v{TF+4*it}, v{TF+4*it+1} offset0:0 offset1:1')
            a(f'ds_write_b32 v3, v{TF+4*it+2} offset:8')
            a(f'v_add_u32 v3, {768 if it != 7 else 768 + 65536 - 2 * NTH}, v3')
        if self.opt['numa']:
            self.wait_lds('L_cpc', L_PC, 'v_cmp_ne_u32 vcc, s6, v7', 8)
            a(f'ds_read_b32 v7, v6 offset:{L_PC+4}')
            a('s_waitcnt lgkmcnt(0)')
            a('v_readfirstlane_b32 s48, v7')
            a('s_nop 0')
            self.acc_addr(35, 48, 18)
        self.stamp(24)
        A, A2 = 20, 176
        Y = 168
        a(f's_mov_b32 s51, {E0 << 23:#x}')
        a(f's_mov_b32 s56, {(E0 + 24) << 23:#x}')
        for i in range(8):
            a(f'v_mov_b32 v{Y+i}, 0')
        self.wait_lds('L_cd', L_CNT, f'v_cmp_gt_u32 vcc, {5 if self.opt["after"] else 4}, v7', 1)
        a('s_setprio 3')
        a(f's_mov_b32 s19, {SPIN}')
        R = self.opt['R']
        AR = [A] + [A2 + 8 * i for i in range(R - 1)]
        lab('L_cp')
        for rp in range(R):
            a(f'global_load_dwordx4 v[{AR[rp]}:{AR[rp]+3}], v{224+rp}, s[32:33] sc1')
            a(f'global_load_dwordx4 v[{AR[rp]+4}:{AR[rp]+7}], v{224+rp}, s[32:33] offset:1024 sc1')
        a('s_sub_u32 s19, s19, 1')
        a('s_cbranch_scc1 L_exit')
        a('s_mov_b64 s[48:49], s[46:47]')
        for rp in range(R):
            a(f's_waitcnt vmcnt({2*(R-1-rp)})')
            a(f'v_cmp_eq_f32 vcc, v60, v{AR[rp]+3}')
            a(f'v_cmp_eq_f32 s[52:53], v61, v{AR[rp]+7}')
            if rp:
                for i in range(4):
                    a(f'v_pk_add_f32 v[{A+2*i}:{A+2*i+1}], v[{A+2*i}:{A+2*i+1}], v[{AR[rp]+2*i}:{AR[rp]+2*i+1}]')
            a('s_and_b64 s[48:49], s[48:49], vcc')
            a('s_and_b64 s[48:49], s[48:49], s[52:53]')
        a('s_cmp_eq_u64 s[48:49], s[46:47]')
        a('s_cbranch_scc0 L_cp')
        self.stamp(26)
        P, Hh, Dd = 28, 32, 40
        S1, S2, MO, RO = 48, 50, 54, 56
        for i in range(8):
            self.bf16r(A + i, A + i)
        for i in range(4):
            a(f'v_pk_add_f32 v[{A+2*i}:{A+2*i+1}], v[{A+2*i}:{A+2*i+1}], v[{XF+2*i}:{XF+2*i+1}]')
        for i in range(8):
            self.bf16r(Hh + i, A + i)

        def sums(src, piv):
            if piv:
                a(f'v_readfirstlane_b32 s50, v{src}')
                a('s_nop 1')
                for i in range(4):
                    a(f'v_pk_add_f32 v[{Dd+2*i}:{Dd+2*i+1}], v[{src+2*i}:{src+2*i+1}], s[50:51] op_sel_hi:[1,0] neg_lo:[0,1] neg_hi:[0,1]')
                s = Dd
            else:
                s = src
            for i in (2, 3, 6, 7):
                a(f'v_cndmask_b32 v{Dd+i}, v{s+i}, 0, s[46:47]')
            idx = [s, s + 4, Dd + 2, Dd + 6]
            pr = lambda r: f'v[{r}:{r+1}]'
            a(f'v_pk_add_f32 {pr(S1)}, {pr(idx[0])}, {pr(idx[1])}')
            a(f'v_pk_mul_f32 {pr(S2)}, {pr(idx[0])}, {pr(idx[0])}')
            a(f'v_pk_add_f32 {pr(S1)}, {pr(S1)}, {pr(idx[2])}')
            a(f'v_pk_fma_f32 {pr(S2)}, {pr(idx[1])}, {pr(idx[1])}, {pr(S2)}')
            a(f'v_pk_add_f32 {pr(S1)}, {pr(S1)}, {pr(idx[3])}')
            a(f'v_pk_fma_f32 {pr(S2)}, {pr(idx[2])}, {pr(idx[2])}, {pr(S2)}')
            a(f'v_add_f32 v{S1}, v{S1}, v{S1+1}')
            a(f'v_pk_fma_f32 {pr(S2)}, {pr(idx[3])}, {pr(idx[3])}, {pr(S2)}')
            a(f'v_add_f32 v{S2}, v{S2}, v{S2+1}')
            self.ladder64([S1, S2], [S1 + 1, S2 + 1])
            self.ln_stats(S1, S2, 's50' if piv else None, 58, 59, 62, 63, MO, RO)

        def norm(src, dst):
            for i in range(4):
                a(f'v_pk_add_f32 v[{dst+2*i}:{dst+2*i+1}], v[{src+2*i}:{src+2*i+1}], v[{MO}:{MO+1}] op_sel_hi:[1,0] neg_lo:[0,1] neg_hi:[0,1]')
            for i in range(8):
                self.bf16r(dst + i, dst + i)
            for i in range(4):
                a(f'v_pk_mul_f32 v[{dst+2*i}:{dst+2*i+1}], v[{dst+2*i}:{dst+2*i+1}], v[{RO}:{RO+1}] op_sel_hi:[1,0]')
            for i in range(8):
                self.bf16r(dst + i, dst + i)

        sums(Hh, True)
        norm(Hh, A)
        sums(A, False)
        norm(A, A)
        for i in range(8):
            a(f'v_lshrrev_b32 v{Dd+i}, 15, v{A+i}')
        for i in range(8):
            a(f'ds_read_u16_d16_hi v{Y+i}, v{Dd+i}')
        for i in (2, 3, 6, 7):
            a(f'v_cndmask_b32 v{A+i}, v{A+i}, 1.0, s[46:47]')
        a(f'v_min3_f32 v48, |v{A}|, |v{A+1}|, |v{A+2}|')
        a(f'v_max3_f32 v49, |v{A}|, |v{A+1}|, |v{A+2}|')
        a(f'v_min3_f32 v48, v48, |v{A+3}|, |v{A+4}|')
        a(f'v_max3_f32 v49, v49, |v{A+3}|, |v{A+4}|')
        a(f'v_min3_f32 v48, v48, |v{A+5}|, |v{A+6}|')
        a(f'v_max3_f32 v49, v49, |v{A+5}|, |v{A+6}|')
        a(f'v_min_f32 v48, v48, |v{A+7}|')
        a(f'v_max_f32 v49, v49, |v{A+7}|')
        a(f'v_mul_f32 v50, v{RO}, v{MO}')
        a('v_cmp_gt_f32 vcc, s51, v48')
        a('v_cmp_le_f32 s[52:53], s56, v49')
        a('v_cmp_u_f32 s[54:55], v50, v50')
        a('s_or_b64 vcc, vcc, s[52:53]')
        a('s_or_b64 vcc, vcc, s[54:55]')
        a('s_waitcnt lgkmcnt(0)')
        a('s_cbranch_vccnz L_cslow')
        lab('L_cfin')
        for i in range(4):
            a(f'v_pk_add_f32 v[{Y+2*i}:{Y+2*i+1}], v[{Y+2*i}:{Y+2*i+1}], v[{Hh+2*i}:{Hh+2*i+1}]')
        for i in range(4):
            a(f'v_cvt_pk_bf16_f32 v{P+i}, v{Y+2*i}, v{Y+2*i+1}')
        of = self.opt['outf']
        a(f'buffer_store_dword v{P}, v2, s[40:43], s44 offen {of}')
        a(f'buffer_store_dword v{P+2}, v2, s[40:43], s44 offen offset:448 {of}')
        a('s_andn2_b64 exec, exec, s[46:47]')
        a(f'buffer_store_dword v{P+1}, v2, s[40:43], s44 offen offset:4 {of}')
        a(f'buffer_store_dword v{P+3}, v2, s[40:43], s44 offen offset:452 {of}')
        self.stamp(28)
        if self.opt['fix']:
            a('s_and_b32 s96, s6, 0x3fff')
            a('s_lshr_b32 s97, s6, 2')
            a('s_and_b32 s97, s97, 0x0fffc000')
            a('s_or_b32 s96, s96, s97')
            lab('L_fix')
            a('s_memrealtime s[94:95]')
            a('s_waitcnt lgkmcnt(0)')
            a('s_sub_u32 s94, s94, s96')
            a('s_and_b32 s94, s94, 0x0fffffff')
            a(f's_cmp_lt_u32 s94, {self.opt["fix"]}')
            a('s_cbranch_scc1 L_fix')
        self.flush_stamps([(12, 24), (13, 26), (14, 28)])
        a('s_endpgm')
        lab('L_cslow')
        a(f's_mov_b32 s57, {E0 << 23:#x}')
        a(f's_mov_b32 s58, {24 << 23:#x}')
        for i in range(8):
            u = self.u()
            a(f'v_and_b32 v48, 0x7fffffff, v{A+i}')
            a('v_subrev_u32 v48, s57, v48')
            a('v_cmp_le_u32 s[52:53], s58, v48')
            lab(f'L_cs{u}')
            a('s_cmp_eq_u64 s[52:53], 0')
            a(f's_cbranch_scc1 L_ce{u}')
            a('s_ff1_i32_b64 s54, s[52:53]')
            a('s_bitset0_b64 s[52:53], s54')
            a(f'v_readlane_b32 s70, v{A+i}, s54')
            a('s_nop 0')
            a('s_mov_b32 s71, s70')
            a('s_nop 0')
            a('s_call_b64 s[76:77], L_eval')
            a('s_nop 0')
            a('v_readfirstlane_b32 s55, v153')
            a('s_mov_b32 m0, s54')
            a('s_lshl_b32 s55, s55, 16')
            a('s_nop 3')
            a(f'v_writelane_b32 v{Y+i}, s55, m0')
            a(f's_branch L_cs{u}')
            lab(f'L_ce{u}')
        a('s_branch L_cfin')

    def build(self):
        a, lab = self.a, self.lab
        o = self.o
        o.append(HEADER.rstrip('\n'))
        o.append(f'; @launch grid=(256,1,1) block=(512,1,1) lds={L_END}')
        o.append(DOC.rstrip('\n'))
        o.append('.amdgcn_target "amdgcn-amd-amdhsa--gfx950"')
        o.append('.text')
        o.append(f'.globl {KN}')
        o.append('.p2align 8')
        o.append(f'.type {KN},@function')
        lab(KN)
        a('s_cmp_ge_u32 s2, 256')
        a('s_cbranch_scc1 L_exit')
        a('s_memrealtime s[98:99]')
        a('s_load_dwordx16 s[8:23], s[0:1], 0')
        a('s_load_dwordx8 s[24:31], s[0:1], 64')
        a('s_load_dwordx2 s[32:33], s[0:1], 96')
        a('v_lshrrev_b32 v1, 6, v0')
        a('s_lshr_b32 s7, s2, 3')
        a('v_readfirstlane_b32 s3, v1')
        if self.opt['gmap'] == 0:
            a('s_lshr_b32 s4, s2, 2')
        elif self.opt['gmap'] == 1:
            a('s_bfe_u32 s4, s2, 0x10001')
            a('s_lshl1_add_u32 s4, s7, s4')
        else:
            a('s_lshr_b32 s4, s2, 1')
            a('s_xor_b32 s4, s4, s2')
            a('s_and_b32 s4, s4, 1')
            a('s_lshl1_add_u32 s4, s7, s4')
        self.member(5, 6)
        a('s_xor_b32 s7, s7, s5')
        a('s_and_b32 s7, s7, 3')
        a('s_cmp_eq_u32 s7, 0')
        a('s_cselect_b32 s5, 1, 0')
        a('s_cmp_ge_u32 s3, 4')
        a('s_cbranch_scc1 L_helper')
        self.streamer()
        lab('L_helper')
        self.helper()
        lab('L_exit')
        a('s_endpgm')
        o.append('.section .rodata,"a"')
        o.append('.p2align 6')
        o.append(f'.amdhsa_kernel {KN}')
        o.append('  .amdhsa_next_free_vgpr 256')
        o.append('  .amdhsa_next_free_sgpr 102')
        o.append('  .amdhsa_accum_offset 256')
        o.append('  .amdhsa_group_segment_fixed_size 0')
        o.append('  .amdhsa_kernarg_size 104')
        o.append('  .amdhsa_user_sgpr_count 2')
        o.append('  .amdhsa_user_sgpr_kernarg_segment_ptr 1')
        o.append('  .amdhsa_system_sgpr_workgroup_id_x 1')
        o.append('.end_amdhsa_kernel')
        return '\n'.join(o) + '\n'


if __name__ == '__main__':
    out = sys.argv[1]
    opt = eval(sys.argv[2]) if len(sys.argv) > 2 else {}
    open(out, 'w').write(G(**opt).build())
```

```python
import sys, struct, math

KN = 'sequential_preLN__mha_block_cached__mixer_token_mlp__decode_kernel'
HEADER = open('sequential_preLN__mha_block_cached__mixer_token_mlp__decode.s.ref').read().split('; Override launch')[0]


def f2u(x):
    return struct.unpack('<I', struct.pack('<f', x))[0]


QG, OG, TG, TK, RDY, ACC = 0x0, 0x10000, 0x50000, 0x54000, 0x58000, 0x60000
OG2, ACC2, PRB = 0x100000, 0x180000, 0x1a0000
CW = 0x58040
STAMP = 256 << 20
E0 = 108
NTH = 3072
L_FLG, L_CNT, L_WOF, L_PC, L_HDR, L_QL, L_FL2, L_EV = 0, 16, 20, 24, 32, 64, 576, 592
L_XN, L_OW, L_QP = 2048, 6144, 10752
L_TBL = 2 * (E0 << 7)
L_WOS = 34048
L_END = L_TBL + 65536 + 2 * NTH
RS = 144
LOG2E = 1.4426950408889634
SPIN = 1 << 18
FRESH = 1500
GRACE = 200

DOC = '''; Single fused launch, 256 workgroups x 8 waves (one workgroup per CU).
'''


class G:
    def __init__(self, **opt):
        self.o = []
        self.opt = dict(stamps=False, wqf='nt', wof='nt', kvf='nt', vf=None, pace=12, LA=12, setC=True, NST=13, TP=8,
                        psleep=0, HALF=False, outf='', tsleep=64, fix=0, exp='', pdelay=True, hs0=16, qsleep=1, R=2, pbar=3, early=True, swin=16, ILV=True, NF=0, gmap=1, after=True, ptrs=False, probe=0, P16=False, spec=False, evs=0, sprio=2, numa=True, NP=3, PLIM=900, forcec=None, rsleep=40, ev=True, EVI=3, gs0=64)
        self.opt.update(opt)
        self.uid = 0

    def a(self, s):
        self.o.append('  ' + s)

    NOTES = {
        'L_sn0': 'streamer: descriptors of this group\'s K and V (2 MiB each); chunks B, C and the head of A are loaded while q is produced',
        'L_sqw': 'wait until the four helpers have put q into LDS',
        'L_sloop': 'one chunk = 16 keys per wave: q.K (bf16-rounded like the reference), running max, exp2, P.V; loads run 12 ahead',
        'L_sback': 'next chunk: own static share first, then tickets from the group counter; then publish the workgroup partial',
        'L_tkretry': 'ticket counter not initialised yet (tag mismatch): ask again',
        'L_sB': 'one-time prefetched chunk B', 'L_sC': 'one-time prefetched chunk C',
        'L_helper': 'helpers; 64 workgroups first compute LayerNorm(x) and 64 columns of q = xn @ wq',
        'L_hnp': 'other workgroups stage wo / load the MLP weights early',
        'L_hn1': 'launch tag from d_debug (cached read, checked for freshness, coherent re-read as fallback)',
        'L_hq': 'gather q of this (batch, head) through scalar loads',
        'L_tb': 'table of F(t) = b2 + sum_f gelu(t*w1[f]+b1[f])*w2[f] for every bf16 t with 2^-19 <= |t| < 32 (24 entries per workgroup)',
        'L_work': 'output projection: (head, 128-row half, 64-column block) per workgroup, 3 tiles per helper',
        'L_wp': 'poll the 16 partials of the head, MFMA with staged wo, softmax weights across the splits, f32 atomics with a count column',
        'L_widle': 'workgroups without a tile; four of them time two lines 8 KiB apart to place the hand-off buffers near their readers (speed only)',
        'L_cons': 'final stage of one batch row: residual, LayerNorm twice, table lookup, residual, store',
        'L_cslow': 'values outside the table range are evaluated directly',
        'L_eval': 'F(t) for the uniform t in s70, rounded step by step like the reference',
    }

    def lab(self, s):
        if s in self.NOTES:
            self.o.append('; ' + self.NOTES[s])
        self.o.append(s + ':')

    def u(self):
        self.uid += 1
        return self.uid

    def nop(self, n):
        if n > 0:
            self.a(f's_nop {n-1}')

    def stamp(self, sreg):
        if self.opt['stamps']:
            self.a(f's_memrealtime s[{sreg}:{sreg+1}]')

    def vstamp(self, v):
        if self.opt['stamps']:
            self.a('s_memrealtime s[18:19]')
            self.a('s_waitcnt lgkmcnt(0)')
            self.a(f'v_mov_b32 v{v}, s18')
            self.a(f'v_mov_b32 v{v+1}, s19')

    def unvstamp(self, v, sreg):
        if self.opt['stamps']:
            self.a(f'v_readfirstlane_b32 s{sreg}, v{v}')
            self.a(f'v_readfirstlane_b32 s{sreg+1}, v{v+1}')
            self.a('s_nop 1')

    def flush_stamps(self, pairs, vt=250):
        if not self.opt['stamps']:
            return
        a = self.a
        a('s_waitcnt lgkmcnt(0)')
        a('s_mov_b64 exec, 1')
        a('s_lshl_b32 s7, s2, 8')
        a(f's_add_u32 s7, s7, {STAMP}')
        a(f'v_mov_b32 v{vt+2}, s7')
        for slot, sreg in pairs:
            a(f'v_mov_b32 v{vt}, s{sreg}')
            a(f'v_mov_b32 v{vt+1}, s{sreg+1}')
            a(f'global_store_dwordx2 v{vt+2}, v[{vt}:{vt+1}], s[32:33] offset:{8*slot}')
            a('s_nop 1')

    def fresh(self, ts, t0, t1):
        a = self.a
        a(f's_and_b32 s{t0}, s6, 0x3fff')
        a(f's_lshr_b32 s{t1}, s6, 2')
        a(f's_and_b32 s{t1}, s{t1}, 0x0fffc000')
        a(f's_or_b32 s{t0}, s{t0}, s{t1}')
        a(f's_sub_u32 s{t0}, s{t0}, s{ts}')
        a(f's_add_u32 s{t0}, s{t0}, {FRESH}')
        a(f's_bfe_u32 s{t0}, s{t0}, 0x1001b')
        a(f's_bfe_u32 s{t1}, s6, 0x1000f')
        a(f's_cmp_gt_u32 s{t1}, s{t0}')

    def tag_slow(self, name, ok, ts, t0, t1, cnt, va, vb):
        a, lab = self.a, self.lab
        a(f's_mov_b32 s{cnt}, {SPIN}')
        a(f'v_mov_b32 v{va}, 0')
        lab(name)
        a(f'global_load_dword v{vb}, v{va}, s[30:31] sc1')
        a(f's_sub_u32 s{cnt}, s{cnt}, 1')
        a('s_cbranch_scc1 L_exit')
        a('s_waitcnt vmcnt(0)')
        a(f'v_readfirstlane_b32 s6, v{vb}')
        a('s_nop 0')
        self.fresh(ts, t0, t1)
        a(f's_cbranch_scc1 {ok}')
        a(f's_cmp_gt_u32 s{cnt}, {SPIN - GRACE}')
        a(f's_cbranch_scc1 {name}')
        a('s_cmp_eq_u32 s6, 0')
        a(f's_cbranch_scc1 {name}')
        a(f's_branch {ok}')

    def flags4(self, v):
        a = self.a
        a(f'v_xor_b32 v{v}, s6, v{v}')
        for i in (1, 2, 3):
            a(f'v_bitop3_b32 v{v}, v{v+i}, s6, v{v} bitop3:0xbe')
        a(f'v_cmp_eq_u32 vcc, 0, v{v}')

    def bf16r(self, dst, src):
        self.a(f'v_cvt_pk_bf16_f32 v{dst}, 0, v{src}')

    def unpack(self, lo, hi, p):
        self.a(f'v_lshlrev_b32 v{lo}, 16, v{p}')
        self.a(f'v_and_b32 v{hi}, 0xffff0000, v{p}')

    def ladder64(self, regs, tmps, op='v_add_f32'):
        a = self.a
        n = len(regs)
        for ror in (8, 4, 2, 1):
            self.nop(max(0, 2 - (n - 1)))
            for r in regs:
                a(f'{op}_dpp v{r}, v{r}, v{r} row_ror:{ror} row_mask:0xf bank_mask:0xf')
        for sw in ('v_permlane16_swap_b32', 'v_permlane32_swap_b32'):
            for r, t in zip(regs, tmps):
                a(f'v_mov_b32 v{t}, v{r}')
            self.nop(max(0, 2 - (n - 1)))
            for r, t in zip(regs, tmps):
                a(f'{sw} v{r}, v{t}')
            for r, t in zip(regs, tmps):
                a(f'{op} v{r}, v{r}, v{t}')

    def ln_stats(self, s1, s2, piv, t0, t1, sinv, seps, mout, rout):
        a = self.a
        a(f'v_mul_f32 v{s1}, s{sinv}, v{s1}')
        a(f'v_mul_f32 v{t0}, v{s1}, v{s1}')
        a(f'v_fma_f32 v{s2}, v{s2}, s{sinv}, -v{t0}')
        if piv is not None:
            a(f'v_add_f32 v{s1}, {piv}, v{s1}')
        a(f'v_max_f32 v{s2}, 0, v{s2}')
        self.bf16r(t1, s2)
        self.bf16r(mout, s1)
        a(f'v_add_f32 v{t1}, s{seps}, v{t1}')
        self.bf16r(t1, t1)
        a(f'v_sqrt_f32 v{t1}, v{t1}')
        a('s_nop 0')
        self.bf16r(t1, t1)
        a(f'v_rcp_f32 v{rout}, v{t1}')
        a('s_nop 0')

    def member(self, dst, tmp):
        a = self.a
        if self.opt['gmap'] == 0:
            a(f's_and_b32 s{dst}, s2, 3')
        elif self.opt['gmap'] == 1:
            a(f's_bfe_u32 s{tmp}, s2, 0x10002')
            a(f's_and_b32 s{dst}, s2, 1')
            a(f's_lshl1_add_u32 s{dst}, s{tmp}, s{dst}')
        else:
            a(f's_bfe_u32 s{tmp}, s2, 0x10002')
            a(f's_and_b32 s{dst}, s2, 1')
            a(f's_lshl1_add_u32 s{dst}, s{tmp}, s{dst}')

    def getc(self, dst, t):
        a = self.a
        a(f's_load_dwordx2 s[{t}:{t+1}], s[0:1], 40')
        a('s_waitcnt lgkmcnt(0)')
        a(f's_load_dword s{dst}, s[{t}:{t+1}], 0')
        a('s_waitcnt lgkmcnt(0)')

    def cstep(self):
        return 0x20000 if self.opt['ILV'] else 0x8000

    def ld(self, R, n, sreg):
        j = n & 7
        srd = 's[36:39]' if n < 8 else 's[40:43]'
        fl = self.opt['kvf'] if (n < 8 or self.opt['vf'] is None) else self.opt['vf']
        self.a(f'buffer_load_dwordx4 v[{R+4*n}:{R+4*n+3}], v{2+j}, {srd}, s{sreg} offen {fl}')

    def chunk(self, R, issue, wait):
        a = self.a
        LA, NST, TP, HALF = self.opt['LA'], self.opt['NST'], self.opt['TP'], self.opt['HALF']
        pool0 = 4 * NST * 0x8000
        npool = (16 - NST) * 16 * (2 if HALF else 1) - (self.opt['NF'] if HALF else 0)

        def hooks(n):
            if NST < 16 and n == (16 - LA - TP) % 16:
                u = self.u()
                wrap = 16 - LA - TP < 0
                a(f's_cmp_gt_u32 s45, {2 if wrap else 1}')
                a(f's_cbranch_scc1 L_nt{u}')
                if wrap:
                    a('s_cmp_ge_u32 s44, 0x200000')
                    a(f's_cbranch_scc1 L_nt{u}')
                a('s_mov_b32 s50, 1')
                a('s_mov_b32 s51, 0')
                a('s_atomic_add_x2 s[50:51], s[52:53], 0x0 glc')
                self.lab(f'L_nt{u}')
            if n == 16 - LA:
                u = self.u()
                a(f's_add_u32 s44, s47, {self.cstep():#x}')
                a('s_cmp_gt_u32 s45, 1')
                a(f's_cbranch_scc1 L_st{u}')
                if NST < 16:
                    a('s_waitcnt lgkmcnt(0)')
                    a('s_cmp_lg_u32 s51, s6')
                    a('s_cbranch_scc1 L_tkretry')
                    self.lab('L_tkok')
                    NF = self.opt['NF']
                    if HALF and NF:
                        a('s_lshr_b32 s48, s50, 2')
                        a(f's_min_u32 s49, s48, {NF // 4}')
                        a('s_add_u32 s48, s48, s49')
                        a('s_lshl_b32 s48, s48, 14')
                        a(f's_add_u32 s38, s48, {pool0 + 0x4000}')
                        a('s_min_u32 s38, s38, 0x200000')
                        a(f's_cmp_lt_u32 s50, {NF}')
                        a('s_cselect_b32 s38, 0x200000, s38')
                        a('s_cselect_b32 s62, 0, 0xffff0000')
                    elif self.opt['P16']:
                        a('s_lshr_b32 s48, s50, 4')
                        a('s_lshl_b32 s48, s48, 17')
                        a('s_bfe_u32 s49, s50, 0x20002')
                        a('s_lshl_b32 s49, s49, 14')
                        a('s_add_u32 s48, s48, s49')
                    else:
                        a('s_lshr_b32 s48, s50, 2')
                        a(f's_lshl_b32 s48, s48, {14 if HALF else 15}')
                        if HALF:
                            a(f's_add_u32 s38, s48, {pool0 + 0x4000}')
                            a('s_min_u32 s38, s38, 0x200000')
                            a('s_mov_b32 s62, 0xffff0000')
                    a('s_and_b32 s49, s50, 3')
                    a('s_lshl_b32 s49, s49, 10')
                    a('s_add_u32 s48, s48, s49')
                    a('s_add_u32 s48, s48, s54')
                    a(f's_cmp_lt_u32 s50, {npool}')
                    a('s_cselect_b32 s44, s48, 0x200000')
                    if self.opt['stamps']:
                        u2 = self.u()
                        a(f's_cbranch_scc0 L_dg{u2}')
                        a('s_memrealtime s[94:95]')
                        a('s_add_u32 s96, s96, 1')
                        a('s_waitcnt lgkmcnt(0)')
                        self.lab(f'L_dg{u2}')
                else:
                    a('s_mov_b32 s44, 0x200000')
                self.lab(f'L_st{u}')
            if HALF and n == (24 - LA) % 16:
                a('s_mov_b32 s42, s38')

        def iss(n):
            if issue:
                hooks(n)
                t = n + LA
                if t < 16:
                    self.ld(R, t, 47)
                else:
                    self.ld(R, t - 16, 44)

        Q, AC, S = 10, 14, 22
        X, C, C2, MN, AL, E, E1, PA0, PB0, PA1, PB1 = 30, 31, 32, 33, 34, 35, 36, 37, 38, 39, 42
        M, L = 40, 41
        SU, SU2 = 43, 44
        for j in range(8):
            if wait:
                a(f's_waitcnt vmcnt({LA-1})')
            k = R + 4 * j
            a(f'v_dot2_f32_bf16 v{S+j}, v{k}, v{Q}, 0')
            for i in range(1, 4):
                a(f'v_dot2_f32_bf16 v{S+j}, v{k+i}, v{Q+i}, v{S+j}')
            iss(j)
        for p in range(4):
            a(f'v_add_f32_dpp v{S+2*p}, v{S+2*p}, v{S+2*p} row_ror:8 row_mask:0xf bank_mask:0x3')
            a(f'v_add_f32_dpp v{S+2*p}, v{S+2*p+1}, v{S+2*p+1} row_ror:8 row_mask:0xf bank_mask:0xc')
        for p in (0, 4):
            a(f'v_add_f32_dpp v{S+p}, v{S+p}, v{S+p} row_half_mirror row_mask:0xf bank_mask:0x5')
            a(f'v_add_f32_dpp v{S+p}, v{S+p+2}, v{S+p+2} row_half_mirror row_mask:0xf bank_mask:0xa')
        self.nop(2)
        a(f'v_permlane16_swap_b32 v{S}, v{S+4}')
        a(f'v_add_f32 v{S}, v{S}, v{S+4}')
        self.nop(2)
        a(f'v_add_f32_dpp v{S}, v{S}, v{S} quad_perm:[1,0,3,2] row_mask:0xf bank_mask:0xf')
        self.nop(2)
        a(f'v_add_f32_dpp v{S}, v{S}, v{S} quad_perm:[2,3,0,1] row_mask:0xf bank_mask:0xf')
        self.bf16r(X, S)
        if HALF and issue:
            a(f'v_cndmask_b32 v{X}, v{X}, v254, s[56:57]')
        self.nop(2)
        a(f'v_max_f32_dpp v{C}, v{X}, v{X} row_ror:8 row_mask:0xf bank_mask:0xf')
        self.nop(2)
        a(f'v_max_f32_dpp v{C}, v{C}, v{C} row_half_mirror row_mask:0xf bank_mask:0xf')
        for sw in ('v_permlane16_swap_b32', 'v_permlane32_swap_b32'):
            a(f'v_mov_b32 v{C2}, v{C}')
            self.nop(2)
            a(f'{sw} v{C}, v{C2}')
            a(f'v_max_f32 v{C}, v{C}, v{C2}')
        a(f'v_mul_f32 v{C}, s46, v{C}')
        a(f'v_max_f32 v{MN}, v{M}, v{C}')
        a(f'v_fma_f32 v{E}, v{X}, s46, -v{MN}')
        a(f'v_sub_f32 v{AL}, v{M}, v{MN}')
        a(f'v_exp_f32 v{E}, v{E}')
        a(f'v_exp_f32 v{AL}, v{AL}')
        a(f'v_mov_b32 v{M}, v{MN}')
        a(f'v_mov_b32 v{E1}, v{E}')
        for i in range(2):
            a(f'v_mul_f32 v{AC+i}, v{AC+i}, v{AL}')
        a(f'v_permlane16_swap_b32 v{E}, v{E1}')
        for i in range(2, 8):
            a(f'v_mul_f32 v{AC+i}, v{AC+i}, v{AL}')
        a(f'v_cvt_pk_bf16_f32 v{PA0}, v{E}, 0')
        a(f'v_cvt_pk_bf16_f32 v{PB0}, 0, v{E}')
        a(f'v_cvt_pk_bf16_f32 v{PA1}, v{E1}, 0')
        a(f'v_cvt_pk_bf16_f32 v{PB1}, 0, v{E1}')
        a(f'v_add_f32 v{SU}, v{E}, v{E1}')
        a(f'v_mul_f32 v{L}, v{L}, v{AL}')
        extra = [
            [f'v_add_f32_dpp v{SU}, v{SU}, v{SU} row_ror:8 row_mask:0xf bank_mask:0xf'],
            [f'v_add_f32_dpp v{SU}, v{SU}, v{SU} row_half_mirror row_mask:0xf bank_mask:0xf'],
            [f'v_mov_b32 v{SU2}, v{SU}'],
            [f'v_permlane32_swap_b32 v{SU}, v{SU2}', f'v_add_f32 v{L}, v{L}, v{SU}', f'v_add_f32 v{L}, v{L}, v{SU2}'],
        ]
        for j in range(8):
            if wait:
                a(f's_waitcnt vmcnt({LA-1})')
            v = R + 32 + 4 * j
            pa, pb = (PA0, PB0) if j < 4 else (PA1, PB1)
            n = 8 * (j & 1) + 4 * ((j >> 1) & 1)
            for i in range(4):
                a(f'v_dot2c_f32_bf16_dpp v{AC+2*i}, v{pa}, v{v+i} row_newbcast:{n} row_mask:0xf bank_mask:0xf')
                a(f'v_dot2c_f32_bf16_dpp v{AC+2*i+1}, v{pb}, v{v+i} row_newbcast:{n} row_mask:0xf bank_mask:0xf')
            iss(8 + j)
            if j < len(extra):
                for s in extra[j]:
                    a(s)

    def issue_set(self, R, done=0, cnt=16):
        for n in range(cnt):
            if self.opt['pace'] and done + n >= self.opt['pace']:
                self.a(f's_waitcnt vmcnt({self.opt["pace"]-1})')
            self.ld(R, n, 44)

    def streamer(self):
        a, lab = self.a, self.lab
        opt = self.opt
        RA, RB, RC = 48, 112, 176
        NST, setC = opt['NST'], opt['setC']
        a('v_lshlrev_b32 v2, 4, v0')
        for j in range(1, 8):
            a(f'v_add_u32 v{2+j}, {(j & 3) * 4096 + (j >> 2) * 65536 if opt["P16"] else 4096 * j}, v2')
        a('s_lshl_b32 s7, s4, 21')
        a('s_mov_b32 s38, 0x200000')
        a('s_mov_b32 s39, 0x20000')
        a('s_mov_b32 s42, 0x200000')
        a('s_mov_b32 s43, 0x20000')
        self.member(44, 45)
        a(f's_mul_i32 s44, s44, {0x4000 if opt["P16"] else 0x8000 if opt["ILV"] else NST*0x8000}')
        a('s_or_b32 s47, s2, s3')
        a('v_lshlrev_b32 v11, 6, v0')
        a('s_waitcnt lgkmcnt(0)')
        a('s_cmp_lg_u32 s47, 0')
        a('s_cbranch_scc1 L_sn0')
        a('s_and_b32 s49, s98, 0x3fff')
        a('s_lshl_b32 s48, s98, 2')
        a('s_and_b32 s48, s48, 0x3fff0000')
        a('s_or_b32 s48, s48, s49')
        a('s_or_b32 s48, s48, 0x8000')
        a('v_mov_b32 v10, s48')
        a('s_mov_b64 exec, 15')
        a('global_store_dword v11, v10, s[30:31] sc1')
        if opt['ptrs']:
            a('s_mov_b64 exec, 1')
            a('v_mov_b32 v12, 0')
            for i, r in enumerate((8, 10, 12, 14, 16, 28, 30, 32, 11, 13, 33)):
                a(f'v_mov_b32 v13, s{r}')
                a(f'global_store_dword v12, v13, s[30:31] offset:{16+4*i}')
                a('s_nop 1')
        a('s_mov_b64 exec, -1')
        lab('L_sn0')
        a('s_add_u32 s36, s10, s7')
        a('s_addc_u32 s37, s11, 0')
        a('s_add_u32 s40, s12, s7')
        a('s_addc_u32 s41, s13, 0')
        if opt['pdelay']:
            a('s_cmp_eq_u32 s5, 0')
            a('s_cbranch_scc1 L_spd')
            a('s_barrier')
            lab('L_spd')
        self.issue_set(RB)
        done = 16
        if setC:
            a(f's_add_u32 s44, s44, {self.cstep():#x}')
            self.issue_set(RC, done)
            done += 16
        a(f's_add_u32 s44, s44, {self.cstep():#x}')
        a('s_load_dword s6, s[30:31], 192')
        self.issue_set(RA, done, opt['LA'])
        a('s_mov_b32 s47, s44')
        a('s_lshl_b32 s48, s4, 8')
        a(f's_add_u32 s48, s48, {TK}')
        a('s_add_u32 s52, s32, s48')
        a('s_addc_u32 s53, s33, 0')
        a('s_lshl_b32 s54, s3, 10')
        a(f's_sub_u32 s54, {4*NST*0x8000}, s54')
        a(f's_setprio {opt["sprio"]}')
        for i in range(8):
            a(f'v_mov_b32 v{14+i}, 0')
        a('v_mov_b32 v40, 0xff800000')
        a('v_mov_b32 v41, 0')
        a(f's_mov_b32 s46, {f2u(LOG2E/16.0):#x}')
        niter = NST - (2 if setC else 1)
        a(f's_mov_b32 s45, {niter}')
        a('s_mov_b64 s[56:57], 0')
        a('s_mov_b32 s62, 0')
        a('v_mov_b32 v254, 0xff800000')
        a('v_mov_b32 v255, 0')
        a('v_and_b32 v253, 63, v0')
        a('v_cmp_le_u32 vcc, 24, v253')
        a('v_and_b32 v45, 31, v0')
        a('v_lshlrev_b32 v247, 4, v45')
        a('v_cndmask_b32 v30, 0, 24, vcc')
        a('v_sub_u32 v30, v253, v30')
        a('v_mul_u32_u24 v249, 24, v30')
        a('v_cndmask_b32 v31, 0, 1, vcc')
        a('v_lshl_add_u32 v249, v31, 9, v249')
        a('v_cmp_eq_u32 s[58:59], 21, v30')
        a('v_cmp_gt_u32 s[60:61], 21, v30')
        a('v_cmp_gt_u32 s[64:65], 22, v30')
        a('v_lshlrev_b32 v46, 5, v45')
        a('v_bfe_u32 v30, v0, 5, 1')
        a('v_lshl_add_u32 v46, v30, 4, v46')
        a('s_lshl_b32 s7, s3, 10')
        a('v_add_u32 v46, s7, v46')
        a('s_lshl_b32 s7, s3, 3')
        a('v_mov_b32 v45, s7')
        if opt['numa']:
            a('s_and_b32 s48, s4, 15')
            a('s_lshr_b32 s66, s48, 3')
            a('s_lshl_b32 s66, s66, 13')
            a('s_lshl_b32 s48, s48, 15')
            a('s_add_u32 s48, s48, s66')
            a('s_lshr_b32 s67, s4, 4')
            self.member(49, 7)
            a('s_lshl2_add_u32 s49, s67, s49')
            a('s_mul_i32 s49, s49, 384')
            a('s_add_u32 s48, s48, s49')
            a(f's_add_u32 s48, s48, {OG2}')
            a('v_lshl_add_u32 v248, v253, 4, s48')
            a(f'v_mul_u32_u24 v31, {16384-384}, v31')
            a('v_add_u32 v248, v248, v31')
        else:
            a('s_and_b32 s48, s4, 15')
            a('s_lshl_b32 s48, s48, 4')
            a('s_lshr_b32 s49, s4, 4')
            a('s_lshl2_add_u32 s48, s49, s48')
            self.member(49, 7)
            a('s_add_u32 s48, s48, s49')
            a('s_lshl_b32 s48, s48, 10')
            a(f's_add_u32 s48, s48, {OG}')
            a('v_lshl_add_u32 v248, v253, 4, s48')
        a('v_mov_b32 v30, 0')
        self.stamp(80)
        a('s_waitcnt lgkmcnt(0)')
        self.fresh(98, 48, 49)
        a('s_cbranch_scc0 L_snw')
        lab('L_snok')
        a(f's_mov_b32 s48, {SPIN}')
        a('v_mov_b32 v47, s6')
        a('s_branch L_sqw')
        lab('L_sqs')
        a('s_sleep 1')
        lab('L_sqw')
        a(f'ds_read_b128 v[32:35], v30 offset:{L_FL2}')
        a(f'ds_read_b128 v[10:13], v247 offset:{L_QL}')
        a('s_sub_u32 s48, s48, 1')
        a('s_cbranch_scc1 L_exit')
        a('s_waitcnt lgkmcnt(0)')
        self.flags4(32)
        a('s_cbranch_vccz L_sqs')
        self.stamp(82)
        if opt['stamps']:
            a('s_memtime s[90:91]')
            a('s_mov_b32 s96, 0')
            a('s_mov_b32 s97, 0')
            a('s_mov_b64 s[94:95], s[98:99]')
        lab('L_sloop')
        self.chunk(RA, True, True)
        a('s_mov_b32 s47, s44')
        if opt['HALF']:
            a('s_mov_b32 s56, s62')
            a('s_mov_b32 s57, s62')
        a(f's_cmp_eq_u32 s45, {niter}')
        a('s_cbranch_scc1 L_sB')
        if setC:
            a(f's_cmp_eq_u32 s45, {niter-1}')
            a('s_cbranch_scc1 L_sC')
        if opt['ev']:
            a(f's_cmp_lg_u32 s45, {opt["EVI"]}')
            a('s_cbranch_scc1 L_sback')
            a(f'ds_write_b32 v255, v47 offset:{L_EV}')
        lab('L_sback')
        a('s_sub_u32 s45, s45, 1')
        a('s_max_i32 s45, s45, 1')
        a('s_cmp_lt_u32 s47, 0x200000')
        a('s_cbranch_scc1 L_sloop')
        self.stamp(84)
        if opt['stamps']:
            a('s_memtime s[92:93]')
        AC = 14
        a('s_waitcnt lgkmcnt(0)')
        a('v_mov_b32 v31, 0')
        a('v_mov_b32 v32, 1')
        for i in range(4):
            a(f'v_permlane32_swap_b32 v{AC+i}, v{AC+4+i}')
        for i in range(4):
            a(f'v_add_f32 v{AC+i}, v{AC+i}, v{AC+4+i}')
        a(f'ds_write_b128 v46, v[{AC}:{AC+3}] offset:{L_OW}')
        a(f'ds_write_b64 v45, v[40:41] offset:{L_HDR}')
        a('s_mov_b64 exec, 1')
        a(f'ds_add_rtn_u32 v33, v31, v32 offset:{L_CNT}')
        a('s_mov_b64 exec, -1')
        if opt['numa']:
            a(f'ds_read_b64 v[34:35], v31 offset:{L_PC}')
        H, D = 236, 212
        a(f'ds_read_b128 v[{H}:{H+3}], v31 offset:{L_HDR}')
        a(f'ds_read_b128 v[{H+4}:{H+7}], v31 offset:{L_HDR+16}')
        for w in range(4):
            for e in range(3):
                a(f'ds_read_b64 v[{D+6*w+2*e}:{D+6*w+2*e+1}], v249 offset:{L_OW+1024*w+8*e}')
        a('s_waitcnt lgkmcnt(14)')
        a('v_readfirstlane_b32 s7, v33')
        a('s_nop 0')
        a('s_cmp_lg_u32 s7, 3')
        a('s_cbranch_scc1 L_sexit' if opt['stamps'] else 's_cbranch_scc1 L_exit')
        if opt['numa']:
            a('v_cmp_ne_u32 vcc, s6, v34')
            a('s_cbranch_vccnz L_spc')
            lab('L_spcok')
            a('v_xor_b32 v248, v35, v248')
        a('s_waitcnt lgkmcnt(12)')
        a(f'v_max3_f32 v30, v{H}, v{H+2}, v{H+4}')
        a(f'v_max_f32 v30, v30, v{H+6}')
        for w in range(4):
            a(f'v_sub_f32 v{H+2*w}, v{H+2*w}, v30')
        for w in range(4):
            a(f'v_exp_f32 v{H+2*w}, v{H+2*w}')
        a('s_nop 0')
        a(f'v_mul_f32 v31, v{H}, v{H+1}')
        for w in range(1, 4):
            a(f'v_fmac_f32 v31, v{H+2*w}, v{H+2*w+1}')
        a('v_rcp_f32 v32, v31')
        a('v_log_f32 v33, v31')
        a('s_waitcnt lgkmcnt(0)')
        for e in range(0, 6, 2):
            a(f'v_pk_mul_f32 v[{22+e}:{23+e}], v[{D+e}:{D+e+1}], v[{H}:{H+1}] op_sel_hi:[1,0]')
        for w in range(1, 4):
            for e in range(0, 6, 2):
                a(f'v_pk_fma_f32 v[{22+e}:{23+e}], v[{D+6*w+e}:{D+6*w+e+1}], v[{H+2*w}:{H+2*w+1}], v[{22+e}:{23+e}] op_sel_hi:[1,0,1]')
        a('v_add_f32 v33, v33, v30')
        for e in range(0, 6, 2):
            a(f'v_pk_mul_f32 v[{22+e}:{23+e}], v[{22+e}:{23+e}], v[32:33] op_sel_hi:[1,0]')
        a('v_cvt_pk_bf16_f32 v44, v22, v23')
        a('v_cvt_pk_bf16_f32 v45, v24, v25')
        a('v_cvt_pk_bf16_f32 v46, v26, v27')
        a('v_cndmask_b32 v44, 0, v44, s[64:65]')
        a('v_cndmask_b32 v45, 0, v45, s[60:61]')
        a('v_cndmask_b32 v46, 0, v46, s[60:61]')
        a('v_cndmask_b32 v45, v45, v33, s[58:59]')
        a('s_mov_b32 exec_hi, 0xffff')
        a('global_store_dwordx4 v248, v[44:47], s[32:33] sc1')
        if opt['after']:
            a('v_mov_b32 v30, 0')
            a('v_mov_b32 v31, 5')
            a(f'ds_write_b32 v30, v31 offset:{L_CNT}')
        self.stamp(86)
        if opt['stamps']:
            self.flush_stamps([(3, 86)])
            lab('L_sexit')
            a('s_mov_b64 exec, 1')
            a('s_lshl_b32 s7, s2, 8')
            a(f's_add_u32 s7, s7, {STAMP}')
            a('s_lshl3_add_u32 s7, s3, s7')
            a('v_mov_b32 v252, s7')
            for slot, sr in ((22, 84), (26, 94)):
                a(f'v_mov_b32 v250, s{sr}')
                a(f'v_mov_b32 v251, s{sr+1}')
                a(f'global_store_dwordx2 v252, v[250:251], s[32:33] offset:{8*slot}')
                a('s_nop 1')
            a('s_cmp_lg_u32 s3, 0')
            a('s_cbranch_scc1 L_exit')
            a('v_mov_b32 v250, s96')
            a('v_mov_b32 v251, s97')
            if not opt['probe']:
                a(f'global_store_dwordx2 v252, v[250:251], s[32:33] offset:{8*30}')
            a('s_cmp_lg_u32 s3, 0')
            a('s_cbranch_scc1 L_exit')
            a('s_getreg_b32 s88, hwreg(HW_REG_XCC_ID)')
            a('s_and_b32 s88, s88, 15')
            a('s_mov_b32 s89, 0')
            a('s_sub_u32 s90, s92, s90')
            a('s_mov_b32 s91, 0')
            self.flush_stamps([(0, 98), (1, 80), (2, 82), (8, 84), (6, 88), (7, 90)])
        a('s_endpgm')
        if NST < 16:
            lab('L_tkretry')
            a(f's_mov_b32 s48, {SPIN}')
            lab('L_tkr2')
            a('s_sleep 8')
            a('s_mov_b32 s50, 1')
            a('s_mov_b32 s51, 0')
            a('s_atomic_add_x2 s[50:51], s[52:53], 0x0 glc')
            a('s_sub_u32 s48, s48, 1')
            a('s_cbranch_scc1 L_exit')
            a('s_waitcnt lgkmcnt(0)')
            a('s_cmp_lg_u32 s51, s6')
            a('s_cbranch_scc1 L_tkr2')
            a('s_branch L_tkok')
        if opt['numa']:
            lab('L_spc')
            a(f's_mov_b32 s48, {SPIN}')
            lab('L_spc2')
            a('s_sleep 2')
            a(f'ds_read_b64 v[34:35], v31 offset:{L_PC}')
            a('s_sub_u32 s48, s48, 1')
            a('s_cbranch_scc1 L_exit')
            a('s_waitcnt lgkmcnt(0)')
            a('v_cmp_ne_u32 vcc, s6, v34')
            a('s_cbranch_vccnz L_spc2')
            a('s_branch L_spcok')
        lab('L_snw')
        self.tag_slow('L_snw2', 'L_snok', 98, 48, 49, 50, 30, 31)
        lab('L_sB')
        self.chunk(RB, False, False)
        a('s_branch L_sback')
        if setC:
            lab('L_sC')
            self.chunk(RC, False, False)
            a('s_branch L_sback')

    W1, B1, W2P, C1P, ET, EA = 64, 92, 120, 134, 136, 152

    def eval_sub(self):
        a = self.a
        W1, B1, W2P, C1P, ET, EA = self.W1, self.B1, self.W2P, self.C1P, self.ET, self.EA
        self.lab('L_eval')
        a(f'v_mov_b32 v{EA}, 0')
        for base in range(0, 14, 2):
            prs = [(base, ET), (base + 1, ET + 6)]
            for p, t in prs:
                a(f'v_pk_mul_f32 v[{t}:{t+1}], v[{W1+2*p}:{W1+2*p+1}], s[70:71]')
            for p, t in prs:
                self.bf16r(t, t)
                self.bf16r(t + 1, t + 1)
            for p, t in prs:
                a(f'v_pk_add_f32 v[{t}:{t+1}], v[{t}:{t+1}], v[{B1+2*p}:{B1+2*p+1}]')
            for p, t in prs:
                self.bf16r(t, t)
                self.bf16r(t + 1, t + 1)
            for p, t in prs:
                a(f'v_pk_mul_f32 v[{t+2}:{t+3}], v[{t}:{t+1}], v[{t}:{t+1}]')
            for p, t in prs:
                a(f'v_pk_fma_f32 v[{t+2}:{t+3}], v[{t+2}:{t+3}], s[72:73], v[{C1P}:{C1P+1}]')
            for p, t in prs:
                a(f'v_pk_mul_f32 v[{t+2}:{t+3}], v[{t+2}:{t+3}], v[{t}:{t+1}]')
            for p, t in prs:
                a(f'v_exp_f32 v{t+2}, v{t+2}')
                a(f'v_exp_f32 v{t+3}, v{t+3}')
            a('s_nop 0')
            for p, t in prs:
                a(f'v_add_f32 v{t+2}, 1.0, v{t+2}')
                a(f'v_add_f32 v{t+3}, 1.0, v{t+3}')
            for p, t in prs:
                a(f'v_rcp_f32 v{t+2}, v{t+2}')
                a(f'v_rcp_f32 v{t+3}, v{t+3}')
            a('s_nop 0')
            for p, t in prs:
                a(f'v_pk_mul_f32 v[{t}:{t+1}], v[{t}:{t+1}], v[{t+2}:{t+3}]')
            for p, t in prs:
                a(f'v_cvt_pk_bf16_f32 v{t+4}, v{t}, v{t+1}')
            for p, t in prs:
                a(f'v_dot2c_f32_bf16 v{EA}, v{t+4}, v{W2P+p}')
            if self.opt['evs']:
                a(f's_sleep {self.opt["evs"]}')
        self.nop(2)
        self.ladder64([EA], [ET])
        self.bf16r(EA, EA)
        a(f'v_add_f32 v{EA}, s74, v{EA}')
        a(f'v_cvt_pk_bf16_f32 v153, v{EA}, 0')
        a('s_setpc_b64 s[76:77]')

    def producer(self):
        a, lab = self.a, self.lab
        opt = self.opt
        a('v_lshrrev_b32 v2, 4, v1')
        a('v_and_b32 v3, 15, v1')
        a('v_mul_u32_u24 v4, 896, v2')
        a('v_lshl_add_u32 v4, v3, 4, v4')
        a('v_cmp_gt_u32 s[60:61], 14, v3')
        a('v_bfrev_b32 v7, 1')
        a('v_lshrrev_b32 v5, 3, v1')
        a('v_and_b32 v6, 7, v1')
        a('v_cndmask_b32 v4, v7, v4, s[60:61]')
        a(f's_mov_b32 s7, {14*8192}')
        a('v_mul_lo_u32 v56, s7, v5')
        a('v_lshl_add_u32 v56, v6, 4, v56')
        for r in range(4):
            a(f's_add_u32 s{40+r}, s34, {r}')
            a(f's_and_b32 s{40+r}, s{40+r}, 3')
            a(f's_mul_i32 s{40+r}, s{40+r}, 224')
        a(f's_mul_i32 s48, s34, {112*8192}')
        a('s_lshl_b32 s49, s4, 7')
        a('s_add_u32 s48, s48, s49')
        a('s_mov_b32 s38, 3584')
        a('s_mov_b32 s39, 0x20000')
        a(f's_mov_b32 s46, {0 if "nowq" in opt["exp"] else 3670016}')
        a('s_mov_b32 s47, 0x20000')
        a('s_waitcnt lgkmcnt(0)')
        a('s_mov_b32 s35, s98')
        a('s_mov_b32 s36, s8')
        a('s_mov_b32 s37, s9')
        a('s_mov_b32 s44, s14')
        a('s_mov_b32 s45, s15')
        for r in range(4):
            a(f'buffer_load_dwordx4 v[{8+4*r}:{11+4*r}], v4, s[36:39], s{40+r} offen')
        WR = 100
        for it in range(14):
            a(f'buffer_load_dwordx4 v[{WR+4*it}:{WR+4*it+3}], v56, s[44:47], s48 offen {opt["wqf"]}')
            if it < 13:
                a('s_add_u32 s48, s48, 8192')
        if opt['pdelay'] and opt['pbar'] < 0:
            a('s_barrier')
        a(f's_mov_b32 s62, {f2u(1.0/448):#x}')
        a(f's_mov_b32 s63, {f2u(1e-5):#x}')
        a('s_mov_b32 s64, 0x05040100')
        a('s_mov_b32 s65, 0x07060302')
        a('s_lshl_b32 s18, s34, 10')
        a('v_lshl_add_u32 v57, v1, 4, s18')
        a('v_mul_u32_u24 v58, 28, v5')
        a('v_add_u32 v58, s18, v58')
        a('s_waitcnt vmcnt(14)')
        self.vstamp(228)
        XF = 24
        for i in range(16):
            self.unpack(XF + 2 * i, XF + 2 * i + 1, 8 + i)
        PV, S1, S2, DT = 76, 78, 80, 82
        a('s_nop 0')
        a(f'v_mov_b32_dpp v{PV}, v{XF} row_newbcast:0 row_mask:0xf bank_mask:0xf')
        for i in range(16):
            d = DT + 2 * (i & 1)
            a(f'v_pk_add_f32 v[{d}:{d+1}], v[{XF+2*i}:{XF+2*i+1}], v[{PV}:{PV+1}] op_sel_hi:[1,0] neg_lo:[0,1] neg_hi:[0,1]')
            if i == 0:
                a(f'v_pk_mul_f32 v[{S2}:{S2+1}], v[{d}:{d+1}], v[{d}:{d+1}]')
                a(f'v_mov_b32 v{S1}, v{d}')
                a(f'v_mov_b32 v{S1+1}, v{d+1}')
            else:
                a(f'v_pk_fma_f32 v[{S2}:{S2+1}], v[{d}:{d+1}], v[{d}:{d+1}], v[{S2}:{S2+1}]')
                a(f'v_pk_add_f32 v[{S1}:{S1+1}], v[{S1}:{S1+1}], v[{d}:{d+1}]')
        a(f'v_add_f32 v{S1}, v{S1}, v{S1+1}')
        a(f'v_add_f32 v{S2}, v{S2}, v{S2+1}')
        a(f'v_cndmask_b32 v{S1}, 0, v{S1}, s[60:61]')
        a(f'v_cndmask_b32 v{S2}, 0, v{S2}, s[60:61]')
        for ror in (8, 4, 2, 1):
            a('s_nop 0')
            a(f'v_add_f32_dpp v{S1}, v{S1}, v{S1} row_ror:{ror} row_mask:0xf bank_mask:0xf')
            a(f'v_add_f32_dpp v{S2}, v{S2}, v{S2} row_ror:{ror} row_mask:0xf bank_mask:0xf')
        MO, RO = 86, 88
        self.ln_stats(S1, S2, f'v{PV}', 84, 85, 62, 63, MO, RO)
        for i in range(4):
            a(f'v_pk_add_f32 v[{XF+2*i}:{XF+2*i+1}], v[{XF+2*i}:{XF+2*i+1}], v[{MO}:{MO+1}] op_sel_hi:[1,0] neg_lo:[0,1] neg_hi:[0,1]')
        for i in range(8):
            self.bf16r(XF + i, XF + i)
        for i in range(4):
            a(f'v_pk_mul_f32 v[{XF+2*i}:{XF+2*i+1}], v[{XF+2*i}:{XF+2*i+1}], v[{RO}:{RO+1}] op_sel_hi:[1,0]')
        for i in range(4):
            a(f'v_cvt_pk_bf16_f32 v{8+i}, v{XF+2*i}, v{XF+2*i+1}')
        a(f'ds_write_b128 v57, v[8:11] offset:{L_XN}')
        a(f'v_add_u32 v58, {L_XN}, v58')
        a('s_waitcnt lgkmcnt(0)')
        XN = 8
        for b in range(4):
            for p in range(0, 6, 2):
                a(f'ds_read2_b32 v[{XN+8*b+p}:{XN+8*b+p+1}], v58 offset0:{64*b+p} offset1:{64*b+p+1}')
            a(f'ds_read_b32 v{XN+8*b+6}, v58 offset:{256*b+24}')
            if b == 2:
                a('s_waitcnt lgkmcnt(8)')
        a('s_waitcnt lgkmcnt(0)')
        a('s_load_dword s6, s[30:31], 0')
        PP, QA = 40, 60
        for p in range(7):
            a(f's_waitcnt vmcnt({12-2*p})')
            if opt['pdelay'] and opt['pbar'] == p:
                a('s_barrier')
            r0, r1 = WR + 8 * p, WR + 8 * p + 4
            for dw in range(4):
                a(f'v_perm_b32 v{PP+2*dw}, v{r1+dw}, v{r0+dw}, s64')
                a(f'v_perm_b32 v{PP+2*dw+1}, v{r1+dw}, v{r0+dw}, s65')
            for b in range(4):
                for e in range(8):
                    src2 = '0' if p == 0 else f'v{QA+8*b+e}'
                    a(f'v_dot2_f32_bf16 v{QA+8*b+e}, v{PP+e}, v{XN+8*b+p}, {src2}')
        self.vstamp(232)
        for b in range(4):
            for e in range(4):
                v = QA + 8 * b + e
                a(f'v_add_f32_dpp v{v}, v{v}, v{v} row_ror:8 row_mask:0xf bank_mask:0x3')
                a(f'v_add_f32_dpp v{v}, v{v+4}, v{v+4} row_ror:8 row_mask:0xf bank_mask:0xc')
        for b in (0, 2):
            for e in range(4):
                a(f'v_permlane16_swap_b32 v{QA+8*b+e}, v{QA+8*b+8+e}')
        for b in (0, 2):
            for e in range(4):
                a(f'v_add_f32 v{QA+8*b+e}, v{QA+8*b+e}, v{QA+8*b+8+e}')
        for e in range(4):
            a(f'v_permlane32_swap_b32 v{QA+e}, v{QA+16+e}')
        for e in range(4):
            a(f'v_add_f32 v{QA+e}, v{QA+e}, v{QA+16+e}')
        a(f'ds_write_b128 v57, v[{QA}:{QA+3}] offset:{L_QP}')
        self.vstamp(234)

    def publish_q(self):
        a, lab = self.a, self.lab
        a('v_mov_b32 v58, 0')
        a('v_lshlrev_b32 v57, 4, v1')
        a('s_lshr_b32 s18, s4, 2')
        a('s_lshl_b32 s18, s18, 12')
        a('s_and_b32 s19, s4, 3')
        a('s_lshl_b32 s19, s19, 8')
        a('s_add_u32 s18, s18, s19')
        a('v_lshrrev_b32 v8, 4, v1')
        a('v_lshlrev_b32 v8, 10, v8')
        a('v_and_b32 v9, 7, v1')
        a('v_lshl_add_u32 v8, v9, 5, v8')
        a('v_bfe_u32 v9, v1, 3, 1')
        a('v_lshl_add_u32 v8, v9, 4, v8')
        a('v_add_u32 v8, s18, v8')
        a('v_mov_b32 v34, s6')
        a('v_mov_b32 v35, s6')
        a(f's_mov_b32 s19, {SPIN}')
        lab('L_hfw')
        a(f'ds_read_b128 v[12:15], v58 offset:{L_FLG}')
        for w in range(4):
            a(f'ds_read_b128 v[{16+4*w}:{19+4*w}], v57 offset:{L_QP+1024*w}')
        a('s_sub_u32 s19, s19, 1')
        a('s_cbranch_scc1 L_exit')
        a('s_waitcnt lgkmcnt(0)')
        self.flags4(12)
        a('s_cbranch_vccz L_hfw')
        a('v_pk_add_f32 v[16:17], v[16:17], v[20:21]')
        a('v_pk_add_f32 v[18:19], v[18:19], v[22:23]')
        a('v_pk_add_f32 v[24:25], v[24:25], v[28:29]')
        a('v_pk_add_f32 v[26:27], v[26:27], v[30:31]')
        a('v_pk_add_f32 v[16:17], v[16:17], v[24:25]')
        a('v_pk_add_f32 v[18:19], v[18:19], v[26:27]')
        a('v_cvt_pk_bf16_f32 v32, v16, v17')
        a('v_cvt_pk_bf16_f32 v33, v18, v19')
        a('global_store_dwordx4 v8, v[32:35], s[32:33] sc1')

    def helper(self):
        a, lab = self.a, self.lab
        opt = self.opt
        a('s_setprio 3')
        a('s_sub_u32 s34, s3, 4')
        a('v_and_b32 v1, 63, v0')
        a('s_cmp_eq_u32 s5, 0')
        a('s_cbranch_scc1 L_hnp')
        self.producer()
        a('s_branch L_hn1')
        lab('L_hnp')
        a('s_waitcnt lgkmcnt(0)')
        a('s_mov_b32 s35, s98')
        if opt['early']:
            a('s_cmp_eq_u32 s34, 0')
            a('s_cbranch_scc1 L_he0')
            a('s_cmp_eq_u32 s34, 1')
            a('s_cbranch_scc1 L_he1')
            self.mlp_loads()
            a('s_branch L_he1')
            lab('L_he0')
            self.wparams('L_he1')
            self.stage()
            lab('L_he1')
        if opt['probe']:
            a('s_cmp_lt_u32 s34, 2')
            a('s_cbranch_scc1 L_pr1')
            a('s_lshl_b32 s40, s4, 21')
            a('s_and_b32 s41, s34, 1')
            a('s_lshl_b32 s41, s41, 13')
            a('s_add_u32 s40, s40, s41')
            a('s_add_u32 s40, s40, 0x1fc000')
            for base, res in ((10, 50), (12, 52)):
                a(f's_add_u32 s42, s{base}, s40')
                a(f's_addc_u32 s43, s{base+1}, 0')
                a(f's_mov_b32 s{res}, -1')
                a(f's_mov_b32 s{res+1}, 0')
                for rep in range(opt['probe']):
                    a('s_memtime s[44:45]')
                    a('s_waitcnt lgkmcnt(0)')
                    a(f's_load_dword s48, s[42:43], 0 glc')
                    a('s_waitcnt lgkmcnt(0)')
                    a('s_memtime s[46:47]')
                    a('s_waitcnt lgkmcnt(0)')
                    a('s_sub_u32 s49, s46, s44')
                    a(f's_min_u32 s{res}, s{res}, s49')
                a(f's_memrealtime s[{res+4}:{res+5}]')
                a('s_waitcnt lgkmcnt(0)')
            a('s_mov_b64 exec, 1')
            a('s_lshl_b32 s7, s2, 8')
            a(f's_add_u32 s7, s7, {STAMP}')
            a('s_and_b32 s41, s34, 1')
            a('s_lshl3_add_u32 s7, s41, s7')
            a('v_mov_b32 v252, s7')
            for slot, sr in ((16, 50), (18, 52), (30, 54)):
                a(f'v_mov_b32 v250, s{sr}')
                a(f'v_mov_b32 v251, s{sr+1}')
                a(f'global_store_dwordx2 v252, v[250:251], s[32:33] offset:{8*slot}')
                a('s_nop 1')
            a('s_mov_b64 exec, -1')
            lab('L_pr1')
        a(f's_sleep {opt["hs0"]}')
        a('s_load_dword s6, s[30:31], 0')
        lab('L_hn1')
        for sec in (1, 2):
            a('s_waitcnt lgkmcnt(0)')
            self.fresh(35, 18, 19)
            a('s_cbranch_scc1 L_hnok')
            a('s_sleep 4')
            a(f's_load_dword s6, s[30:31], {64*sec}')
        a('s_waitcnt lgkmcnt(0)')
        self.fresh(35, 18, 19)
        a('s_cbranch_scc1 L_hnok')
        self.tag_slow('L_hnw', 'L_hnok', 35, 18, 19, 7, 58, 59)
        lab('L_hnok')
        self.vstamp(236)
        a('s_lshl_b32 s18, s34, 2')
        a('v_mov_b32 v58, s18')
        a('v_mov_b32 v59, s6')
        a(f'ds_write_b32 v58, v59 offset:{L_FLG}')
        a('s_and_b32 s35, s4, 15')
        a('s_lshl_b32 s35, s35, 2')
        a('s_lshr_b32 s7, s4, 4')
        a('s_add_u32 s35, s35, s7')
        a('s_lshl_b32 s35, s35, 10')
        a('s_lshl_b32 s7, s34, 8')
        a('s_add_u32 s35, s35, s7')
        a('s_add_u32 s100, s32, s35')
        a('s_addc_u32 s101, s33, 0')
        a('s_cmp_lg_u32 s34, 0')
        a('s_cbranch_scc1 L_hq')
        a('v_mov_b32 v58, 0')
        a(f'ds_write_b32 v58, v58 offset:{L_CNT}')
        a('s_cmp_eq_u32 s5, 0')
        a('s_cbranch_scc1 L_hq')
        self.publish_q()
        self.vstamp(240)
        lab('L_hq')
        if opt['gs0']:
            a('s_cmp_lg_u32 s5, 0')
            a('s_cbranch_scc1 L_hq0')
            a('s_cmp_eq_u32 s34, 0')
            a('s_cbranch_scc1 L_hq0')
            a(f's_sleep {opt["gs0"]}')
            lab('L_hq0')
        a(f's_mov_b32 s19, {SPIN}')
        lab('L_hqw')
        for p in range(4):
            a(f's_load_dwordx16 s[{36+16*p}:{51+16*p}], s[100:101], {64*p} glc')
        a('s_sub_u32 s19, s19, 1')
        a('s_cbranch_scc1 L_exit')
        a('s_waitcnt lgkmcnt(0)')
        tags = [36 + 16 * p + 4 * g + 2 for p in range(4) for g in range(4)]
        a(f's_xor_b32 s7, s{tags[0]}, s6')
        for t in tags[1:]:
            a(f's_xor_b32 s18, s{t}, s6')
            a('s_or_b32 s7, s7, s18')
        a('s_cbranch_scc0 L_hqok')
        a(f's_sleep {opt["qsleep"]}')
        a('s_branch L_hqw')
        lab('L_hqok')
        for p in range(4):
            for g in range(4):
                for k in range(2):
                    a(f'v_writelane_b32 v8, s{36+16*p+4*g+k}, {8*p+2*g+k}')
        a('s_lshl_b32 s18, s34, 7')
        a('v_lshl_add_u32 v9, v1, 2, s18')
        a('s_mov_b32 exec_hi, 0')
        a(f'ds_write_b32 v9, v8 offset:{L_QL}')
        a('s_mov_b64 exec, -1')
        a('s_load_dword s74, s[26:27], 0')
        a('s_lshl_b32 s18, s34, 2')
        a('v_mov_b32 v9, s18')
        a('v_mov_b32 v8, s6')
        a('s_waitcnt lgkmcnt(0)')
        a(f'ds_write_b32 v9, v8 offset:{L_FL2}')
        self.vstamp(242)
        a('s_setprio 0')
        if opt['NST'] < 16:
            self.member(18, 19)
            a('s_lshl2_add_u32 s18, s18, s34')
            a('s_cmp_lg_u32 s18, 1')
            a('s_cbranch_scc1 L_htk')
            a('s_lshl_b32 s18, s4, 8')
            a(f's_add_u32 s18, s18, {TK}')
            a('v_mov_b32 v10, s18')
            a('v_mov_b32 v8, 0')
            a('v_mov_b32 v9, s6')
            a('s_mov_b64 exec, 1')
            a('global_store_dwordx2 v10, v[8:9], s[32:33] sc1')
            a('s_mov_b64 exec, -1')
            lab('L_htk')
        a('s_cmp_lt_u32 s34, 2')
        a('s_cbranch_scc1 L_work')
        a('s_sub_u32 s18, s2, 4')
        a('s_mul_i32 s35, s18, 964')
        a('s_lshr_b32 s35, s35, 16')
        a('s_mul_i32 s19, s35, 68')
        a('s_cmp_eq_u32 s18, s19')
        a('s_cselect_b32 s35, s35, 4')
        a('s_cmp_eq_u32 s34, 3')
        a('s_cselect_b32 s35, s35, 4')
        if not opt['numa']:
            a('s_cmp_ge_u32 s35, 4')
            a('s_cbranch_scc1 L_hw')
            a('s_lshl_b32 s18, s35, 11')
            if self.opt['numa']:
                self.getc(48, 50)
                a('s_xor_b32 s48, s48, s35')
                a('s_xor_b32 s48, s48, 1')
                a('s_and_b32 s48, s48, 1')
                a('s_lshl_b32 s48, s48, 13')
                a('s_add_u32 s18, s18, s48')
            a(f's_add_u32 s18, s18, {ACC2 if self.opt["numa"] else ACC}')
            a('v_lshl_add_u32 v4, v1, 4, s18')
            for i in range(4):
                a(f'v_mov_b32 v{8+i}, 0')
            for rp in range(opt['R']):
                a(f'v_add_u32 v{224+rp}, {(16384 if opt["numa"] else 8192)*rp}, v4')
                a(f'global_store_dwordx4 v{224+rp}, v[8:11], s[32:33] sc1')
                a(f'global_store_dwordx4 v{224+rp}, v[8:11], s[32:33] offset:1024 sc1')
            a('s_lshl_b32 s18, s35, 2')
            a(f's_add_u32 s18, s18, {RDY}')
            a('v_mov_b32 v12, s18')
            a('v_mov_b32 v13, s6')
            a('s_waitcnt vmcnt(0)')
            a('s_mov_b64 exec, 1')
            a('global_store_dword v12, v13, s[32:33] sc1')
            a('s_mov_b64 exec, -1')
        lab('L_hw')
        W1, B1, C1P, W2P = self.W1, self.B1, self.C1P, self.W2P
        if opt['early']:
            a('s_cmp_eq_u32 s5, 0')
            a('s_cbranch_scc1 L_hw2')
        self.mlp_loads()
        lab('L_hw2')
        k2 = -2.0 * math.sqrt(2.0 / math.pi) * LOG2E
        a(f'v_mov_b32 v{C1P}, {f2u(k2):#x}')
        a(f'v_mov_b32 v{C1P+1}, {f2u(k2):#x}')
        a(f's_mov_b32 s72, {f2u(k2*0.044715):#x}')
        a('s_mov_b32 s73, s72')
        a('s_lshl_b32 s74, s74, 16')
        a('s_waitcnt vmcnt(0)')
        for i in range(14):
            self.unpack(W1 + 2 * i, W1 + 2 * i + 1, 160 + i)
            self.unpack(B1 + 2 * i, B1 + 2 * i + 1, 176 + i)
        a('s_lshl_b32 s40, s2, 2')
        a('s_lshl1_add_u32 s40, s34, s40')
        a('s_sub_u32 s40, s40, 4')
        a('s_add_u32 s50, s40, 2')
        lab('L_tb')
        a('s_mul_i32 s41, s40, 6')
        a(f's_cmp_ge_u32 s41, {NTH}')
        a(f's_mov_b32 s43, {E0 << 7}')
        a(f's_cselect_b32 s42, {0x8000 - NTH + (E0 << 7)}, s43')
        a('s_add_u32 s41, s41, s42')
        for n in range(6):
            a(f's_add_u32 s70, s41, {n}')
            a('s_lshl_b32 s70, s70, 16')
            a('s_mov_b32 s71, s70')
            if 'noeval' not in opt['exp']:
                a('s_call_b64 s[76:77], L_eval')
            a('s_nop 0')
            a(f'v_readfirstlane_b32 s{44+n}, v153')
        a('s_nop 0')
        for n in range(3):
            a(f's_pack_ll_b32_b16 s{44+n}, s{44+2*n}, s{45+2*n}')
        a('s_lshl_b32 s41, s40, 4')
        a(f's_add_u32 s41, s41, {TG}')
        a('v_mov_b32 v8, s44')
        a('v_mov_b32 v9, s45')
        a('v_mov_b32 v10, s46')
        a('v_mov_b32 v11, s6')
        a('v_mov_b32 v12, s41')
        a('s_mov_b64 exec, 1')
        a('global_store_dwordx4 v12, v[8:11], s[32:33] sc1')
        a('s_mov_b64 exec, -1')
        a('s_add_u32 s40, s40, 1')
        a('s_cmp_lt_u32 s40, s50')
        a('s_cbranch_scc1 L_tb')
        a('s_cmp_lt_u32 s35, 4')
        a('s_cbranch_scc1 L_cons')
        if opt['stamps']:
            a('s_cmp_lg_u32 s34, 2')
            a('s_cbranch_scc1 L_exit')
            self.stamp(24)
            self.flush_stamps([(15, 24)])
        a('s_endpgm')
        lab('L_work')
        self.worker()
        if opt['numa']:
            self.idle_worker()
        self.consumer()
        self.eval_sub()

    def wparams(self, idle):
        a = self.a
        a('s_lshr_b32 s40, s2, 3')
        self.member(41, 42)
        a('s_sub_u32 s42, s40, s41')
        a('s_and_b32 s43, s42, 7')
        a('s_cmp_eq_u32 s43, 0')
        a(f's_cbranch_scc1 {idle}')
        a('s_add_u32 s42, s42, 7')
        a('s_lshr_b32 s42, s42, 3')
        a('s_sub_u32 s40, s40, s42')
        a('s_mul_i32 s41, s40, 37')
        a('s_lshr_b32 s41, s41, 8')
        a('s_mul_i32 s42, s41, 7')
        a('s_sub_u32 s42, s40, s42')
        a('s_and_b32 s40, s2, 7')
        a('s_lshl2_add_u32 s40, s40, s41')
        a('s_mul_i32 s43, s42, 293')
        a('s_lshr_b32 s43, s43, 6')

    def stage(self):
        a = self.a
        opt = self.opt
        W = opt['swin']
        a(f's_mul_i32 s44, s40, {128*896}')
        a('s_lshl_b32 s45, s42, 7')
        a('s_add_u32 s44, s44, s45')
        a('s_add_u32 s36, s16, s44')
        a('s_addc_u32 s37, s17, 0')
        a(f's_sub_u32 s38, {128*896}, s45')
        if 'nowo' in opt['exp']:
            a('s_mov_b32 s38, 0')
        a('s_mov_b32 s39, 0x20000')
        a('v_lshrrev_b32 v2, 3, v1')
        a('v_and_b32 v3, 7, v1')
        a(f'v_mul_u32_u24 v8, {RS}, v2')
        a('v_lshl_add_u32 v8, v3, 4, v8')
        a('v_mul_u32_u24 v2, 896, v2')
        a('v_lshl_add_u32 v2, v3, 4, v2')
        a('s_mov_b32 s44, 0')
        for it in range(16):
            if it >= W:
                a(f's_waitcnt vmcnt({W-1})')
                a(f'ds_write_b128 v8, v[{160+4*(it-W)}:{163+4*(it-W)}] offset:{L_WOS+8*RS*(it-W)}')
            a(f'buffer_load_dwordx4 v[{160+4*it}:{163+4*it}], v2, s[36:39], s44 offen {opt["wof"]}')
            a('s_add_u32 s44, s44, 7168')
        a('v_lshlrev_b32 v3, 4, v1')
        for z in range(4):
            a(f'v_mov_b32 v{224+z}, 0')
        for z in range(3):
            a(f'ds_write_b128 v3, v[224:227] offset:{L_WOS+128*RS+1024*z}')
        for it in range(16 - W, 16):
            a(f's_waitcnt vmcnt({15-it})')
            a(f'ds_write_b128 v8, v[{160+4*it}:{163+4*it}] offset:{L_WOS+8*RS*it}')

    def mlp_loads(self):
        a = self.a
        a('v_lshlrev_b32 v2, 4, v1')
        a('v_lshlrev_b32 v3, 3, v1')
        W1, B1, C1P, W2P = self.W1, self.B1, self.C1P, self.W2P
        for base, sp in ((160, 20), (176, 22), (W2P, 24)) if 'nomlp' not in self.opt['exp'] else ():
            for r in range(3):
                a(f'global_load_dwordx4 v[{base+4*r}:{base+4*r+3}], v2, s[{sp}:{sp+1}] offset:{1024*r}')
            a(f'global_load_dwordx2 v[{base+12}:{base+13}], v3, s[{sp}:{sp+1}] offset:3072')

    def batch_of_wg(self, dst, t0, t1):
        a = self.a
        a(f's_sub_u32 s{t0}, s2, 4')
        a(f's_mul_i32 s{dst}, s{t0}, 964')
        a(f's_lshr_b32 s{dst}, s{dst}, 16')
        a(f's_mul_i32 s{t1}, s{dst}, 68')
        a(f's_cmp_eq_u32 s{t0}, s{t1}')
        a(f's_cselect_b32 s{dst}, s{dst}, 4')

    def acc_addr(self, batch, c, t):
        a = self.a
        a(f's_and_b32 s{t}, s{batch}, 1')
        a(f's_xor_b32 s{t}, s{t}, 1')
        a(f's_lshl_b32 s{t}, s{t}, 13')
        a(f's_xor_b32 s{c}, s{c}, s{t}')
        a(f's_lshl_b32 s{t}, s{batch}, 11')
        a(f's_add_u32 s{t}, s{t}, s{c}')
        a(f's_add_u32 s{t}, s{t}, {ACC2}')
        a(f'v_lshl_add_u32 v224, v1, 4, s{t}')
        for rp in range(1, self.opt['R']):
            a(f'v_add_u32 v{224+rp}, {16384*rp}, v224')

    def acc_init(self):
        a, lab = self.a, self.lab
        self.batch_of_wg(56, 18, 19)
        a('s_cmp_eq_u32 s34, 1')
        a('s_cselect_b32 s56, s56, 4')
        a('s_cmp_ge_u32 s56, 4')
        a('s_cbranch_scc1 L_wai')
        a(f's_add_u32 s58, s32, {CW}')
        a('s_addc_u32 s59, s33, 0')
        a(f's_mov_b32 s19, {SPIN}')
        lab('L_ccw')
        a('s_load_dwordx8 s[60:67], s[58:59], 0 glc')
        a('s_sub_u32 s19, s19, 1')
        a('s_cbranch_scc1 L_exit')
        a('s_waitcnt lgkmcnt(0)')
        a('s_xor_b32 s7, s60, s6')
        for t in (62, 64, 66):
            a(f's_xor_b32 s18, s{t}, s6')
            a('s_or_b32 s7, s7, s18')
        a('s_cbranch_scc0 L_ccw2')
        a('s_sleep 16')
        a('s_branch L_ccw')
        lab('L_ccw2')
        a('s_add_i32 s58, s61, s63')
        a('s_add_i32 s60, s65, s67')
        a('s_add_i32 s58, s58, s60')
        a('v_mov_b32 v10, s6')
        a('s_cmp_gt_i32 s58, 0')
        a('s_cselect_b32 s57, 0x2000, 0')
        a('v_mov_b32 v11, s57')
        self.acc_addr(56, 57, 18)
        for i in range(4):
            a(f'v_mov_b32 v{16+i}, 0')
        for rp in range(self.opt['R']):
            a(f'global_store_dwordx4 v{224+rp}, v[16:19], s[32:33] sc1')
            a(f'global_store_dwordx4 v{224+rp}, v[16:19], s[32:33] offset:1024 sc1')
        a('s_lshl_b32 s18, s56, 3')
        a(f's_add_u32 s18, s18, {RDY}')
        a('v_mov_b32 v9, s18')
        a('s_waitcnt vmcnt(0)')
        a('s_mov_b64 exec, 1')
        a('global_store_dwordx2 v9, v[10:11], s[32:33] sc1')
        a('s_mov_b64 exec, -1')
        lab('L_wai')

    def ready_wait(self, name):
        a, lab = self.a, self.lab
        nu = self.opt['numa']
        if self.opt['ev']:
            self.wait_lds(name + 'e', L_EV, 'v_cmp_ne_u32 vcc, s6, v7', 16)
        a(f's_add_u32 s56, s32, {RDY}')
        a('s_addc_u32 s57, s33, 0')
        a(f's_mov_b32 s19, {SPIN}')
        ld = 's_load_dwordx8 s[60:67], s[56:57], 0' if nu else 's_load_dwordx4 s[60:63], s[56:57], 0'
        a(ld)
        lab(name)
        a('s_waitcnt lgkmcnt(0)')
        tg = (60, 62, 64, 66) if nu else (60, 61, 62, 63)
        a(f's_xor_b32 s7, s{tg[0]}, s6')
        for t in tg[1:]:
            a(f's_xor_b32 s18, s{t}, s6')
            a('s_or_b32 s7, s7, s18')
        a(f's_cbranch_scc0 {name}2')
        a(f'v_mov_b32 v9, {RDY}')
        a(f'v_lshl_add_u32 v9, v5, {3 if nu else 2}, v9')
        lab(name + '1')
        a(f's_sleep {self.opt["rsleep"]}')
        a('global_load_dwordx2 v[10:11], v9, s[32:33] sc1' if nu else 'global_load_dword v10, v9, s[32:33] sc1')
        a('s_sub_u32 s19, s19, 1')
        a('s_cbranch_scc1 L_exit')
        a('s_waitcnt vmcnt(0)')
        a('v_cmp_ne_u32 vcc, s6, v10')
        a(f's_cbranch_vccnz {name}1')
        if nu:
            a('v_readfirstlane_b32 s61, v11')
            a('s_nop 1')
        lab(name + '2')
        if nu:
            a('v_mov_b32 v9, 0')
            a('v_mov_b32 v10, s6')
            a('v_mov_b32 v11, s61')
            a(f'ds_write_b64 v9, v[10:11] offset:{L_PC}')

    def idle_worker(self):
        a, lab = self.a, self.lab
        opt = self.opt
        lab('L_widle')
        a('s_cmp_lg_u32 s34, 1')
        a('s_cbranch_scc1 L_wexit' if opt['stamps'] else 's_cbranch_scc1 L_exit')
        a('s_cmp_ge_u32 s2, 16')
        a('s_cbranch_scc1 L_wi2')
        a('s_bitcmp1_b32 s2, 2')
        a('s_cbranch_scc1 L_wi2')
        a('s_setprio 3')
        a('s_and_b32 s52, s2, 3')
        a(f's_mul_i32 s40, s52, {opt["NP"]*640}')
        a(f's_add_u32 s40, s40, {PRB}')
        a('s_add_u32 s40, s32, s40')
        a('s_addc_u32 s41, s33, 0')
        for k in range(opt['NP']):
            a(f's_load_dword s48, s[40:41], {640*k} glc')
            a(f's_load_dword s49, s[40:41], {640*k+8192} glc')
        a('s_mov_b32 s42, 0')
        a(f's_mov_b32 s43, {opt["NP"]}')
        a('s_memrealtime s[56:57]')
        a('s_waitcnt lgkmcnt(0)')
        lab('L_wpr')
        a('s_mov_b32 s50, -1')
        a('s_mov_b32 s51, -1')
        for rep in range(2):
            for off, mn in ((0, 50), (8192, 51)):
                a('s_memtime s[44:45]')
                a('s_waitcnt lgkmcnt(0)')
                a(f's_load_dword s48, s[40:41], {off} glc')
                a('s_waitcnt lgkmcnt(0)')
                a('s_memtime s[46:47]')
                a('s_waitcnt lgkmcnt(0)')
                a('s_sub_u32 s49, s46, s44')
                a(f's_min_u32 s{mn}, s{mn}, s49')
        a('s_cmp_lt_u32 s51, s50')
        a('s_cselect_b32 s49, 1, -1')
        a('s_add_i32 s42, s42, s49')
        a('s_add_u32 s40, s40, 640')
        a('s_addc_u32 s41, s41, 0')
        a('s_memrealtime s[58:59]')
        a('s_sub_u32 s43, s43, 1')
        a('s_waitcnt lgkmcnt(0)')
        a('s_sub_u32 s49, s58, s56')
        a(f's_cmp_gt_u32 s49, {opt["PLIM"]}')
        a('s_cselect_b32 s43, 0, s43')
        a('s_cmp_lg_u32 s43, 0')
        a('s_cbranch_scc1 L_wpr')
        if opt['forcec'] is not None:
            a(f's_mov_b32 s42, {1 if opt["forcec"] else -1}')
        a('s_lshl_b32 s52, s52, 3')
        a(f's_add_u32 s52, s52, {CW}')
        a('v_mov_b32 v9, s52')
        a('v_mov_b32 v10, s6')
        a('v_mov_b32 v11, s42')
        a('s_mov_b64 exec, 1')
        a('global_store_dwordx2 v9, v[10:11], s[32:33] sc1')
        if opt['stamps']:
            a('s_add_u32 s60, s42, 100')
            a('s_mov_b32 s61, 0')
            self.flush_stamps([(31, 60), (16, 58)])
        a('s_mov_b64 exec, -1')
        a('s_setprio 0')
        lab('L_wi2')
        a('v_lshrrev_b32 v5, 4, v1')
        self.ready_wait('L_wir')
        a('s_endpgm')

    def wait_lds(self, name, off, cmp, sleep):
        a, lab = self.a, self.lab
        a('v_mov_b32 v6, 0')
        a(f's_mov_b32 s19, {SPIN}')
        lab(name)
        a(f's_sleep {sleep}')
        a(f'ds_read_b32 v7, v6 offset:{off}')
        a('s_sub_u32 s19, s19, 1')
        a('s_cbranch_scc1 L_exit')
        a('s_waitcnt lgkmcnt(0)')
        a(cmp)
        a(f's_cbranch_vccnz {name}')

    def worker(self):
        a, lab = self.a, self.lab
        opt = self.opt
        self.wparams('L_widle' if opt['numa'] else 'L_wexit' if opt['stamps'] else 'L_exit')
        a('v_lshrrev_b32 v5, 4, v1')
        a('v_and_b32 v14, 15, v1')
        BF = 64
        for i in range(72):
            a(f'v_mov_b32 v{BF+i}, 0')
        a('s_cmp_lg_u32 s34, 0')
        a('s_cbranch_scc1 L_wst')
        if opt['early']:
            a('s_cmp_eq_u32 s5, 0')
            a('s_cbranch_scc1 L_wfl')
        self.stage()
        lab('L_wfl')
        a('v_mov_b32 v6, 0')
        a('v_mov_b32 v7, s6')
        a('s_waitcnt lgkmcnt(0)')
        a(f'ds_write_b32 v6, v7 offset:{L_WOF}')
        lab('L_wst')
        self.wait_lds('L_wsw', L_WOF, 'v_cmp_ne_u32 vcc, s6, v7', 8)
        a('s_mul_i32 s44, s34, 3')
        a('s_add_u32 s43, s43, s44')
        a('s_mul_i32 s44, s43, 14')
        a('s_lshl_b32 s45, s42, 6')
        a('s_sub_u32 s44, s44, s45')
        a(f'v_mul_u32_u24 v2, {6*RS}, v5')
        a('v_cmp_gt_u32 s[46:47], 14, v14')
        for t in range(3):
            u = self.u()
            a('v_add_u32 v3, s44, v14')
            a('v_cmp_gt_u32 vcc, 64, v3')
            a('v_lshl_add_u32 v3, v3, 1, v2')
            a(f's_and_b64 s[{48+2*t}:{49+2*t}], vcc, s[46:47]')
            a(f's_mov_b64 exec, s[{48+2*t}:{49+2*t}]')
            a(f's_cbranch_execz L_wb{u}')
            for kk in range(0, 6, 2):
                for q in range(2):
                    for e in range(6):
                        a(f'ds_read_u16 v{16+6*q+e}, v3 offset:{L_WOS+24*RS*(kk+q)+RS*e}')
                a('s_waitcnt lgkmcnt(0)')
                for q in range(2):
                    for uu in range(3):
                        a(f'v_lshl_or_b32 v{BF+12*(kk+q)+4*t+uu}, v{16+6*q+2*uu+1}, 16, v{16+6*q+2*uu}')
            lab(f'L_wb{u}')
            a('s_mov_b64 exec, -1')
            a('s_add_u32 s44, s44, 14')
        if opt['numa']:
            a('s_lshr_b32 s44, s40, 4')
            a('s_lshl_b32 s44, s44, 13')
            a('s_lshl_b32 s45, s40, 14')
            a('s_add_u32 s44, s44, s45')
            a(f's_add_u32 s44, s44, {OG2}')
            a('v_mul_u32_u24 v2, 384, v14')
            a('v_lshl_add_u32 v2, v5, 4, v2')
            a('v_add_u32 v2, s44, v2')
            a(f's_and_b32 s44, s40, {opt["R"]-1}')
            a('s_lshl_b32 s44, s44, 14')
            a('s_lshl_b32 s46, s43, 6')
            a('s_add_u32 s44, s44, s46')
            a(f's_add_u32 s44, s44, {ACC2}')
            a('v_xor_b32 v3, 1, v5')
            a('v_and_b32 v3, 1, v3')
            a('v_lshlrev_b32 v3, 13, v3')
            a('v_lshl_add_u32 v3, v5, 11, v3')
            a('v_lshl_add_u32 v3, v14, 2, v3')
            a('v_add_u32 v3, s44, v3')
        else:
            a('s_lshr_b32 s44, s40, 1')
            a('s_lshl_b32 s44, s44, 14')
            a('s_and_b32 s45, s40, 1')
            a('s_mul_i32 s46, s45, 384')
            a('s_add_u32 s44, s44, s46')
            a(f's_add_u32 s44, s44, {OG}')
            a('v_lshlrev_b32 v2, 10, v14')
            a('v_lshl_add_u32 v2, v5, 4, v2')
            a('v_add_u32 v2, s44, v2')
            a(f's_and_b32 s44, s40, {opt["R"]-1}')
            a('s_lshl_b32 s44, s44, 13')
            a('s_lshl_b32 s46, s43, 6')
            a('s_add_u32 s44, s44, s46')
            a(f's_add_u32 s44, s44, {ACC}')
            a('v_lshlrev_b32 v3, 11, v5')
            a('v_lshl_add_u32 v3, v14, 2, v3')
            a('v_add_u32 v3, s44, v3')
        a('v_cmp_eq_u32 vcc, 15, v14')
        a('v_lshlrev_b32 v8, 4, v5')
        a('v_add_u32 v8, 64, v8')
        a('v_cndmask_b32 v4, 0, 1.0, vcc')
        a('v_cmp_eq_u32 s[46:47], 1, v5')
        if opt['numa']:
            self.acc_init()
        self.ready_wait('L_wr')
        if opt['numa']:
            a('v_xor_b32 v2, v11, v2')
            a('v_xor_b32 v3, v11, v3')
        self.stamp(24)
        self.wait_lds('L_wd', L_CNT, f'v_cmp_gt_u32 vcc, {5 if self.opt["after"] else 4}, v7', 1)
        a('s_setprio 3')
        AF = 160
        a(f's_mov_b32 s19, {SPIN}')
        D0 = 204
        LS = AF + 21

        def mf(kk, first):
            for t in range(3):
                d = D0 + 4 * t
                c = '0' if first else f'v[{d}:{d+3}]'
                a(f'v_mfma_f32_16x16x32_bf16 v[{d}:{d+3}], v[{AF+4*kk}:{AF+4*kk+3}], v[{BF+12*kk+4*t}:{BF+12*kk+4*t+3}], {c}')
        if opt['spec']:
            a('s_mov_b64 s[54:55], -1')
            lab('L_wp')
            a('s_mov_b64 exec, s[54:55]')
            for kk in (5, 0, 1, 2, 3, 4):
                a(f'global_load_dwordx4 v[{AF+4*kk}:{AF+4*kk+3}], v2, s[32:33] offset:{64*kk} sc1')
            a('s_mov_b64 exec, -1')
            a('s_sub_u32 s19, s19, 1')
            a('s_cbranch_scc1 L_exit')
            a('s_waitcnt vmcnt(5)')
            a(f'v_cndmask_b32 v10, v10, v{LS}, s[54:55]')
            a(f'v_cndmask_b32 v{LS}, v{LS}, 0, s[46:47]')
            a(f'v_xor_b32 v9, s6, v{AF+23}')
            a('v_max_f32_dpp v11, v10, v10 quad_perm:[1,0,3,2] row_mask:0xf bank_mask:0xf')
            mf(5, True)
            a('v_max_f32_dpp v11, v11, v11 quad_perm:[2,3,0,1] row_mask:0xf bank_mask:0xf')
            a('v_sub_f32 v12, v10, v11')
            a('v_exp_f32 v12, v12')
            fill = {0: ['v_add_f32_dpp v11, v12, v12 quad_perm:[1,0,3,2] row_mask:0xf bank_mask:0xf'],
                    1: ['v_add_f32_dpp v11, v11, v11 quad_perm:[2,3,0,1] row_mask:0xf bank_mask:0xf', 'v_rcp_f32 v11, v11'],
                    2: ['v_mul_f32 v12, v12, v11'] + [f'ds_bpermute_b32 v{16+r}, v8, v12 offset:{4*r}' for r in range(4)]}
            for kk in range(5):
                a(f's_waitcnt vmcnt({4-kk})')
                a(f'v_bitop3_b32 v9, v{AF+4*kk+3}, s6, v9 bitop3:0xbe')
                if kk == 4:
                    a('v_cmp_ne_u32 s[54:55], 0, v9')
                mf(kk, False)
                for t in fill.get(kk, []):
                    a(t)
            a('s_cmp_lg_u64 s[54:55], 0')
            a('s_cbranch_scc1 L_wp')
            self.stamp(26)
        else:
            lab('L_wp')
            for kk in range(6):
                a(f'global_load_dwordx4 v[{AF+4*kk}:{AF+4*kk+3}], v2, s[32:33] offset:{64*kk} sc1')
            a('s_sub_u32 s19, s19, 1')
            a('s_cbranch_scc1 L_exit')
            for kk in range(6):
                a(f's_waitcnt vmcnt({5-kk})')
                if kk == 0:
                    a(f'v_xor_b32 v9, s6, v{AF+3}')
                else:
                    a(f'v_bitop3_b32 v9, v{AF+4*kk+3}, s6, v9 bitop3:0xbe')
            a('v_cmp_ne_u32 vcc, 0, v9')
            a('s_and_b64 exec, exec, vcc')
            if opt['psleep']:
                a('s_cbranch_execz L_wpx')
                a(f's_sleep {opt["psleep"]}')
                a('s_branch L_wp')
                lab('L_wpx')
            else:
                a('s_cbranch_execnz L_wp')
            a('s_mov_b64 exec, -1')
            self.stamp(26)
            a(f'v_mov_b32 v10, v{LS}')
            a(f'v_cndmask_b32 v{LS}, v{LS}, 0, s[46:47]')
            mf(0, True)
            a('v_max_f32_dpp v11, v10, v10 quad_perm:[1,0,3,2] row_mask:0xf bank_mask:0xf')
            mf(1, False)
            a('v_max_f32_dpp v11, v11, v11 quad_perm:[2,3,0,1] row_mask:0xf bank_mask:0xf')
            a('v_sub_f32 v10, v10, v11')
            a('v_exp_f32 v10, v10')
            mf(2, False)
            a('v_add_f32_dpp v11, v10, v10 quad_perm:[1,0,3,2] row_mask:0xf bank_mask:0xf')
            mf(3, False)
            a('v_add_f32_dpp v11, v11, v11 quad_perm:[2,3,0,1] row_mask:0xf bank_mask:0xf')
            a('v_rcp_f32 v11, v11')
            a('s_nop 0')
            a('v_mul_f32 v10, v10, v11')
            for r in range(4):
                a(f'ds_bpermute_b32 v{16+r}, v8, v10 offset:{4*r}')
            mf(4, False)
            mf(5, False)
        a('s_cmp_eq_u64 s[52:53], 0')
        a('s_waitcnt lgkmcnt(0)')
        self.nop(4)
        for t in range(3):
            a(f'v_fma_f32 v{20+t}, v16, v{D0+4*t}, v4')
            for r in range(1, 4):
                a(f'v_fmac_f32 v{20+t}, v{16+r}, v{D0+4*t+r}')
            if t == 2:
                a('s_cbranch_scc1 L_wend')
            a(f'global_atomic_add_f32 v3, v{20+t}, s[32:33] offset:{64*t}')
        lab('L_wend')
        if opt['stamps']:
            a('s_cmp_lg_u32 s34, 0')
            a('s_cbranch_scc1 L_exit')
            self.stamp(28)
            self.flush_stamps([(11, 24), (4, 26), (5, 28)])
            lab('L_wexit')
            a('s_cmp_lg_u32 s34, 0')
            a('s_cbranch_scc1 L_exit')
            for slot, v in ((9, 240), (10, 242), (17, 228), (19, 232), (20, 234), (21, 236))[:(2 if opt['probe'] else 6)]:
                self.unvstamp(v, 20)
                self.flush_stamps([(slot, 20)])
        a('s_endpgm')

    def consumer(self):
        a, lab = self.a, self.lab
        lab('L_cons')
        a('s_mov_b32 s36, s8')
        a('s_mov_b32 s37, s9')
        a('s_mov_b32 s38, 3584')
        a('s_mov_b32 s39, 0x20000')
        a('s_mov_b32 s40, s28')
        a('s_mov_b32 s41, s29')
        a('s_mov_b32 s42, 3584')
        a('s_mov_b32 s43, 0x20000')
        a('s_mul_i32 s44, s35, 896')
        if self.opt['numa']:
            pass
        else:
            a('s_lshl_b32 s18, s35, 11')
            a(f's_add_u32 s18, s18, {ACC}')
            a('v_lshl_add_u32 v224, v1, 4, s18')
            for rp in range(1, self.opt['R']):
                a(f'v_add_u32 v{224+rp}, {8192*rp}, v224')
        a('v_lshrrev_b32 v6, 2, v1')
        a('v_and_b32 v3, 3, v1')
        a('v_mul_u32_u24 v2, 28, v6')
        a('v_lshl_add_u32 v2, v3, 3, v2')
        for r in range(2):
            for ep in range(2):
                a(f'buffer_load_dword v{8+2*r+ep}, v2, s[36:39], s44 offen offset:{448*r+4*ep}')
        a('s_mov_b32 s46, 0x88888888')
        a('s_mov_b32 s47, 0x88888888')
        a(f's_mov_b32 s62, {f2u(1.0/448):#x}')
        a(f's_mov_b32 s63, {f2u(1e-5):#x}')
        for r, m in ((0, 0x2210), (1, 0x0844)):
            a(f'v_lshrrev_b32 v{60+r}, v6, {m}' if False else f's_mov_b32 s48, {m}')
            a(f'v_lshrrev_b32 v{60+r}, v6, s48')
            a(f'v_and_b32 v{60+r}, 1, v{60+r}')
            a(f'v_add_u32 v{60+r}, 1, v{60+r}')
            a(f'v_mul_u32_u24 v{60+r}, {32 // self.opt["R"]}, v{60+r}')
            a(f'v_cvt_f32_u32 v{60+r}, v{60+r}')
        a('s_waitcnt vmcnt(0)')
        XF = 12
        for i in range(4):
            self.unpack(XF + 2 * i, XF + 2 * i + 1, 8 + i)
        a(f'v_lshlrev_b32 v7, 4, v1')
        a(f'v_add_u32 v62, {TG}, v7')
        a('v_mul_u32_u24 v3, 12, v1')
        a(f'v_add_u32 v3, {L_TBL}, v3')
        TF = 160
        if self.opt['ev']:
            self.wait_lds('L_cte', L_EV, 'v_cmp_ne_u32 vcc, s6, v7', 16)
        a(f's_mov_b32 s19, {SPIN}')
        if self.opt['ev']:
            for it in range(16):
                if it % 4 == 0 and it:
                    a('v_add_u32 v62, 4096, v62')
                a(f'global_load_dwordx4 v[{TF+4*it}:{TF+4*it+3}], v62, s[32:33] offset:{1024*(it%4)}')
            a('s_branch L_ct1')
        lab('L_ct')
        for it in range(16):
            if it % 4 == 0 and it:
                a('v_add_u32 v62, 4096, v62')
            a(f'global_load_dwordx4 v[{TF+4*it}:{TF+4*it+3}], v62, s[32:33] offset:{1024*(it%4)} sc1')
        lab('L_ct1')
        a('v_subrev_u32 v62, 12288, v62')
        a('s_sub_u32 s19, s19, 1')
        a('s_cbranch_scc1 L_exit')
        a('s_waitcnt vmcnt(0)')
        a(f'v_xor_b32 v9, s6, v{TF+3}')
        for it in range(1, 16):
            a(f'v_bitop3_b32 v9, v{TF+4*it+3}, s6, v9 bitop3:0xbe')
        a('v_cmp_ne_u32 vcc, 0, v9')
        a('s_cbranch_vccz L_ct2')
        a(f's_sleep {self.opt["tsleep"]}')
        a('s_branch L_ct')
        lab('L_ct2')
        for it in range(16):
            a(f'ds_write2_b32 v3, v{TF+4*it}, v{TF+4*it+1} offset0:0 offset1:1')
            a(f'ds_write_b32 v3, v{TF+4*it+2} offset:8')
            a(f'v_add_u32 v3, {768 if it != 7 else 768 + 65536 - 2 * NTH}, v3')
        if self.opt['numa']:
            self.wait_lds('L_cpc', L_PC, 'v_cmp_ne_u32 vcc, s6, v7', 8)
            a(f'ds_read_b32 v7, v6 offset:{L_PC+4}')
            a('s_waitcnt lgkmcnt(0)')
            a('v_readfirstlane_b32 s48, v7')
            a('s_nop 0')
            self.acc_addr(35, 48, 18)
        self.stamp(24)
        A, A2 = 20, 176
        Y = 168
        a(f's_mov_b32 s51, {E0 << 23:#x}')
        a(f's_mov_b32 s56, {(E0 + 24) << 23:#x}')
        for i in range(8):
            a(f'v_mov_b32 v{Y+i}, 0')
        self.wait_lds('L_cd', L_CNT, f'v_cmp_gt_u32 vcc, {5 if self.opt["after"] else 4}, v7', 1)
        a('s_setprio 3')
        a(f's_mov_b32 s19, {SPIN}')
        R = self.opt['R']
        AR = [A] + [A2 + 8 * i for i in range(R - 1)]
        lab('L_cp')
        for rp in range(R):
            a(f'global_load_dwordx4 v[{AR[rp]}:{AR[rp]+3}], v{224+rp}, s[32:33] sc1')
            a(f'global_load_dwordx4 v[{AR[rp]+4}:{AR[rp]+7}], v{224+rp}, s[32:33] offset:1024 sc1')
        a('s_sub_u32 s19, s19, 1')
        a('s_cbranch_scc1 L_exit')
        a('s_mov_b64 s[48:49], s[46:47]')
        for rp in range(R):
            a(f's_waitcnt vmcnt({2*(R-1-rp)})')
            a(f'v_cmp_eq_f32 vcc, v60, v{AR[rp]+3}')
            a(f'v_cmp_eq_f32 s[52:53], v61, v{AR[rp]+7}')
            if rp:
                for i in range(4):
                    a(f'v_pk_add_f32 v[{A+2*i}:{A+2*i+1}], v[{A+2*i}:{A+2*i+1}], v[{AR[rp]+2*i}:{AR[rp]+2*i+1}]')
            a('s_and_b64 s[48:49], s[48:49], vcc')
            a('s_and_b64 s[48:49], s[48:49], s[52:53]')
        a('s_cmp_eq_u64 s[48:49], s[46:47]')
        a('s_cbranch_scc0 L_cp')
        self.stamp(26)
        P, Hh, Dd = 28, 32, 40
        S1, S2, MO, RO = 48, 50, 54, 56
        for i in range(8):
            self.bf16r(A + i, A + i)
        for i in range(4):
            a(f'v_pk_add_f32 v[{A+2*i}:{A+2*i+1}], v[{A+2*i}:{A+2*i+1}], v[{XF+2*i}:{XF+2*i+1}]')
        for i in range(8):
            self.bf16r(Hh + i, A + i)

        def sums(src, piv):
            if piv:
                a(f'v_readfirstlane_b32 s50, v{src}')
                a('s_nop 1')
                for i in range(4):
                    a(f'v_pk_add_f32 v[{Dd+2*i}:{Dd+2*i+1}], v[{src+2*i}:{src+2*i+1}], s[50:51] op_sel_hi:[1,0] neg_lo:[0,1] neg_hi:[0,1]')
                s = Dd
            else:
                s = src
            for i in (2, 3, 6, 7):
                a(f'v_cndmask_b32 v{Dd+i}, v{s+i}, 0, s[46:47]')
            idx = [s, s + 4, Dd + 2, Dd + 6]
            pr = lambda r: f'v[{r}:{r+1}]'
            a(f'v_pk_add_f32 {pr(S1)}, {pr(idx[0])}, {pr(idx[1])}')
            a(f'v_pk_mul_f32 {pr(S2)}, {pr(idx[0])}, {pr(idx[0])}')
            a(f'v_pk_add_f32 {pr(S1)}, {pr(S1)}, {pr(idx[2])}')
            a(f'v_pk_fma_f32 {pr(S2)}, {pr(idx[1])}, {pr(idx[1])}, {pr(S2)}')
            a(f'v_pk_add_f32 {pr(S1)}, {pr(S1)}, {pr(idx[3])}')
            a(f'v_pk_fma_f32 {pr(S2)}, {pr(idx[2])}, {pr(idx[2])}, {pr(S2)}')
            a(f'v_add_f32 v{S1}, v{S1}, v{S1+1}')
            a(f'v_pk_fma_f32 {pr(S2)}, {pr(idx[3])}, {pr(idx[3])}, {pr(S2)}')
            a(f'v_add_f32 v{S2}, v{S2}, v{S2+1}')
            self.ladder64([S1, S2], [S1 + 1, S2 + 1])
            self.ln_stats(S1, S2, 's50' if piv else None, 58, 59, 62, 63, MO, RO)

        def norm(src, dst):
            for i in range(4):
                a(f'v_pk_add_f32 v[{dst+2*i}:{dst+2*i+1}], v[{src+2*i}:{src+2*i+1}], v[{MO}:{MO+1}] op_sel_hi:[1,0] neg_lo:[0,1] neg_hi:[0,1]')
            for i in range(8):
                self.bf16r(dst + i, dst + i)
            for i in range(4):
                a(f'v_pk_mul_f32 v[{dst+2*i}:{dst+2*i+1}], v[{dst+2*i}:{dst+2*i+1}], v[{RO}:{RO+1}] op_sel_hi:[1,0]')
            for i in range(8):
                self.bf16r(dst + i, dst + i)

        sums(Hh, True)
        norm(Hh, A)
        sums(A, False)
        norm(A, A)
        for i in range(8):
            a(f'v_lshrrev_b32 v{Dd+i}, 15, v{A+i}')
        for i in range(8):
            a(f'ds_read_u16_d16_hi v{Y+i}, v{Dd+i}')
        for i in (2, 3, 6, 7):
            a(f'v_cndmask_b32 v{A+i}, v{A+i}, 1.0, s[46:47]')
        a(f'v_min3_f32 v48, |v{A}|, |v{A+1}|, |v{A+2}|')
        a(f'v_max3_f32 v49, |v{A}|, |v{A+1}|, |v{A+2}|')
        a(f'v_min3_f32 v48, v48, |v{A+3}|, |v{A+4}|')
        a(f'v_max3_f32 v49, v49, |v{A+3}|, |v{A+4}|')
        a(f'v_min3_f32 v48, v48, |v{A+5}|, |v{A+6}|')
        a(f'v_max3_f32 v49, v49, |v{A+5}|, |v{A+6}|')
        a(f'v_min_f32 v48, v48, |v{A+7}|')
        a(f'v_max_f32 v49, v49, |v{A+7}|')
        a(f'v_mul_f32 v50, v{RO}, v{MO}')
        a('v_cmp_gt_f32 vcc, s51, v48')
        a('v_cmp_le_f32 s[52:53], s56, v49')
        a('v_cmp_u_f32 s[54:55], v50, v50')
        a('s_or_b64 vcc, vcc, s[52:53]')
        a('s_or_b64 vcc, vcc, s[54:55]')
        a('s_waitcnt lgkmcnt(0)')
        a('s_cbranch_vccnz L_cslow')
        lab('L_cfin')
        for i in range(4):
            a(f'v_pk_add_f32 v[{Y+2*i}:{Y+2*i+1}], v[{Y+2*i}:{Y+2*i+1}], v[{Hh+2*i}:{Hh+2*i+1}]')
        for i in range(4):
            a(f'v_cvt_pk_bf16_f32 v{P+i}, v{Y+2*i}, v{Y+2*i+1}')
        of = self.opt['outf']
        a(f'buffer_store_dword v{P}, v2, s[40:43], s44 offen {of}')
        a(f'buffer_store_dword v{P+2}, v2, s[40:43], s44 offen offset:448 {of}')
        a('s_andn2_b64 exec, exec, s[46:47]')
        a(f'buffer_store_dword v{P+1}, v2, s[40:43], s44 offen offset:4 {of}')
        a(f'buffer_store_dword v{P+3}, v2, s[40:43], s44 offen offset:452 {of}')
        self.stamp(28)
        if self.opt['fix']:
            a('s_and_b32 s96, s6, 0x3fff')
            a('s_lshr_b32 s97, s6, 2')
            a('s_and_b32 s97, s97, 0x0fffc000')
            a('s_or_b32 s96, s96, s97')
            lab('L_fix')
            a('s_memrealtime s[94:95]')
            a('s_waitcnt lgkmcnt(0)')
            a('s_sub_u32 s94, s94, s96')
            a('s_and_b32 s94, s94, 0x0fffffff')
            a(f's_cmp_lt_u32 s94, {self.opt["fix"]}')
            a('s_cbranch_scc1 L_fix')
        self.flush_stamps([(12, 24), (13, 26), (14, 28)])
        a('s_endpgm')
        lab('L_cslow')
        a(f's_mov_b32 s57, {E0 << 23:#x}')
        a(f's_mov_b32 s58, {24 << 23:#x}')
        for i in range(8):
            u = self.u()
            a(f'v_and_b32 v48, 0x7fffffff, v{A+i}')
            a('v_subrev_u32 v48, s57, v48')
            a('v_cmp_le_u32 s[52:53], s58, v48')
            lab(f'L_cs{u}')
            a('s_cmp_eq_u64 s[52:53], 0')
            a(f's_cbranch_scc1 L_ce{u}')
            a('s_ff1_i32_b64 s54, s[52:53]')
            a('s_bitset0_b64 s[52:53], s54')
            a(f'v_readlane_b32 s70, v{A+i}, s54')
            a('s_nop 0')
            a('s_mov_b32 s71, s70')
            a('s_nop 0')
            a('s_call_b64 s[76:77], L_eval')
            a('s_nop 0')
            a('v_readfirstlane_b32 s55, v153')
            a('s_mov_b32 m0, s54')
            a('s_lshl_b32 s55, s55, 16')
            a('s_nop 3')
            a(f'v_writelane_b32 v{Y+i}, s55, m0')
            a(f's_branch L_cs{u}')
            lab(f'L_ce{u}')
        a('s_branch L_cfin')

    def build(self):
        a, lab = self.a, self.lab
        o = self.o
        o.append(HEADER.rstrip('\n'))
        o.append(f'; @launch grid=(256,1,1) block=(512,1,1) lds={L_END}')
        o.append(DOC.rstrip('\n'))
        o.append('.amdgcn_target "amdgcn-amd-amdhsa--gfx950"')
        o.append('.text')
        o.append(f'.globl {KN}')
        o.append('.p2align 8')
        o.append(f'.type {KN},@function')
        lab(KN)
        a('s_cmp_ge_u32 s2, 256')
        a('s_cbranch_scc1 L_exit')
        a('s_memrealtime s[98:99]')
        a('s_load_dwordx16 s[8:23], s[0:1], 0')
        a('s_load_dwordx8 s[24:31], s[0:1], 64')
        a('s_load_dwordx2 s[32:33], s[0:1], 96')
        a('v_lshrrev_b32 v1, 6, v0')
        a('s_lshr_b32 s7, s2, 3')
        a('v_readfirstlane_b32 s3, v1')
        if self.opt['gmap'] == 0:
            a('s_lshr_b32 s4, s2, 2')
        elif self.opt['gmap'] == 1:
            a('s_bfe_u32 s4, s2, 0x10001')
            a('s_lshl1_add_u32 s4, s7, s4')
        else:
            a('s_lshr_b32 s4, s2, 1')
            a('s_xor_b32 s4, s4, s2')
            a('s_and_b32 s4, s4, 1')
            a('s_lshl1_add_u32 s4, s7, s4')
        self.member(5, 6)
        a('s_xor_b32 s7, s7, s5')
        a('s_and_b32 s7, s7, 3')
        a('s_cmp_eq_u32 s7, 0')
        a('s_cselect_b32 s5, 1, 0')
        a('s_cmp_ge_u32 s3, 4')
        a('s_cbranch_scc1 L_helper')
        self.streamer()
        lab('L_helper')
        self.helper()
        lab('L_exit')
        a('s_endpgm')
        o.append('.section .rodata,"a"')
        o.append('.p2align 6')
        o.append(f'.amdhsa_kernel {KN}')
        o.append('  .amdhsa_next_free_vgpr 256')
        o.append('  .amdhsa_next_free_sgpr 102')
        o.append('  .amdhsa_accum_offset 256')
        o.append('  .amdhsa_group_segment_fixed_size 0')
        o.append('  .amdhsa_kernarg_size 104')
        o.append('  .amdhsa_user_sgpr_count 2')
        o.append('  .amdhsa_user_sgpr_kernarg_segment_ptr 1')
        o.append('  .amdhsa_system_sgpr_workgroup_id_x 1')
        o.append('.end_amdhsa_kernel')
        return '\n'.join(o) + '\n'


if __name__ == '__main__':
    out = sys.argv[1]
    opt = eval(sys.argv[2]) if len(sys.argv) > 2 else {}
    open(out, 'w').write(G(**opt).build())
```
